```python
import torch

def _softmax(x, axis=-1):
    return torch.softmax(x, dim=axis)
def _gelu(x):
    return torch.nn.functional.gelu(x, approximate="tanh")
def _silu(x):
    return torch.nn.functional.silu(x)
def _sigmoid(x):
    return torch.sigmoid(x)
def _layernorm(x, axis=-1, eps=1e-5):
    m = x.mean(dim=axis, keepdim=True)
    v = x.var(dim=axis, keepdim=True, unbiased=False)
    return (x - m) / torch.sqrt(v + eps)
def _scatter_add(tgt, idx, src, axis=0):
    return tgt.clone().index_add_(axis, idx, src)
def _segment_sum(src, seg, n):
    out = torch.zeros((n,) + src.shape[1:], dtype=src.dtype)
    return out.index_add_(0, seg, src)
def _pad(x, pw):
    flat = tuple(v for pair in reversed(pw) for v in pair)
    return torch.nn.functional.pad(x, flat)

kernel_name = 'parallel_sum__spectral_gfnet__mixer_token_mlp__prompt'

def setup_inputs():

    _w = (lambda a: (lambda t: t.to(torch.bfloat16) if t.is_floating_point() else t)(torch.as_tensor(a)))
    def _A_setup():
        B, S, D = 1, 2048, 512
        Df = D // 2 + 1
        return {
            "x": _w((lambda *s: torch.randn(*s, dtype=torch.bfloat16) * 0.05)(B, S, D)),
            "w_r": _w((lambda *s: torch.randn(*s, dtype=torch.bfloat16) * 0.2)(S, Df) * 0.02),
            "w_i": _w((lambda *s: torch.randn(*s, dtype=torch.bfloat16) * 0.2)(S, Df) * 0.02),
        }
    _A_in = _A_setup()

    def _B_setup():
        B, S, D, F = 1, 2048, 512, 1792
        return {
            "x": _w((lambda *s: torch.randn(*s, dtype=torch.bfloat16) * 0.05)(B, S, D)),
            "w1": _w((lambda *s: torch.randn(*s, dtype=torch.bfloat16) * 0.4)(S, F) * (S ** -0.5)),
            "b1": _w((lambda *s: torch.randn(*s, dtype=torch.bfloat16) * 3.2)(F) * 0.02),
            "w2": _w((lambda *s: torch.randn(*s, dtype=torch.bfloat16) * 0.1)(F, S) * (F ** -0.5)),
            "b2": _w((lambda *s: torch.randn(*s, dtype=torch.bfloat16) * 0.4)(S) * 0.02),
        }
    _B_in = _B_setup()

    return {
        "A_x": _A_in["x"],
        "A_w_r": _A_in["w_r"],
        "A_w_i": _A_in["w_i"],
        "B_x": _B_in["x"],
        "B_w1": _B_in["w1"],
        "B_b1": _B_in["b1"],
        "B_w2": _B_in["w2"],
        "B_b2": _B_in["b2"],
    }

def reference(A_x, A_w_r, A_w_i, B_x, B_w1, B_b1, B_w2, B_b2):
    def _A_ref(x, w_r, w_i):
        B, S, D = x.shape
        X = (lambda x, axes=(-2,-1): torch.fft.rfft2(x.float(), dim=axes))(x, axes=(-2, -1))
        W = w_r + 1j * w_i
        X = X * W
        y = (lambda x, s, axes=(-2,-1): torch.fft.irfft2(x, s=s, dim=axes).to(torch.bfloat16))(X, (S, D), axes=(-2, -1))
        return y

    def _B_ref(x, w1, b1, w2, b2):
        B, S, D = x.shape
        h = _layernorm(x, axis=-1)
        u = torch.einsum("bsd,sf->bdf", h, w1) + b1
        u = _gelu(u)
        y = torch.einsum("bdf,fs->bds", u, w2) + b2
        return (lambda x, *d: x.permute(*d))(y, 0, 2, 1)

    x = A_x
    xn = _layernorm(x, axis=-1)
    return x + _A_ref(xn, A_w_r, A_w_i) + _B_ref(xn, B_w1, B_b1, B_w2, B_b2)
```

```python
import re

TRANS = ("v_exp_f32", "v_log_f32", "v_rcp_f32", "v_rsq_f32", "v_sqrt_f32", "v_sin_f32", "v_cos_f32", "v_rcp_iflag_f32")
REG_RE = re.compile(r"^(-|abs\()?\s*([vas])(\d+|\[(\d+):(\d+)\])\)?$")
SPECIAL = {"vcc": ("s106", "s107"), "vcc_lo": ("s106",), "vcc_hi": ("s107",), "exec": ("s126", "s127"),
           "exec_lo": ("s126",), "exec_hi": ("s127",), "m0": ("m0",)}

def regs_of(tok):
    tok = tok.strip()
    if tok in SPECIAL: return set(SPECIAL[tok])
    if tok.startswith("-") and tok[1:] in SPECIAL: return set(SPECIAL[tok[1:]])
    m = REG_RE.match(tok)
    if not m: return set()
    k = m.group(2)
    if m.group(4) is not None:
        return {f"{k}{i}" for i in range(int(m.group(4)), int(m.group(5)) + 1)}
    return {f"{k}{m.group(3)}"}

def split_ops(s):
    out, depth, cur = [], 0, ""
    for ch in s:
        if ch in "[(": depth += 1
        if ch in "])": depth -= 1
        if ch == "," and depth == 0:
            out.append(cur.strip()); cur = ""
        else:
            cur += ch
    if cur.strip(): out.append(cur.strip())
    return out

class Inst:
    __slots__ = ("text", "mn", "dst", "src", "kind", "label", "target", "tags", "ops", "mods")
    def __init__(self, text):
        self.text = text
        code, _, comment = text.partition(";")
        code = code.strip()
        self.tags = dict(re.findall(r"@(\w+)=([\w.:,+-]+)", comment))
        self.label = None; self.target = None
        self.dst, self.src = set(), set()
        self.mn = ""; self.kind = "none"; self.ops = []; self.mods = ""
        if not code: return
        if code.endswith(":"):
            self.label = code[:-1]; self.kind = "label"; return
        if code.startswith("."):
            self.kind = "dir"; return
        parts = code.split(None, 1)
        mn = self.mn = parts[0]
        rest = parts[1] if len(parts) > 1 else ""
        ops = split_ops(rest)
        if ops:
            last = ops[-1].split()
            if len(last) > 1 and not last[0].endswith("("):
                ops[-1] = last[0]; self.mods = " ".join(last[1:])
        self.ops = ops
        R = [regs_of(o) for o in ops]
        base = re.sub(r"_(e32|e64|dpp|sdwa)$", "", mn)
        if mn.startswith("v_mfma"):
            self.kind = "mfma"; self.dst = R[0]; self.src = R[1] | R[2] | R[3]
        elif mn.startswith("v_"):
            self.kind = "trans" if base in TRANS else "valu"
            if base.startswith("v_cmp"):
                self.dst = R[0]; self.src = set().union(*R[1:])
                if base.startswith("v_cmpx"): self.dst |= set(SPECIAL["exec"])
            elif base in ("v_add_co_u32", "v_sub_co_u32", "v_addc_co_u32", "v_subb_co_u32", "v_subrev_co_u32"):
                self.dst = R[0] | R[1]; self.src = set().union(*R[2:])
            elif base.startswith("v_permlane") and "swap" in base:
                self.dst = R[0] | R[1]; self.src = R[0] | R[1]
            elif base in ("v_fmac_f32", "v_dot2c_f32_bf16", "v_pk_fmac_f16", "v_writelane_b32") or mn.endswith("_dpp"):
                self.dst = R[0]; self.src = set().union(*R)
            else:
                self.dst = R[0]; self.src = set().union(*R[1:]) if len(R) > 1 else set()
            if base == "v_cndmask_b32" and len(ops) == 3: self.src |= set(SPECIAL["vcc"])
        elif mn.startswith("buffer_") or mn.startswith("global_"):
            self.kind = "vmem"
            lds = "lds" in self.mods.split()
            if mn.startswith("buffer_load"):
                if lds: self.src = set().union(*R) | {"m0"}
                else: self.dst = R[0]; self.src = set().union(*R[1:])
            elif mn.startswith("global_load"):
                if "_lds_" in mn: self.src = set().union(*R) | {"m0"}
                else: self.dst = R[0]; self.src = set().union(*R[1:])
            elif mn.startswith("buffer_atomic") or mn.startswith("global_atomic"):
                self.src = set().union(*R)
                if "sc0" in self.mods.split(): self.dst = R[0]
            elif mn in ("buffer_wbl2", "buffer_inv"):
                pass
            else:
                self.src = set().union(*R)
        elif mn.startswith("ds_"):
            self.kind = "ds"
            if mn.startswith("ds_read") or mn.startswith("ds_bpermute") or mn.startswith("ds_swizzle") or mn.startswith("ds_permute"):
                self.dst = R[0]; self.src = set().union(*R[1:])
            else:
                self.src = set().union(*R)
        elif mn.startswith("s_"):
            self.kind = "salu"
            if mn.startswith("s_load") or mn.startswith("s_buffer_load") or mn in ("s_memtime", "s_memrealtime"):
                self.kind = "smem"; self.dst = R[0]; self.src = set().union(*R[1:]) if len(R) > 1 else set()
            elif mn.startswith("s_cbranch") or mn == "s_branch":
                self.kind = "branch"; self.target = ops[0]
            elif mn.startswith("s_cmp") or mn in ("s_waitcnt", "s_barrier", "s_nop", "s_endpgm", "s_sleep", "s_setprio"):
                self.src = set().union(*R) if R else set()
            elif "saveexec" in mn:
                self.dst = R[0] | set(SPECIAL["exec"]); self.src = R[1] | set(SPECIAL["exec"])
            else:
                self.dst = R[0] if R else set(); self.src = set().union(*R[1:]) if len(R) > 1 else set()
        else:
            raise ValueError("cannot parse: " + text)

    def states(self):
        if self.kind in ("label", "dir", "none"): return 0
        if self.mn == "s_nop": return int(self.ops[0], 0) + 1
        return 1

def mfma_passes(i):
    return 8 if "32x32" in i.mn else 4

def need(p, c):
    n = 0
    pv = p.kind in ("valu", "trans")
    cv = c.kind in ("valu", "trans")
    vd = {r for r in p.dst if r[0] in "va"}
    sd = {r for r in p.dst if r[0] == "s"}
    if p.kind == "mfma":
        ps = mfma_passes(p)
        big = {4: 8, 8: 12}[ps]
        if c.kind == "mfma":
            R = [regs_of(o) for o in c.ops]
            if vd & (R[1] | R[2]): n = max(n, big)
            if vd & R[3]:
                if not (R[3] == vd and mfma_passes(c) == ps): n = max(n, {4: 6, 8: 10}[ps])
            elif vd & R[0]: n = max(n, big)
        elif cv or c.kind in ("vmem", "ds"):
            if vd & (c.src | c.dst): n = max(n, big)
        srcC = regs_of(p.ops[3])
        if cv and (srcC & c.dst): n = max(n, {4: 3, 8: 7}[ps])
    if pv:
        if c.kind == "mfma" and (vd & c.src): n = max(n, 2)
        if p.kind == "trans" and c.kind == "valu" and (vd & c.src): n = max(n, 1)
        if p.kind == "trans" and c.kind in ("vmem", "ds") and (vd & c.src): n = max(n, 1)
        if cv and c.mn.endswith("_dpp") and (vd & c.src): n = max(n, 2)
        if cv and c.mn.startswith("v_permlane") and (vd & c.src): n = max(n, 2)
        if cv and (c.mn.startswith("v_readlane") or c.mn.startswith("v_readfirstlane")) and (vd & c.src): n = max(n, 1)
        if sd:
            if c.kind == "vmem" and (sd & c.src): n = max(n, 5)
            if cv and (sd & c.src):
                n = max(n, 4 if c.mn.startswith(("v_readlane", "v_writelane")) else 2)
            if c.kind in ("salu", "smem", "branch") and (sd & c.src): n = max(n, 3)
            ex = sd & {"s126", "s127"}
            if ex and c.kind == "mfma": n = max(n, 4)
            if ex and cv and c.mn.endswith("_dpp"): n = max(n, 5)
            if ex and cv and c.mn.startswith(("v_readlane", "v_readfirstlane", "v_permlane")): n = max(n, 4)
        if "s106" in sd and c.kind == "branch" and "vcc" in c.mn: n = max(n, 5)
    if p.kind == "salu" and "m0" in p.dst and c.kind == "vmem" and "m0" in c.src: n = max(n, 1)
    if p.kind == "vmem" and "store" in p.mn and ("x4" in p.mn or "x3" in p.mn):
        data = regs_of(p.ops[0]) if p.mn.startswith("buffer") else regs_of(p.ops[1])
        if (cv or c.kind in ("mfma", "ds", "vmem")) and (data & c.dst): n = max(n, 2)
    return n

MAXW = 20

class Asm:
    def __init__(self):
        self.lines = []
    def __call__(self, text):
        for l in text.split("\n"):
            if l.strip(): self.lines.append(l.rstrip() if l.strip().endswith(":") or l.lstrip().startswith(".") else "  " + l.strip())
    def ext(self, lst):
        for l in lst: self(l)

    def finalize(self, verbose=False):
        ins = [Inst(l) for l in self.lines]
        added = 0
        def cfg():
            labels = {i.label: k for k, i in enumerate(ins) if i.label}
            preds = {}
            for k, i in enumerate(ins):
                if i.kind == "branch" and i.target in labels:
                    preds.setdefault(labels[i.target], []).append(k)
            return preds
        preds = cfg()
        def falls(k):
            return ins[k].mn not in ("s_branch", "s_endpgm")
        k = 0
        while k < len(ins):
            c = ins[k]
            if c.kind in ("label", "dir", "none"):
                k += 1; continue
            short = 0
            stack = [(k, 0)]; seen = set()
            while stack:
                pos, dist = stack.pop()
                prev = []
                if pos > 0 and falls(pos - 1): prev.append(pos - 1)
                if ins[pos].kind == "label": prev += preds.get(pos, [])
                for q in prev:
                    p = ins[q]
                    if p.kind not in ("label", "dir", "none"):
                        nd = need(p, c)
                        if nd > dist: short = max(short, nd - dist)
                    d2 = dist + p.states()
                    if d2 < MAXW and (q, d2) not in seen:
                        seen.add((q, d2)); stack.append((q, d2))
            if short > 0:
                nops = []
                while short > 0:
                    n = min(short, 16); nops.append(Inst(f"  s_nop {n-1}")); short -= n
                ins[k:k] = nops
                added += len(nops)
                k += len(nops)
                preds = cfg()
            k += 1
        if verbose: print("nops inserted:", added)
        self.ins = ins
        return "\n".join(i.text for i in ins) + "\n"

def check_waits(ins, trips=None, verbose=True, take=()):
    trips = dict(trips or {})
    labels = {i.label: k for k, i in enumerate(ins) if i.label}
    vm, lg = [], []
    errs = []
    count = {}
    pc = 0; steps = 0
    smem_out = False
    while pc < len(ins) and steps < 2000000:
        steps += 1
        i = ins[pc]
        if i.kind in ("label", "dir", "none"):
            pc += 1; continue
        if i.mn == "s_endpgm": break
        touched = i.src | i.dst
        for name, q in (("vm", vm), ("lgkm", lg)):
            for (d, tag, txt) in q:
                if d & touched and not (i.kind in ("vmem",) and name == "vm" and not (d & i.src)):
                    errs.append(f"{name} hazard: [{i.text.strip()}] touches in-flight dst of [{txt.strip()}]")
        if "use" in i.tags:
            for u in i.tags["use"].split(","):
                for (d, tag, txt) in vm + lg:
                    if tag and u in tag.split(","):
                        errs.append(f"tag hazard: [{i.text.strip()}] uses {u} still in flight from [{txt.strip()}]")
        if i.mn == "s_waitcnt":
            t = i.text.split(";")[0]
            m = re.search(r"vmcnt\((\d+)\)", t)
            if m:
                n = int(m.group(1))
                while len(vm) > n: vm.pop(0)
            m = re.search(r"lgkmcnt\((\d+)\)", t)
            if m:
                n = int(m.group(1))
                if any(x[1] == "__smem" for x in lg) and n != 0:
                    errs.append("counted lgkmcnt with SMEM in flight: " + i.text)
                while len(lg) > n: lg.pop(0)
        elif i.kind == "vmem" and i.mn not in ("buffer_wbl2", "buffer_inv"):
            vm.append((set(i.dst), i.tags.get("def"), i.text))
            if len(vm) > 63: errs.append("more than 63 vmem ops in flight at " + i.text)
        elif i.kind == "ds":
            lg.append((set(i.dst), i.tags.get("def"), i.text))
        elif i.kind == "smem":
            lg.append((set(i.dst), "__smem", i.text))
        if i.kind == "branch":
            tgt = labels[i.target]
            if i.mn == "s_branch":
                pc = tgt; continue
            if tgt <= pc:
                c = count.get(pc, 0)
                if c < trips.get(i.target, 1):
                    count[pc] = c + 1; pc = tgt; continue
                count[pc] = 0
            elif i.tags.get("take") == "1" or i.target in take:
                pc = tgt; continue
        pc += 1
    seen = set(); out = []
    for e in errs:
        if e not in seen: seen.add(e); out.append(e)
    if verbose:
        for e in out[:30]: print("WAITCHECK:", e)
    return out
```

```python
from asmlib import Asm, check_waits
from model import (WS_H, WS_G, WS_YT, WS_ZT, WS_WT, WS_TB, TB_C64, TB_S64, TB_N64, TB_C32, TB_S32, TB_N32,
                   TB_TW1, TB_TW2, TB_SIZE)

WS_BYTES = 0x10000000

def srd(a, sd, sbase, nbytes):
    a(f"s_mov_b32 s{sd}, s{sbase}")
    a(f"s_and_b32 s{sd+1}, s{sbase+1}, 0xffff")
    a(f"s_mov_b32 s{sd+2}, {nbytes}")
    a(f"s_mov_b32 s{sd+3}, 0x20000")

def descriptor(name, vgpr, sgpr=102, accum=None):
    return f""".p2align 6
.amdhsa_kernel {name}
  .amdhsa_next_free_vgpr {vgpr}
  .amdhsa_next_free_sgpr {sgpr}
  .amdhsa_accum_offset {accum or min(256, (vgpr + 3) // 4 * 4)}
  .amdhsa_group_segment_fixed_size 0
  .amdhsa_kernarg_size 88
  .amdhsa_user_sgpr_count 2
  .amdhsa_user_sgpr_kernarg_segment_ptr 1
  .amdhsa_system_sgpr_workgroup_id_x 1
  .amdhsa_float_denorm_mode_32 3
.end_amdhsa_kernel
"""

def header(name):
    return f".globl {name}\n.p2align 8\n.type {name},@function\n{name}:\n"

def vr(base, n=1):
    return f"v{base}" if n == 1 else f"v[{base}:{base+n-1}]"

def f32(x):
    import struct
    return "0x%08x" % struct.unpack("<I", struct.pack("<f", x))[0]
```

```python
from common import *

ACC, BR, AR = 64, 128, 32

def lane_dma_offsets(a, vdst, vdst2, pitch, vl="v1"):
    a(f"""
v_lshrrev_b32 v8, 3, {vl}
v_and_b32 v9, 7, {vl}
v_bfe_u32 v10, {vl}, 4, 1
v_lshlrev_b32 v10, 2, v10
v_xor_b32 v9, v9, v10
v_lshlrev_b32 v9, 4, v9
s_mov_b32 s60, {pitch}
v_mul_lo_u32 v8, v8, s60
v_add_u32 v{vdst}, v8, v9
v_add_u32 v{vdst2}, {8*pitch-1024}, v{vdst}
""")

def tr_addr(a, vdst, row_expr_h, vl="v1"):
    a(f"""
v_lshrrev_b32 v8, 5, {vl}
v_mul_u32_u24 v8, {row_expr_h*128}, v8
v_bfe_u32 v9, {vl}, 2, 2
v_lshlrev_b32 v9, 7, v9
v_add_u32 v8, v8, v9
v_bfe_u32 v9, {vl}, 4, 1
v_lshlrev_b32 v9, 5, v9
v_add_u32 v8, v8, v9
v_and_b32 v9, 3, {vl}
v_lshlrev_b32 v9, 3, v9
v_add_u32 v8, v8, v9
v_bfe_u32 v9, {vl}, 3, 1
v_lshlrev_b32 v9, 6, v9
v_xor_b32 v{vdst}, v8, v9
""")
```

```python
from common import *

XN_OFF, HS_OFF, HS_PITCH = 0, 8192, 1088
K1_LDS = HS_OFF + 8 * HS_PITCH

def gen_k1(name="k1_kernel"):
    a = Asm()
    P = name
    a(f"""
s_load_dwordx16 s[4:19], s[0:1], 0
s_load_dwordx2 s[20:21], s[0:1], 80
s_cmp_ge_u32 s2, 512
s_cbranch_scc1 {P}_done
v_lshrrev_b32 v2, 6, v0
v_and_b32 v1, 63, v0
v_readfirstlane_b32 s3, v2
s_cmp_ge_u32 s2, 256
s_cbranch_scc1 {P}_helper
""")
    a(f"""
s_and_b32 s22, s2, 7
s_lshl_b32 s22, s22, 5
s_lshr_b32 s23, s2, 3
s_add_u32 s22, s22, s23
s_lshl_b32 s23, s22, 3
s_lshl_b32 s44, s3, 1
s_add_u32 s44, s44, s23
s_lshl_b32 s44, s44, 10
v_lshlrev_b32 v3, 4, v1
s_waitcnt lgkmcnt(0)
""")
    srd(a, 24, 4, 2048 * 1024)
    srd(a, 28, 20, WS_BYTES)
    a("""
buffer_load_dwordx4 v[8:11], v3, s[24:27], s44 offen
buffer_load_dwordx4 v[12:15], v3, s[24:27], s44 offen offset:1024
""")
    C, NS, A2, TC, TS = 16, 20, 24, 28, 32
    VO, MK = 36, 38
    t0 = 40
    a(f"""
s_and_b32 s45, s3, 1
s_lshr_b32 s46, s3, 1
v_and_b32 v4, 15, v1
v_lshrrev_b32 v5, 4, v1
s_lshl_b32 s47, s45, 4
v_add_u32 v6, s47, v4
v_cvt_f32_u32 v40, v6
v_mul_f32 v40, {f32(1/32)}, v40
v_lshlrev_b32 v41, 2, v5
v_cvt_f32_u32 v41, v41
v_mul_f32 v42, v41, v40
v_mul_f32 v43, {f32(16.0)}, v40
v_add_f32 v43, v43, v42
""")
    for j in range(8):
        src = 42 if j < 4 else 43
        if j % 4 == 0: a(f"v_mov_b32 v{44+j}, v{src}")
        else: a(f"v_add_f32 v{44+j}, v{44+j-1}, v40")
    for j in range(8): a(f"v_cos_f32 v{52+j}, v{44+j}")
    for j in range(8): a(f"v_sin_f32 v{44+j}, v{44+j}")
    for j in range(4): a(f"v_cvt_pk_bf16_f32 v{C+j}, v{52+2*j}, v{53+2*j}")
    for j in range(4): a(f"v_cvt_pk_bf16_f32 v{NS+j}, -v{44+2*j}, -v{45+2*j}")
    a(f"""
v_lshrrev_b32 v44, 1, v4
v_cvt_f32_u32 v44, v44
v_mul_f32 v44, {f32(1/16)}, v44
v_mul_f32 v45, v41, v44
v_add_f32 v46, v45, v44
v_add_f32 v47, v46, v44
v_add_f32 v48, v47, v44
v_and_b32 v49, 1, v4
v_cmp_eq_u32 vcc, 1, v49
""")
    for j in range(4): a(f"v_cos_f32 v{52+j}, v{45+j}")
    for j in range(4): a(f"v_sin_f32 v{56+j}, v{45+j}")
    for j in range(4):
        a(f"v_sub_f32 v{60}, 0, v{56+j}")
        a(f"v_cndmask_b32 v{44+j}, v{52+j}, v60, vcc")
        a(f"v_cndmask_b32 v{48+j}, v{56+j}, v{52+j}, vcc")
    for j in range(4): a(f"v_cvt_pk_bf16_f32 v{A2+j}, v{44+2*j}, v{45+2*j}")
    a(f"""
v_cmp_eq_u32 vcc, 0, v6
v_mov_b32 v44, 0x100
v_cndmask_b32 v44, v6, v44, vcc
v_cvt_f32_u32 v44, v44
v_mul_f32 v44, {f32(1/512)}, v44
v_mul_f32 v45, v41, v44
v_add_f32 v46, v45, v44
v_add_f32 v47, v46, v44
v_add_f32 v48, v47, v44
""")
    for i in range(4): a(f"v_cos_f32 v{TC+i}, v{45+i}")
    for i in range(4): a(f"v_sin_f32 v{TS+i}, v{45+i}")
    a("s_mov_b64 s[48:49], vcc")
    for ip in range(2):
        a(f"""
v_lshlrev_b32 v44, 1, v5
v_add_u32 v44, {ip}, v44
v_lshlrev_b32 v45, 5, v44
v_add_u32 v46, v6, v45
v_sub_u32 v47, 0x100, v45
v_cmp_lt_u32 vcc, 0, v44
s_and_b64 vcc, vcc, s[48:49]
v_cndmask_b32 v46, v46, v47, vcc
v_lshlrev_b32 v{VO+ip}, 13, v46
v_mov_b32 v47, 0x80008000
v_cndmask_b32 v{MK+ip}, 0, v47, vcc
""")
    a(f"""
s_lshl_b32 s50, s46, 2
s_add_u32 s50, s50, s23
s_lshl_b32 s50, s50, 1
s_add_u32 s50, s50, {WS_YT}
s_add_u32 s51, s50, 4096
s_lshr_b32 s52, s22, 1
s_lshl_b32 s52, s52, 11
s_and_b32 s53, s22, 1
s_lshl_b32 s53, s53, 9
s_add_u32 s52, s52, s53
s_lshl_b32 s53, s3, 19
s_add_u32 s52, s52, s53
s_add_u32 s52, s52, {WS_H}
s_add_u32 s53, s52, 262144
""")
    a(f"""
s_lshl_b32 s54, s3, 11
v_add_u32 v2, s54, v3
s_mul_i32 s54, s3, {2*HS_PITCH}
s_add_u32 s54, s54, {HS_OFF}
v_add_u32 v7, s54, v3
""")
    a(f"""
v_bfe_u32 v44, v1, 2, 2
v_mul_u32_u24 v40, {HS_PITCH}, v44
v_lshrrev_b32 v44, 5, v1
v_lshlrev_b32 v44, 6, v44
v_add_u32 v40, v40, v44
v_and_b32 v44, 1, v1
v_lshlrev_b32 v44, 5, v44
v_add_u32 v40, v40, v44
v_bfe_u32 v44, v1, 4, 1
v_lshlrev_b32 v44, 4, v44
v_add_u32 v40, v40, v44
v_bfe_u32 v44, v1, 1, 1
v_lshlrev_b32 v44, 3, v44
v_add_u32 v40, v40, v44
s_lshl_b32 s54, s3, 8
s_add_u32 s54, s54, {HS_OFF}
v_add_u32 v40, s54, v40
v_lshrrev_b32 v44, 5, v1
v_lshlrev_b32 v44, 10, v44
v_and_b32 v45, 31, v1
v_lshlrev_b32 v45, 4, v45
v_add_u32 v41, v44, v45
s_lshl_b32 s54, s46, 12
v_lshlrev_b32 v42, 3, v1
v_add_u32 v42, s54, v42
v_mov_b32 v43, {f32(1/512)}
""")
    X = [64, 72]
    a("s_waitcnt vmcnt(0)")
    for r in range(2):
        for k in range(4):
            a(f"v_lshlrev_b32 v{X[r]+2*k}, 16, v{8+4*r+k}")
            a(f"v_and_b32 v{X[r]+2*k+1}, 0xffff0000, v{8+4*r+k}")
    SUM = [80, 84]; SQ = [82, 86]
    for r in range(2):
        a(f"v_pk_add_f32 v[{SUM[r]}:{SUM[r]+1}], v[{X[r]}:{X[r]+1}], v[{X[r]+2}:{X[r]+3}]")
        a(f"v_pk_mul_f32 v[{SQ[r]}:{SQ[r]+1}], v[{X[r]}:{X[r]+1}], v[{X[r]}:{X[r]+1}]")
    for k in (1, 2, 3):
        for r in range(2):
            if k > 1: a(f"v_pk_add_f32 v[{SUM[r]}:{SUM[r]+1}], v[{SUM[r]}:{SUM[r]+1}], v[{X[r]+2*k}:{X[r]+2*k+1}]")
            a(f"v_pk_fma_f32 v[{SQ[r]}:{SQ[r]+1}], v[{X[r]+2*k}:{X[r]+2*k+1}], v[{X[r]+2*k}:{X[r]+2*k+1}], v[{SQ[r]}:{SQ[r]+1}]")
    red = []
    for r in range(2):
        a(f"v_add_f32 v{SUM[r]}, v{SUM[r]}, v{SUM[r]+1}")
        a(f"v_add_f32 v{SQ[r]}, v{SQ[r]}, v{SQ[r]+1}")
        red += [SUM[r], SQ[r]]
    for step in ("row_shr:1", "row_shr:2", "row_shr:4", "row_shr:8"):
        for v in red: a(f"v_add_f32_dpp v{v}, v{v}, v{v} {step} row_mask:0xf bank_mask:0xf")
    for v in red: a(f"v_add_f32_dpp v{v}, v{v}, v{v} row_bcast:15 row_mask:0xa bank_mask:0xf")
    for v in red: a(f"v_add_f32_dpp v{v}, v{v}, v{v} row_bcast:31 row_mask:0xc bank_mask:0xf")
    for k, v in enumerate(red): a(f"v_readlane_b32 s{56+k}, v{v}, 63")
    for r in range(2):
        b = 88 + 8 * r
        a(f"v_mul_f32 v{b}, s{56+2*r}, v43")
        a(f"v_mul_f32 v{b+1}, s{57+2*r}, v43")
    for r in range(2):
        b = 88 + 8 * r
        a(f"v_fma_f32 v{b+1}, -v{b}, v{b}, v{b+1}")
        a(f"v_max_f32 v{b+1}, 0, v{b+1}")
        a(f"v_add_f32 v{b+2}, {f32(1e-5)}, v{b+1}")
    for r in range(2):
        b = 88 + 8 * r
        a(f"v_rsq_f32 v{b+4}, v{b+2}")
    for r in range(2):
        b = 88 + 8 * r
        a(f"v_mul_f32 v{b+2}, v{b+4}, v{b+4}")
        a(f"v_mul_f32 v{b+2}, v{b+2}, v{b+1}")
        a(f"v_add_f32 v{b+2}, {f32(1e-5)}, v{b+2}")
    for r in range(2):
        b = 88 + 8 * r
        a(f"v_rsq_f32 v{b+3}, v{b+2}")
    for r in range(2):
        b = 88 + 8 * r
        a(f"v_mul_f32 v{b+5}, v{b+4}, v{b+3}")
        a(f"v_mul_f32 v{b+6}, -v{b}, v{b+4}")
        a(f"v_mul_f32 v{b+7}, -v{b}, v{b+5}")
    for r in range(2):
        b = 88 + 8 * r
        XN, HH = 104 + 16 * r, 112 + 16 * r
        for k in range(4):
            a(f"v_pk_fma_f32 v[{XN+2*k}:{XN+2*k+1}], v[{X[r]+2*k}:{X[r]+2*k+1}], v[{b+4}:{b+5}], v[{b+6}:{b+7}] op_sel:[0,0,0] op_sel_hi:[1,0,0]")
        for k in range(4):
            a(f"v_pk_fma_f32 v[{HH+2*k}:{HH+2*k+1}], v[{X[r]+2*k}:{X[r]+2*k+1}], v[{b+4}:{b+5}], v[{b+6}:{b+7}] op_sel:[0,1,1] op_sel_hi:[1,1,1]")
        for k in range(4): a(f"v_cvt_pk_bf16_f32 v{8+4*r+k}, v{XN+2*k}, v{XN+2*k+1}")
        a(f"ds_write_b128 v2, v[{8+4*r}:{11+4*r}] offset:{XN_OFF+1024*r}")
        for k in range(4): a(f"v_cvt_pk_bf16_f32 v{136+4*r+k}, v{HH+2*k}, v{HH+2*k+1}")
        a(f"ds_write_b128 v7, v[{136+4*r}:{139+4*r}] offset:{HS_PITCH*r}")
    a("s_waitcnt lgkmcnt(0)")
    a("s_barrier")
    for rho in range(4):
        for rd in range(2):
            a(f"ds_read_b64_tr_b16 v[{64+4*rho+2*rd}:{65+4*rho+2*rd}], v42 offset:{XN_OFF+1024*rho+512*rd}")
    for ii in range(2):
        for rd in range(2):
            a(f"ds_read_b64_tr_b16 v[{144+4*ii+2*rd}:{145+4*ii+2*rd}], v40 offset:{128*ii+4*HS_PITCH*rd}")
    TR, TI = 80, 96
    a("s_waitcnt lgkmcnt(4)")
    for rho in range(4):
        a(f"v_mfma_f32_16x16x32_bf16 v[{TR+4*rho}:{TR+4*rho+3}], v[{64+4*rho}:{67+4*rho}], v[{C}:{C+3}], 0")
        a(f"v_mfma_f32_16x16x32_bf16 v[{TI+4*rho}:{TI+4*rho+3}], v[{64+4*rho}:{67+4*rho}], v[{NS}:{NS+3}], 0")
    a("s_waitcnt lgkmcnt(0)")
    a("buffer_store_dwordx4 v[144:147], v41, s[28:31], s52 offen")
    a("buffer_store_dwordx4 v[148:151], v41, s[28:31], s53 offen")
    PR, PI, TT = 112, 116, 120
    BB = 64
    XO = 124
    for rho in range(4):
        tr, ti = TR + 4 * rho, TI + 4 * rho
        for p in range(2):
            o = 2 * p
            a(f"v_pk_mul_f32 v[{TT}:{TT+1}], v[{ti+o}:{ti+o+1}], v[{TS+o}:{TS+o+1}]")
            a(f"v_pk_mul_f32 v[{TT+2}:{TT+3}], v[{tr+o}:{tr+o+1}], v[{TS+o}:{TS+o+1}]")
            a(f"v_pk_fma_f32 v[{PR+o}:{PR+o+1}], v[{tr+o}:{tr+o+1}], v[{TC+o}:{TC+o+1}], v[{TT}:{TT+1}]")
            a(f"v_pk_fma_f32 v[{PI+o}:{PI+o+1}], v[{ti+o}:{ti+o+1}], v[{TC+o}:{TC+o+1}], v[{TT+2}:{TT+3}] neg_lo:[0,0,1] neg_hi:[0,0,1]")
        b = BB + 4 * rho
        a(f"v_cvt_pk_bf16_f32 v{b}, v{PR}, v{PR+1}")
        a(f"v_cvt_pk_bf16_f32 v{b+1}, v{PR+2}, v{PR+3}")
        a(f"v_cvt_pk_bf16_f32 v{b+2}, v{PI}, v{PI+1}")
        a(f"v_cvt_pk_bf16_f32 v{b+3}, v{PI+2}, v{PI+3}")
        a(f"v_mfma_f32_16x16x32_bf16 v[{XO+4*rho}:{XO+4*rho+3}], v[{A2}:{A2+3}], v[{b}:{b+3}], 0")
    for i in range(4):
        o = 144 + 2 * i
        a(f"v_cvt_pk_bf16_f32 v{o}, v{XO+i}, v{XO+4+i}")
        a(f"v_cvt_pk_bf16_f32 v{o+1}, v{XO+8+i}, v{XO+12+i}")
        if i & 1:
            a(f"v_xor_b32 v{o}, v{MK+(i>>1)}, v{o}")
            a(f"v_xor_b32 v{o+1}, v{MK+(i>>1)}, v{o+1}")
        a(f"buffer_store_dwordx2 v[{o}:{o+1}], v{VO+(i>>1)}, s[28:31], s{50+(i&1)} offen")
    a("s_endpgm")

    a(f"{P}_helper:")
    a(f"""
s_sub_u32 s22, s2, 256
s_and_b32 s23, s22, 7
s_lshr_b32 s44, s22, 3
s_and_b32 s45, s44, 3
s_lshr_b32 s44, s44, 2
s_lshl_b32 s44, s44, 3
s_add_u32 s44, s44, s23
s_and_b32 s46, s44, 1
s_bfe_u32 s47, s44, 0x10001
s_bfe_u32 s48, s44, 0x20002
s_lshr_b32 s49, s44, 4
s_lshl_b32 s49, s49, 3
s_lshl_b32 s45, s45, 1
s_add_u32 s49, s49, s45
s_lshl_b32 s50, s46, 5
s_add_u32 s50, s50, s49
s_lshl_b32 s51, s47, 10
s_add_u32 s50, s50, s51
s_lshl_b32 s51, s48, 8
s_add_u32 s50, s50, s51
s_mul_i32 s50, s50, 514
v_mov_b32 v4, 0x100
v_cmp_eq_u32 vcc, 0, v0
v_cndmask_b32 v4, v0, v4, vcc
v_lshlrev_b32 v4, 1, v4
s_waitcnt lgkmcnt(0)
""")
    srd(a, 32, 6, 2048 * 514)
    srd(a, 36, 8, 2048 * 514)
    srd(a, 28, 20, WS_BYTES)
    for ii in range(4):
        if ii: a(f"s_add_u32 s50, s50, {64*514}")
        for nn in range(2):
            a(f"buffer_load_ushort v{8+8*nn+2*ii}, v4, s[32:35], s50 offen offset:{514*nn}")
            a(f"buffer_load_ushort v{9+8*nn+2*ii}, v4, s[36:39], s50 offen offset:{514*nn}")
    a(f"""
s_lshl_b32 s51, s46, 12
s_lshl_b32 s52, s48, 10
s_add_u32 s51, s51, s52
s_lshl_b32 s52, s47, 5
s_add_u32 s52, s52, s49
s_lshl_b32 s52, s52, 4
s_add_u32 s51, s51, s52
s_add_u32 s51, s51, {WS_WT}
v_lshlrev_b32 v5, 13, v0
""")
    a(f"""
s_cmp_ge_u32 s3, 2
s_cbranch_scc1 {P}_tabs
s_lshr_b32 s52, s22, 5
s_and_b32 s53, s22, 31
v_and_b32 v24, 31, v1
v_lshrrev_b32 v25, 5, v1
v_bfe_u32 v26, v24, 2, 1
v_lshlrev_b32 v26, 4, v26
v_lshrrev_b32 v27, 3, v24
v_lshlrev_b32 v27, 2, v27
v_add_u32 v26, v26, v27
v_and_b32 v27, 3, v24
v_add_u32 v26, v26, v27
s_lshl_b32 s54, s52, 6
s_lshl_b32 s55, s3, 5
s_add_u32 s54, s54, s55
v_add_u32 v26, s54, v26
s_lshl_b32 s55, s53, 3
v_lshlrev_b32 v27, 1, v25
v_add_u32 v27, s55, v27
v_mov_b32 v40, 0x100
""")
    for jj, dc in enumerate((0, 1, 4, 5)):
        a(f"""
v_add_u32 v28, {dc}, v27
v_cmp_eq_u32 vcc, 0, v28
v_cndmask_b32 v29, v28, v40, vcc
v_cndmask_b32 v30, 2.0, 1.0, vcc
v_mul_u32_u24 v29, v29, v26
v_and_b32 v29, 0x1ff, v29
v_cvt_f32_u32 v29, v29
v_mul_f32 v29, {f32(1/512)}, v29
v_cos_f32 v31, v29
v_sin_f32 v32, v29
v_mul_f32 v31, v31, v30
v_mul_f32 v32, v32, v30
v_cvt_pk_bf16_f32 v{36+jj}, v31, -v32
""")
    a(f"""
s_mul_i32 s54, s52, 144
s_add_u32 s54, s54, s53
s_add_u32 s54, s54, 112
s_lshl_b32 s54, s54, 1
s_add_u32 s54, s54, s3
s_lshl_b32 s54, s54, 10
s_add_u32 s54, s54, {WS_G}
v_lshlrev_b32 v33, 4, v1
buffer_store_dwordx4 v[36:39], v33, s[28:31], s54 offen
s_branch {P}_wfin
""")
    a(f"{P}_tabs:")
    a(f"""
v_and_b32 v24, 31, v1
v_lshrrev_b32 v25, 5, v1
v_bfe_u32 v26, v24, 2, 1
v_lshlrev_b32 v26, 4, v26
v_lshrrev_b32 v27, 3, v24
v_lshlrev_b32 v27, 2, v27
v_add_u32 v26, v26, v27
v_and_b32 v27, 3, v24
v_add_u32 v26, v26, v27
v_lshlrev_b32 v33, 4, v1
s_cmp_ge_u32 s22, 16
s_cbranch_scc1 {P}_tab64
s_lshr_b32 s52, s22, 3
s_and_b32 s53, s22, 7
s_lshl_b32 s54, s22, 10
s_cmp_eq_u32 s3, 3
s_cbranch_scc1 {P}_tw2
""")
    a(f"""
s_lshl_b32 s55, s52, 5
v_add_u32 v28, s55, v24
v_lshlrev_b32 v29, 4, v25
s_lshl_b32 s55, s53, 1
v_add_u32 v29, s55, v29
v_add_u32 v30, 1, v29
v_mul_u32_u24 v29, v29, v28
v_mul_u32_u24 v30, v30, v28
v_mov_b32 v31, 1.0
s_add_u32 s54, s54, {WS_TB+TB_TW1}
s_branch {P}_twfin
""")
    a(f"{P}_tw2:")
    a(f"""
s_lshl_b32 s55, s52, 5
s_lshr_b32 s56, s53, 1
s_lshl_b32 s56, s56, 3
s_add_u32 s55, s55, s56
s_and_b32 s56, s53, 1
s_lshl_b32 s56, s56, 1
s_add_u32 s55, s55, s56
v_lshlrev_b32 v29, 2, v25
v_add_u32 v29, s55, v29
v_add_u32 v30, 1, v29
v_mul_u32_u24 v29, v29, v26
v_mul_u32_u24 v30, v30, v26
v_mov_b32 v31, {f32(2.0**-20)}
s_add_u32 s54, s54, {WS_TB+TB_TW2}
""")
    a(f"{P}_twfin:")
    a(f"""
v_cvt_f32_u32 v29, v29
v_cvt_f32_u32 v30, v30
v_mul_f32 v29, {f32(1/2048)}, v29
v_mul_f32 v30, {f32(1/2048)}, v30
v_cos_f32 v36, v29
v_cos_f32 v37, v30
v_sin_f32 v38, v29
v_sin_f32 v39, v30
v_mul_f32 v36, v36, v31
v_mul_f32 v37, v37, v31
v_mul_f32 v38, v38, v31
v_mul_f32 v39, v39, v31
buffer_store_dwordx4 v[36:39], v33, s[28:31], s54 offen
s_branch {P}_wfin
""")
    a(f"{P}_tab64:")
    a(f"""
s_cmp_eq_u32 s3, 3
s_cbranch_scc1 {P}_wfin
s_cmp_ge_u32 s22, 26
s_cbranch_scc1 {P}_wfin
s_cmp_ge_u32 s22, 24
s_cbranch_scc1 {P}_tab32
s_sub_u32 s52, s22, 16
s_lshr_b32 s53, s52, 1
s_and_b32 s55, s52, 1
s_lshl_b32 s55, s55, 5
v_add_u32 v28, s55, v24
s_lshl_b32 s55, s53, 4
v_lshlrev_b32 v29, 2, v25
v_add_u32 v29, s55, v29
s_lshl_b32 s54, s52, 10
s_add_u32 s54, s54, {WS_TB+TB_C64}
s_mov_b32 s56, 8192
v_mov_b32 v31, {f32(1/64)}
v_mov_b32 v34, 4
s_branch {P}_tabfin
""")
    a(f"{P}_tab32:")
    a(f"""
s_sub_u32 s52, s22, 24
v_mov_b32 v28, v26
s_lshl_b32 s55, s52, 3
v_lshlrev_b32 v29, 4, v25
v_add_u32 v29, s55, v29
s_lshl_b32 s54, s52, 10
s_add_u32 s54, s54, {WS_TB+TB_C32}
s_mov_b32 s56, 2048
v_mov_b32 v31, {f32(1/32)}
v_mov_b32 v34, 0
""")
    a(f"{P}_tabfin:")
    a("v_cvt_f32_u32 v35, v28")
    a("v_mul_f32 v35, v35, v31")
    for j in range(8):
        a(f"v_add_u32 v30, {(j&3) + 4*(j>>2)}, v29")
        if j >= 4: a("v_add_u32 v30, v30, v34")
        a("v_cvt_f32_u32 v30, v30")
        a("v_mul_f32 v30, v30, v35")
        a("v_fract_f32 v30, v30")
        a(f"v_cos_f32 v{40+j}, v30")
        a(f"v_sin_f32 v{48+j}, v30")
    for j in range(4): a(f"v_cvt_pk_bf16_f32 v{36+j}, v{40+2*j}, v{41+2*j}")
    a("buffer_store_dwordx4 v[36:39], v33, s[28:31], s54 offen")
    a("s_add_u32 s54, s54, s56")
    for j in range(4): a(f"v_cvt_pk_bf16_f32 v{56+j}, v{48+2*j}, v{49+2*j}")
    a("buffer_store_dwordx4 v[56:59], v33, s[28:31], s54 offen")
    a("s_add_u32 s54, s54, s56")
    for j in range(4): a(f"v_cvt_pk_bf16_f32 v{60+j}, -v{48+2*j}, -v{49+2*j}")
    a("buffer_store_dwordx4 v[60:63], v33, s[28:31], s54 offen")
    a(f"{P}_wfin:")
    a("s_waitcnt vmcnt(0)")
    for nn in range(2):
        for ii in range(4):
            a(f"v_lshl_or_b32 v{64+4*nn+ii}, v{9+8*nn+2*ii}, 16, v{8+8*nn+2*ii}")
        a(f"buffer_store_dwordx4 v[{64+4*nn}:{67+4*nn}], v5, s[28:31], s51 offen offset:{16*nn}")
    a(f"{P}_done:")
    a("s_endpgm")
    text = a.finalize()
    errs = check_waits(a.ins)
    for tk in ([f"{P}_helper"], [f"{P}_helper", f"{P}_tabs"], [f"{P}_helper", f"{P}_tabs", f"{P}_tw2"],
               [f"{P}_helper", f"{P}_tabs", f"{P}_tab64"], [f"{P}_helper", f"{P}_tabs", f"{P}_tab64", f"{P}_tab32"]):
        errs += check_waits(a.ins, take=tk)
    assert not errs
    return header(name) + text, descriptor(name, 152, 64)

if __name__ == "__main__":
    t, d = gen_k1()
    print(len(t.splitlines()))
```

```python
from common import *
from gemm import *

K2_LDS = 131072
DEPTH = 8
C1 = -2.0 * 0.7978845608028654 * 1.4426950408889634
C2 = C1 * 0.044715

def gemm1(a, P):
    a(f"""
s_cmp_ge_u32 s3, 4
s_cbranch_scc1 {P}_done
s_sub_u32 s23, s23, 4
s_and_b32 s44, s22, 1
s_lshl_b32 s44, s44, 2
s_and_b32 s45, s23, 3
s_add_u32 s44, s44, s45
s_lshr_b32 s45, s22, 1
s_mul_i32 s45, s45, 7
s_lshr_b32 s46, s23, 2
s_add_u32 s45, s45, s46
""")
    lane_dma_offsets(a, 2, 3, 3584)
    tr_addr(a, 5, 8)
    a(f"""
s_lshr_b32 s47, s3, 1
s_and_b32 s48, s3, 1
s_lshl_b32 s49, s47, 6
v_xor_b32 v5, s49, v5
s_lshl_b32 s50, s3, 14
v_add_u32 v5, s50, v5
v_xor_b32 v6, 64, v5
v_lshlrev_b32 v8, 4, v1
s_lshl_b32 s49, s48, 10
v_add_u32 v4, s49, v8
s_xor_b32 s49, s49, 1024
v_add_u32 v7, s49, v8
s_mul_i32 s51, s3, {512*3584}
s_lshl_b32 s52, s45, 7
s_add_u32 s51, s51, s52
s_lshl_b32 s52, s44, 18
s_lshl_b32 s53, s3, 16
s_add_u32 s52, s52, s53
s_add_u32 s52, s52, {WS_H}
s_waitcnt lgkmcnt(0)
""")
    srd(a, 24, 12, 2048 * 3584)
    srd(a, 28, 20, WS_BYTES)
    srd(a, 36, 20, WS_BYTES)
    srd(a, 32, 14, 1792 * 2)
    def issue(slot):
        a(f"s_add_u32 m0, s50, {slot*2048}")
        a(f"buffer_load_dwordx4 v2, s[24:27], s51 offen lds ; @def=w{slot}")
        a(f"buffer_load_dwordx4 v3, s[24:27], s51 offen offset:1024 lds ; @def=w{slot}")
        a(f"buffer_load_dwordx4 v[{BR+8*slot}:{BR+8*slot+3}], v4, s[36:39], s52 offen")
        a(f"buffer_load_dwordx4 v[{BR+8*slot+4}:{BR+8*slot+7}], v7, s[36:39], s52 offen")
        a(f"s_add_u32 s51, s51, {16*3584}")
        a(f"s_add_u32 s52, s52, 2048")
    def trreads(slot, p):
        for bf in range(2):
            for rd in range(2):
                d = AR + 8 * p + 4 * bf + 2 * rd
                a(f"ds_read_b64_tr_b16 v[{d}:{d+1}], v{5+bf} offset:{slot*2048+rd*512} ; @use=w{slot}")
    for s in range(DEPTH): issue(s)
    a(f"""
v_lshrrev_b32 v8, 5, v1
v_lshlrev_b32 v8, 3, v8
s_lshl_b32 s53, s45, 7
s_lshl_b32 s54, s47, 6
s_add_u32 s53, s53, s54
""")
    for g in range(4):
        a(f"buffer_load_dwordx2 v[{16+2*g}:{17+2*g}], v8, s[32:35], s53 offen offset:{16*g}")
    for i in range(64): a(f"v_mov_b32 v{ACC+i}, 0")
    a(f"s_waitcnt vmcnt({4*(DEPTH-1)+4})")
    trreads(0, 0)
    a("s_mov_b32 s55, 0")
    a(f"{P}_gloop:")
    a("s_cmp_eq_u32 s55, 3")
    a("s_cselect_b32 s26, 0, s26")
    a("s_cselect_b32 s38, 0, s38")
    for j in range(DEPTH):
        a(f"s_waitcnt vmcnt({4*(DEPTH-2)})")
        trreads((j + 1) % DEPTH, (j + 1) & 1)
        a("s_waitcnt lgkmcnt(4)")
        p = j & 1
        for bf in range(2):
            for bd in range(2):
                acc = ACC + 16 * (2 * bf + bd)
                A = AR + 8 * p + 4 * bf; B = BR + 8 * j + 4 * bd
                a(f"v_mfma_f32_32x32x16_bf16 v[{acc}:{acc+15}], v[{A}:{A+3}], v[{B}:{B+3}], v[{acc}:{acc+15}]")
        issue(j)
    a("s_add_u32 s55, s55, 1")
    a("s_cmp_lt_u32 s55, 4")
    a(f"s_cbranch_scc1 {P}_gloop")
    a(f"""
v_lshlrev_b32 v8, 4, v1
s_xor_b32 s53, s3, 1
s_mul_i32 s53, s53, 12288
v_add_u32 v9, s53, v8
s_xor_b32 s53, s3, 2
s_mul_i32 s53, s53, 12288
s_add_u32 s53, s53, 4096
v_add_u32 v10, s53, v8
s_xor_b32 s53, s3, 3
s_mul_i32 s53, s53, 12288
s_add_u32 s53, s53, 8192
v_add_u32 v11, s53, v8
s_mul_i32 s53, s3, 12288
v_add_u32 v12, s53, v8
s_waitcnt vmcnt(0) lgkmcnt(0)
s_barrier
""")
    for b in (1, 2, 3):
        for g in range(4):
            r = ACC + 16 * b + 4 * g
            a(f"ds_write_b128 v{8+b}, v[{r}:{r+3}] offset:{1024*g}")
    for g in range(4):
        for k in range(2):
            a(f"v_lshlrev_b32 v{32+4*g+2*k}, 16, v{16+2*g+k}")
            a(f"v_and_b32 v{33+4*g+2*k}, 0xffff0000, v{16+2*g+k}")
    a("s_waitcnt lgkmcnt(0)")
    a("s_barrier")
    for b in range(3):
        for g in range(4):
            r = 128 + 16 * b + 4 * g
            a(f"ds_read_b128 v[{r}:{r+3}], v12 offset:{4096*b+1024*g}")
    for k in range(8):
        a(f"v_pk_add_f32 v[{ACC+2*k}:{ACC+2*k+1}], v[{ACC+2*k}:{ACC+2*k+1}], v[{32+2*k}:{33+2*k}]")
    for b in range(3):
        a(f"s_waitcnt lgkmcnt({8-4*b})")
        for k in range(8):
            r = 128 + 16 * b + 2 * k
            a(f"v_pk_add_f32 v[{ACC+2*k}:{ACC+2*k+1}], v[{ACC+2*k}:{ACC+2*k+1}], v[{r}:{r+1}]")
    a(f"v_mov_b32 v14, {f32(C1)}")
    a(f"v_mov_b32 v15, {f32(C2)}")
    for i in range(16): a(f"v_mul_f32 v{128+i}, v{ACC+i}, v{ACC+i}")
    for i in range(16): a(f"v_fma_f32 v{128+i}, v{128+i}, v15, v14")
    for i in range(16): a(f"v_mul_f32 v{128+i}, v{128+i}, v{ACC+i}")
    for i in range(16): a(f"v_exp_f32 v{128+i}, v{128+i}")
    for i in range(16): a(f"v_add_f32 v{128+i}, 1.0, v{128+i}")
    for i in range(16): a(f"v_rcp_f32 v{128+i}, v{128+i}")
    for i in range(16): a(f"v_mul_f32 v{128+i}, v{128+i}, v{ACC+i}")
    for k in range(8): a(f"v_cvt_pk_bf16_f32 v{144+k}, v{128+2*k}, v{129+2*k}")
    a(f"""
s_mul_i32 s53, s44, 144
s_lshl_b32 s54, s45, 2
s_add_u32 s53, s53, s54
s_lshl_b32 s54, s47, 1
s_add_u32 s53, s53, s54
s_lshl_b32 s53, s53, 1
s_add_u32 s53, s53, s48
s_lshl_b32 s53, s53, 10
s_add_u32 s53, s53, {WS_G}
v_lshlrev_b32 v8, 4, v1
buffer_store_dwordx4 v[144:147], v8, s[28:31], s53 offen
buffer_store_dwordx4 v[148:151], v8, s[28:31], s53 offen offset:2048
s_endpgm
""")

YR, YI = 32, 48
PK = 32
AC = 64
KB = 128
WR = 152
TW = 184
TMP = 216
COLBASE = 65536

def cread(a, buf, offs):
    for k, o in enumerate(offs):
        r = KB + 12 * buf + 4 * k
        a(f"ds_read_b128 v[{r}:{r+3}], v2 offset:{o}")

def k64(u, T): return [TB_C64 + (2*u+T)*1024, TB_S64 + (2*u+T)*1024, TB_N64 + (2*u+T)*1024]
def k32(u): return [TB_C32 + u*1024, TB_S32 + u*1024, TB_N32 + u*1024]

def mf(a, d, x, y, first):
    a(f"v_mfma_f32_32x32x16_bf16 v[{d}:{d+15}], v[{x}:{x+3}], v[{y}:{y+3}], " + ("0" if first else f"v[{d}:{d+15}]"))

def twiddle(a, T, table, conj):
    for e in range(8):
        a(f"ds_read_b128 v[{TW+4*e}:{TW+4*e+3}], v2 offset:{table + (T*8+e)*1024}")
    re, im = AC + 32 * T, AC + 32 * T + 16
    for e in range(8):
        if e % 2 == 0: a(f"s_waitcnt lgkmcnt({6-e})")
        c, s = TW + 4 * e, TW + 4 * e + 2
        r, i = re + 2 * e, im + 2 * e
        t = TMP + 8 * (e & 1)
        a(f"v_pk_mul_f32 v[{t}:{t+1}], v[{i}:{i+1}], v[{s}:{s+1}]")
        a(f"v_pk_mul_f32 v[{t+2}:{t+3}], v[{r}:{r+1}], v[{s}:{s+1}]")
        n1 = " neg_lo:[0,0,1] neg_hi:[0,0,1]"
        a(f"v_pk_fma_f32 v[{t+4}:{t+5}], v[{r}:{r+1}], v[{c}:{c+1}], v[{t}:{t+1}]" + (n1 if conj else ""))
        a(f"v_pk_fma_f32 v[{t+6}:{t+7}], v[{i}:{i+1}], v[{c}:{c+1}], v[{t+2}:{t+3}]" + ("" if conj else n1))
        a(f"v_cvt_pk_bf16_f32 v{PK+16*T+e}, v{t+4}, v{t+5}")
        a(f"v_cvt_pk_bf16_f32 v{PK+16*T+8+e}, v{t+6}, v{t+7}")

def wmult(a, T):
    re, im = AC + 32 * T, AC + 32 * T + 16
    n1 = " neg_lo:[0,0,1] neg_hi:[0,0,1]"
    for e in range(8):
        w0, w1 = WR + 16 * T + 2 * e, WR + 16 * T + 2 * e + 1
        t = TMP + 12 * (e & 1)
        wr_, wi_ = t + 8, t + 10
        a(f"v_lshlrev_b32 v{wr_}, 16, v{w0}")
        a(f"v_lshlrev_b32 v{wr_+1}, 16, v{w1}")
        a(f"v_and_b32 v{wi_}, 0xffff0000, v{w0}")
        a(f"v_and_b32 v{wi_+1}, 0xffff0000, v{w1}")
        r, i = re + 2 * e, im + 2 * e
        a(f"v_pk_mul_f32 v[{t}:{t+1}], v[{i}:{i+1}], v[{wi_}:{wi_+1}]")
        a(f"v_pk_mul_f32 v[{t+2}:{t+3}], v[{r}:{r+1}], v[{wi_}:{wi_+1}]")
        a(f"v_pk_fma_f32 v[{t+4}:{t+5}], v[{r}:{r+1}], v[{wr_}:{wr_+1}], v[{t}:{t+1}]{n1}")
        a(f"v_pk_fma_f32 v[{t+6}:{t+7}], v[{i}:{i+1}], v[{wr_}:{wr_+1}], v[{t+2}:{t+3}]")
        a(f"v_cvt_pk_bf16_f32 v{PK+16*T+e}, v{t+4}, v{t+5}")
        a(f"v_cvt_pk_bf16_f32 v{PK+16*T+8+e}, v{t+6}, v{t+7}")

def fft(a, P):
    a(f"""
s_lshl_b32 s44, s22, 2
s_add_u32 s44, s44, s23
s_lshl_b32 s44, s44, 3
s_add_u32 s44, s44, s3
v_lshlrev_b32 v2, 4, v1
s_lshl_b32 s45, s44, 13
s_add_u32 s46, s45, {WS_YT}
s_add_u32 s47, s45, {WS_WT}
s_add_u32 s48, s45, {WS_ZT}
s_lshl_b32 s49, s3, 13
s_add_u32 s50, s49, {WS_TB}
s_add_u32 s51, s49, {COLBASE}
s_waitcnt lgkmcnt(0)
""")
    srd(a, 28, 20, WS_BYTES)
    for half in range(2):
        a(f"s_add_u32 m0, s51, {4096*half}")
        for k in range(4): a(f"buffer_load_dwordx4 v2, s[28:31], s46 offen offset:{1024*k} lds ; @def=col")
        a("s_add_u32 s46, s46, 4096")
    for half in range(2):
        a(f"s_add_u32 m0, s49, {4096*half}")
        for k in range(4): a(f"buffer_load_dwordx4 v2, s[28:31], s50 offen offset:{1024*k} lds ; @def=tab")
        a("s_add_u32 s50, s50, 4096")
    for k in range(8):
        if k == 4: a("s_add_u32 s47, s47, 4096")
        a(f"buffer_load_dwordx4 v[{WR+4*k}:{WR+4*k+3}], v2, s[28:31], s47 offen offset:{1024*(k&3)}")
    a(f"""
v_lshrrev_b32 v8, 5, v1
v_lshlrev_b32 v8, 8, v8
v_bfe_u32 v9, v1, 2, 2
v_lshlrev_b32 v9, 6, v9
v_add_u32 v8, v8, v9
v_and_b32 v9, 1, v1
v_lshlrev_b32 v9, 5, v9
v_add_u32 v8, v8, v9
v_bfe_u32 v9, v1, 4, 1
v_lshlrev_b32 v9, 4, v9
v_add_u32 v8, v8, v9
v_bfe_u32 v9, v1, 1, 1
v_lshlrev_b32 v9, 3, v9
v_add_u32 v8, v8, v9
v_add_u32 v3, s51, v8
v_and_b32 v8, 31, v1
v_lshlrev_b32 v8, 6, v8
v_lshrrev_b32 v9, 5, v1
v_lshlrev_b32 v9, 5, v9
v_add_u32 v4, v8, v9
s_waitcnt vmcnt(8)
s_barrier
""")
    for u in range(4):
        for part, base in ((0, YR), (1, YI)):
            for rd in range(2):
                d = base + 4 * u + 2 * rd
                a(f"ds_read_b64_tr_b16 v[{d}:{d+1}], v3 offset:{4096*part+1024*u+512*rd} ; @use=col")
    seq = [(T, u) for T in range(2) for u in range(4)]
    cread(a, 0, k64(0, 0))
    for n, (T, u) in enumerate(seq):
        if n + 1 < len(seq):
            T2, u2 = seq[n + 1]
            cread(a, (n + 1) & 1, k64(u2, T2)); a("s_waitcnt lgkmcnt(3)")
        else:
            a("s_waitcnt lgkmcnt(0)")
        K = KB + 12 * (n & 1); Cc, Ss, Nn = K, K + 4, K + 8
        re, im = AC + 32 * T, AC + 32 * T + 16
        yr, yi = YR + 4 * u, YI + 4 * u
        mf(a, re, yr, Cc, u == 0); mf(a, im, yi, Cc, u == 0)
        mf(a, re, yi, Ss, False); mf(a, im, yr, Nn, False)
    for T in range(2): twiddle(a, T, TB_TW1, False)
    cread(a, 0, k32(0)); cread(a, 1, k32(1))
    a("s_waitcnt lgkmcnt(0)")
    for T in range(2):
        re, im = AC + 32 * T, AC + 32 * T + 16
        for u in range(2):
            K = KB + 12 * u; Cc, Ss, Nn = K, K + 4, K + 8
            pr, pi = PK + 16 * T + 4 * u, PK + 16 * T + 8 + 4 * u
            mf(a, re, Cc, pr, u == 0); mf(a, im, Cc, pi, u == 0)
            mf(a, re, Ss, pi, False); mf(a, im, Nn, pr, False)
    a("s_waitcnt vmcnt(0)")
    for T in range(2): wmult(a, T)
    for T in range(2):
        re, im = AC + 32 * T, AC + 32 * T + 16
        for u in range(2):
            K = KB + 12 * u; Cc, Ss, Nn = K, K + 4, K + 8
            gr, gi = PK + 16 * T + 4 * u, PK + 16 * T + 8 + 4 * u
            mf(a, re, gr, Cc, u == 0); mf(a, im, gi, Cc, u == 0)
            mf(a, re, gi, Nn, False); mf(a, im, gr, Ss, False)
    for T in range(2): twiddle(a, T, TB_TW2, True)
    seq = [(T2, u) for T2 in range(2) for u in range(4)]
    cread(a, 0, k64(0, 0))
    for n, (T2, u) in enumerate(seq):
        if n + 1 < len(seq):
            Tn, un = seq[n + 1]
            cread(a, (n + 1) & 1, k64(un, Tn)); a("s_waitcnt lgkmcnt(3)")
        else:
            a("s_waitcnt lgkmcnt(0)")
        K = KB + 12 * (n & 1); Cc, Ss, Nn = K, K + 4, K + 8
        re, im = AC + 32 * T2, AC + 32 * T2 + 16
        T, up = u >> 1, u & 1
        rr, ri = PK + 16 * T + 4 * up, PK + 16 * T + 8 + 4 * up
        mf(a, re, rr, Cc, u == 0); mf(a, im, ri, Cc, u == 0)
        mf(a, re, ri, Nn, False); mf(a, im, rr, Ss, False)
    a("s_add_u32 s49, s48, 4096")
    n = 0
    for T2 in range(2):
        for part in range(2):
            src = AC + 32 * T2 + 16 * part
            o = TMP + 8 * (n & 3); n += 1
            for k in range(8): a(f"v_cvt_pk_bf16_f32 v{o+k}, v{src+2*k}, v{src+2*k+1}")
            so = 48 + part
            a(f"buffer_store_dwordx4 v[{o}:{o+3}], v4, s[28:31], s{so} offen offset:{2048*T2}")
            a(f"buffer_store_dwordx4 v[{o+4}:{o+7}], v4, s[28:31], s{so} offen offset:{2048*T2+16}")
    a("s_endpgm")

def gen_k2(name="k2_kernel"):
    a = Asm(); P = name
    a(f"""
s_load_dwordx16 s[4:19], s[0:1], 0
s_load_dwordx2 s[20:21], s[0:1], 80
s_cmp_ge_u32 s2, 256
s_cbranch_scc1 {P}_done
v_lshrrev_b32 v2, 6, v0
v_and_b32 v1, 63, v0
v_readfirstlane_b32 s3, v2
s_and_b32 s22, s2, 7
s_lshr_b32 s23, s2, 3
s_cmp_lt_u32 s23, 4
s_cbranch_scc1 {P}_fft
""")
    gemm1(a, P)
    a(f"{P}_fft:")
    fft(a, P)
    a(f"{P}_done:")
    a("s_endpgm")
    text = a.finalize()
    errs = check_waits(a.ins, trips={f"{P}_gloop": 3})
    errs += check_waits(a.ins, take=[f"{P}_fft"])
    assert not errs
    return header(name) + text, descriptor(name, 256, 64)

if __name__ == "__main__":
    t, d = gen_k2(); print(len(t.splitlines()))
```

```python
from common import *
from gemm import *

DEPTH = 9
K3_BLOCK = 256
K3_LDS = 4 * DEPTH * 2048
AR3, BR3 = 128, 32

def gen_k3(name="k3_kernel", mapping="B"):
    a = Asm(); P = name
    a(f"""
s_load_dwordx16 s[4:19], s[0:1], 0
s_load_dwordx2 s[20:21], s[0:1], 80
s_load_dwordx2 s[22:23], s[0:1], 64
s_cmp_ge_u32 s2, 256
s_cbranch_scc1 {P}_done
v_lshrrev_b32 v2, 6, v0
v_and_b32 v1, 63, v0
v_readfirstlane_b32 s3, v2
s_and_b32 s40, s2, 7
s_lshr_b32 s41, s2, 3
""")
    if mapping == "A":
        a("""
s_and_b32 s44, s40, 1
s_lshl_b32 s44, s44, 2
s_and_b32 s45, s41, 3
s_add_u32 s44, s44, s45
s_lshr_b32 s45, s40, 1
s_lshl_b32 s45, s45, 3
s_lshr_b32 s46, s41, 2
s_add_u32 s45, s45, s46
""")
    else:
        a("""
s_and_b32 s44, s41, 7
s_lshl_b32 s45, s40, 2
s_lshr_b32 s46, s41, 3
s_add_u32 s45, s45, s46
""")
    lane_dma_offsets(a, 2, 3, 4096)
    tr_addr(a, 5, 4)
    a(f"""
s_lshr_b32 s47, s3, 1
s_and_b32 s48, s3, 1
s_lshl_b32 s49, s48, 6
v_xor_b32 v5, s49, v5
s_mul_i32 s50, s3, {DEPTH*2048}
v_add_u32 v5, s50, v5
v_xor_b32 v6, 64, v5
v_lshlrev_b32 v8, 4, v1
s_lshl_b32 s49, s47, 10
v_add_u32 v4, s49, v8
s_xor_b32 s49, s49, 1024
v_add_u32 v7, s49, v8
s_lshl_b32 s56, s45, 7
s_lshl_b32 s51, s3, 19
s_add_u32 s51, s51, s56
s_add_u32 s51, s51, {WS_ZT}
s_mul_i32 s52, s44, 144
s_lshl_b32 s53, s3, 3
s_add_u32 s53, s53, s52
s_add_u32 s53, s53, 112
s_lshl_b32 s53, s53, 11
s_add_u32 s53, s53, {WS_G}
s_mul_i32 s54, s3, 28
s_add_u32 s57, s54, s52
s_lshl_b32 s57, s57, 11
s_add_u32 s57, s57, {WS_G}
s_lshl_b32 s54, s54, 16
s_add_u32 s54, s54, s56
s_waitcnt lgkmcnt(0)
""")
    srd(a, 24, 16, 1792 * 4096)
    srd(a, 28, 20, WS_BYTES)
    srd(a, 36, 20, WS_BYTES)
    def issue(slot, z):
        sr, so, sg = (("s[28:31]", 51, 53) if z else ("s[24:27]", 54, 57))
        a(f"s_add_u32 m0, s50, {slot*2048}")
        a(f"buffer_load_dwordx4 v2, {sr}, s{so} offen lds ; @def=w{slot}")
        a(f"buffer_load_dwordx4 v3, {sr}, s{so} offen offset:1024 lds ; @def=w{slot}")
        a(f"buffer_load_dwordx4 v[{AR3+8*slot}:{AR3+8*slot+3}], v4, s[36:39], s{sg} offen")
        a(f"buffer_load_dwordx4 v[{AR3+8*slot+4}:{AR3+8*slot+7}], v7, s[36:39], s{sg} offen")
        a(f"s_add_u32 s{so}, s{so}, {16*4096}")
        a(f"s_add_u32 s{sg}, s{sg}, 2048")
    def trreads(slot, p):
        for bs in range(2):
            for rd in range(2):
                d = BR3 + 8 * p + 4 * bs + 2 * rd
                a(f"ds_read_b64_tr_b16 v[{d}:{d+1}], v{5+bs} offset:{slot*2048+rd*1024} ; @use=w{slot}")
    srd(a, 40, 4, 2048 * 1024)
    srd(a, 32, 18, 2048 * 2)
    a(f"""
v_and_b32 v8, 31, v1
v_lshlrev_b32 v9, 10, v8
v_lshrrev_b32 v10, 5, v1
v_lshlrev_b32 v10, 5, v10
v_add_u32 v13, v9, v10
s_lshl_b32 s58, s45, 1
s_add_u32 s58, s58, s48
s_lshl_b32 s59, s58, 15
s_lshl_b32 s61, s44, 1
s_add_u32 s61, s61, s47
s_lshl_b32 s61, s61, 6
s_add_u32 s59, s59, s61
s_lshl_b32 s58, s58, 6
v_lshlrev_b32 v8, 1, v8
buffer_load_dwordx4 v[16:19], v13, s[40:43], s59 offen
buffer_load_dwordx4 v[20:23], v13, s[40:43], s59 offen offset:16
buffer_load_ushort v24, v8, s[32:35], s58 offen
""")
    for s in range(8): issue(s, True)
    issue(8, False)
    for i in range(64): a(f"v_mov_b32 v{ACC+i}, 0")
    a(f"s_waitcnt vmcnt({4*(DEPTH-1)})")
    trreads(0, 0)
    a("s_mov_b32 s55, 0")
    a(f"{P}_loop:")
    a("s_cmp_eq_u32 s55, 3")
    a("s_cselect_b32 s26, 0, s26")
    a("s_cselect_b32 s38, 0, s38")
    def step(j, par):
        a(f"s_waitcnt vmcnt({4*(DEPTH-2)})")
        trreads((j + 1) % DEPTH, par ^ 1)
        a("s_waitcnt lgkmcnt(4)")
        for bd in range(2):
            for bs in range(2):
                acc = ACC + 16 * (2 * bd + bs)
                A = AR3 + 8 * j + 4 * bd; B = BR3 + 8 * par + 4 * bs
                a(f"v_mfma_f32_32x32x16_bf16 v[{acc}:{acc+15}], v[{A}:{A+3}], v[{B}:{B+3}], v[{acc}:{acc+15}]")
        issue(j, False)
    for j in range(DEPTH): step(j, j & 1)
    a("s_add_u32 s55, s55, 1")
    a("s_cmp_eq_u32 s55, 3")
    a("s_cselect_b32 s26, 0, s26")
    a("s_cselect_b32 s38, 0, s38")
    for j in range(DEPTH): step(j, (j + 1) & 1)
    a("s_add_u32 s55, s55, 1")
    a("s_cmp_lt_u32 s55, 4")
    a(f"s_cbranch_scc1 {P}_loop")
    a(f"""
v_lshlrev_b32 v8, 4, v1
s_xor_b32 s53, s3, 1
s_mul_i32 s53, s53, 12288
v_add_u32 v9, s53, v8
s_xor_b32 s53, s3, 2
s_mul_i32 s53, s53, 12288
s_add_u32 s53, s53, 4096
v_add_u32 v10, s53, v8
s_xor_b32 s53, s3, 3
s_mul_i32 s53, s53, 12288
s_add_u32 s53, s53, 8192
v_add_u32 v11, s53, v8
s_mul_i32 s53, s3, 12288
v_add_u32 v12, s53, v8
s_waitcnt vmcnt(0) lgkmcnt(0)
s_barrier
""")
    for b in (1, 2, 3):
        for g in range(4):
            r = ACC + 16 * b + 4 * g
            a(f"ds_write_b128 v{8+b}, v[{r}:{r+3}] offset:{1024*g}")
    for k in range(8):
        a(f"v_lshlrev_b32 v{32+2*k}, 16, v{16+k}")
        a(f"v_and_b32 v{33+2*k}, 0xffff0000, v{16+k}")
    a("v_lshlrev_b32 v24, 16, v24")
    for k in range(16): a(f"v_add_f32 v{32+k}, v{32+k}, v24")
    a("s_waitcnt lgkmcnt(0)")
    a("s_barrier")
    for b in range(3):
        for g in range(4):
            r = 128 + 16 * b + 4 * g
            a(f"ds_read_b128 v[{r}:{r+3}], v12 offset:{4096*b+1024*g}")
    for k in range(8):
        a(f"v_pk_add_f32 v[{ACC+2*k}:{ACC+2*k+1}], v[{ACC+2*k}:{ACC+2*k+1}], v[{32+2*k}:{33+2*k}]")
    for b in range(3):
        a(f"s_waitcnt lgkmcnt({8-4*b})")
        for k in range(8):
            r = 128 + 16 * b + 2 * k
            a(f"v_pk_add_f32 v[{ACC+2*k}:{ACC+2*k+1}], v[{ACC+2*k}:{ACC+2*k+1}], v[{r}:{r+1}]")
    for k in range(8): a(f"v_cvt_pk_bf16_f32 v{16+k}, v{ACC+2*k}, v{ACC+2*k+1}")
    srd(a, 40, 22, 2048 * 1024)
    a("buffer_store_dwordx4 v[16:19], v13, s[40:43], s59 offen")
    a("buffer_store_dwordx4 v[20:23], v13, s[40:43], s59 offen offset:16")
    a(f"{P}_done:")
    a("s_endpgm")
    text = a.finalize()
    errs = check_waits(a.ins, trips={f"{P}_loop": 1})
    assert not errs
    return header(name) + text, descriptor(name, 200, 64)

if __name__ == "__main__":
    t, d = gen_k3(); print(len(t.splitlines()))
```

```python
import numpy as np

S, D, F = 2048, 512, 1792

def bf16(x):
    x = np.ascontiguousarray(x, dtype=np.float32)
    u = x.view(np.uint32).astype(np.uint64)
    u = (u + 0x7FFF + ((u >> 16) & 1)) & 0xFFFF0000
    return u.astype(np.uint32).view(np.float32).reshape(x.shape)

def bf16_bits(x):
    return (bf16(x).view(np.uint32) >> 16).astype(np.uint16)

def bits_to_f32(u16):
    return (u16.astype(np.uint32) << 16).view(np.float32)

L = np.arange(64)

def mfma32(A, B, C):
    Am = np.zeros((32, 16)); Bm = np.zeros((16, 32))
    for j in range(8):
        Am[L & 31, 8 * (L >> 5) + j] = A[:, j]
        Bm[8 * (L >> 5) + j, L & 31] = B[:, j]
    Dm = Am @ Bm
    out = C.copy()
    for i in range(16):
        out[:, i] += Dm[8 * (i >> 2) + 4 * (L >> 5) + (i & 3), L & 31]
    return out

def mfma16(A, B, C):
    Am = np.zeros((16, 32)); Bm = np.zeros((32, 16))
    for j in range(8):
        Am[L & 15, 8 * (L >> 4) + j] = A[:, j]
        Bm[8 * (L >> 4) + j, L & 15] = B[:, j]
    Dm = Am @ Bm
    out = C.copy()
    for i in range(4):
        out[:, i] += Dm[4 * (L >> 4) + i, L & 15]
    return out

def tr_read(lds16, addr):
    out = np.zeros((64, 4), lds16.dtype)
    for l in range(64):
        g, c = l >> 4, l & 15
        for r in range(4):
            src = 16 * g + 4 * r + (c >> 2)
            out[l, r] = lds16[addr[src] // 2 + (c & 3)]
    return out

def pi32(n):
    return 16 * ((n >> 2) & 1) + 4 * (n >> 3) + (n & 3)

def sigma(u, h, j):
    return 16 * u + 8 * (j >> 2) + 4 * h + (j & 3)

WS_H  = 0x000000
WS_G  = 0x200000
WS_YT = 0x500000
WS_ZT = 0x700000
WS_WT = 0x900000
WS_TB = 0xB00000
TB_C64, TB_S64, TB_N64 = 0, 8192, 16384
TB_C32, TB_S32, TB_N32 = 24576, 26624, 28672
TB_TW1, TB_TW2 = 30720, 30720 + 16384
TB_SIZE = 30720 + 32768

def k1_ln(x):
    x = x.astype(np.float64)
    m = x.mean(1, keepdims=True)
    v = (x * x).mean(1, keepdims=True) - m * m
    r1 = 1 / np.sqrt(v + 1e-5)
    r2 = 1 / np.sqrt(v * r1 * r1 + 1e-5)
    xn = bf16((x - m) * r1)
    h = bf16((x - m) * r1 * r2)
    return xn, h

def k1_H(h):
    H = np.zeros((8, 128, 2, 64, 8), np.float32)
    n = L & 31; hh = L >> 5
    for i in range(8):
        for di in range(2):
            d = 64 * i + 32 * di + pi32(n)
            for j in range(8):
                s = 16 * np.arange(128)[:, None] + 8 * hh[None, :] + j
                H[i, :, di, :, j] = h[s, d[None, :]]
    return H

def k1_fft_consts(T):
    n = L & 15; q = L >> 4
    k1 = 16 * T + n
    C = np.zeros((64, 8)); NS = np.zeros((64, 8)); A2 = np.zeros((64, 8))
    for j in range(8):
        n1 = 16 * (j >> 2) + 4 * q + (j & 3)
        C[:, j] = np.cos(2 * np.pi * n1 * k1 / 32)
        NS[:, j] = -np.sin(2 * np.pi * n1 * k1 / 32)
        m = L & 15; k2 = m >> 1; part = m & 1
        n2 = 4 * q + (j & 3)
        ph = 2 * np.pi * n2 * k2 / 16
        if j < 4:
            A2[:, j] = np.where(part == 0, np.cos(ph), -np.sin(ph))
        else:
            A2[:, j] = np.where(part == 0, np.sin(ph), np.cos(ph))
    k1e = np.where(k1 == 0, 256, k1)
    tc = np.zeros((64, 4)); ts = np.zeros((64, 4))
    for i in range(4):
        n2 = 4 * q + i
        tc[:, i] = np.cos(2 * np.pi * n2 * k1e / 512)
        ts[:, i] = np.sin(2 * np.pi * n2 * k1e / 512)
    plane = np.zeros((64, 4), int); sgn = np.ones((64, 4))
    for i in range(4):
        k2 = 2 * q + (i >> 1); part = i & 1
        c = k1 + 32 * k2
        c = np.where((k1 == 0) & (k2 > 0), 32 * (8 - k2), c)
        plane[:, i] = 2 * c + part
        sgn[:, i] = np.where((k1 == 0) & (k2 > 0) & (part == 1), -1.0, 1.0)
    return bf16(C), bf16(NS), bf16(A2), tc.astype(np.float32), ts.astype(np.float32), plane, sgn

def k1_rowfft(xn, rows=None):
    YT = np.zeros((512, S), np.float32)
    consts = [k1_fft_consts(T) for T in range(2)]
    t = L & 15; q = L >> 4
    for s in (range(S) if rows is None else rows):
        row = xn[s]
        A = np.zeros((64, 8), np.float32)
        for rd in range(2):
            addr = 2 * (16 * (16 * rd + 4 * q + (t >> 2)) + 4 * (t & 3))
            A[:, 4 * rd:4 * rd + 4] = tr_read(row, addr)
        for T in range(2):
            C, NS, A2, tc, ts, plane, sgn = consts[T]
            Tr = mfma16(A, C, np.zeros((64, 4))); Ti = mfma16(A, NS, np.zeros((64, 4)))
            pr = Tr * tc + Ti * ts; pi_ = Ti * tc - Tr * ts
            B = bf16(np.concatenate([pr, pi_], 1))
            X = mfma16(A2, B, np.zeros((64, 4))) * sgn
            YT[plane, s] = bf16(X)
    return YT

def kappa(c):
    return np.where(c == 0, 256, c)

def k1_WT(wr, wi):
    WT = np.zeros((256, 2, 4, 64, 4, 2), np.float32)
    n = L & 31; h = L >> 5
    kap = kappa(np.arange(256))
    for T in range(2):
        for e in range(4):
            for ii in range(4):
                j = 32 * T + n + 1024 * h + 64 * (4 * e + ii)
                WT[:, T, e, :, ii, 0] = wr[j[None, :], kap[:, None]]
                WT[:, T, e, :, ii, 1] = wi[j[None, :], kap[:, None]]
    return WT

def k1_M():
    M = np.zeros((8, 32, 2, 64, 8), np.float32)
    n = L & 31; h = L >> 5
    for i in range(8):
        for di in range(2):
            d = 64 * i + 32 * di + pi32(n)
            for kk in range(32):
                for j in range(8):
                    p = sigma(kk, h, j)
                    c = p >> 1; part = p & 1
                    k = kappa(c)
                    ang = 2 * np.pi * ((d * k) % 512) / 512
                    ck = np.where(c == 0, 1.0, 2.0)
                    v = np.where(part == 0, ck * np.cos(ang), -ck * np.sin(ang))
                    v = np.where((c == 0) & (part == 1), 0.0, v)
                    M[i, kk, di, :, j] = v
    return bf16(M)

def k1_tables():
    n = L & 31; h = L >> 5
    C64 = np.zeros((4, 2, 64, 8)); S64 = np.zeros_like(C64)
    for u in range(4):
        for T in range(2):
            for j in range(8):
                a = 2 * np.pi * ((sigma(u, h, j) * (32 * T + n)) % 64) / 64
                C64[u, T, :, j] = np.cos(a); S64[u, T, :, j] = np.sin(a)
    C32 = np.zeros((2, 64, 8)); S32 = np.zeros_like(C32)
    for u in range(2):
        for j in range(8):
            a = 2 * np.pi * ((pi32(n) * (16 * h + 8 * u + j)) % 32) / 32
            C32[u, :, j] = np.cos(a); S32[u, :, j] = np.sin(a)
    TW1 = np.zeros((2, 64, 16, 2)); TW2 = np.zeros_like(TW1)
    for T in range(2):
        for i in range(16):
            a = 2 * np.pi * ((16 * h + i) * (32 * T + n)) / 2048
            TW1[T, :, i, 0] = np.cos(a); TW1[T, :, i, 1] = np.sin(a)
            k1 = 32 * T + 8 * (i >> 2) + 4 * h + (i & 3)
            a = 2 * np.pi * (pi32(n) * k1) / 2048
            TW2[T, :, i, 0] = np.cos(a) * 2.0 ** -20; TW2[T, :, i, 1] = np.sin(a) * 2.0 ** -20
    return (bf16(C64), bf16(S64), bf16(C32), bf16(S32), TW1.astype(np.float32), TW2.astype(np.float32))

def ys_layout(YT):
    return YT.reshape(512, 256, 8).transpose(1, 0, 2)

def k2_fft_col(yr, yi, wt, tabs):
    C64, S64, C32, S32, TW1, TW2 = tabs
    t = L & 15; g = L >> 4
    h = g >> 1; cb = g & 1; c4 = t & 3; r = t >> 2
    n2base = 16 * (c4 & 1) + 4 * (2 * cb + (c4 >> 1))
    def load(plane):
        out = []
        for u in range(4):
            A = np.zeros((64, 8), np.float32)
            for rd in range(2):
                addr = 64 * (16 * u + 8 * rd + 4 * h + r) + 2 * n2base
                A[:, 4 * rd:4 * rd + 4] = tr_read(plane, addr)
            out.append(A)
        return out
    Yr, Yi = load(yr), load(yi)
    z16 = lambda: np.zeros((64, 16))
    Tr = [z16(), z16()]; Ti = [z16(), z16()]
    for u in range(4):
        for T in range(2):
            Tr[T] = mfma32(Yr[u], C64[u, T], Tr[T]); Tr[T] = mfma32(Yi[u], S64[u, T], Tr[T])
            Ti[T] = mfma32(Yi[u], C64[u, T], Ti[T]); Ti[T] = mfma32(Yr[u], -S64[u, T], Ti[T])
    Gr, Gi = [], []
    for T in range(2):
        c, s = TW1[T, :, :, 0], TW1[T, :, :, 1]
        pr = bf16(Tr[T] * c + Ti[T] * s); pi_ = bf16(Ti[T] * c - Tr[T] * s)
        Xr, Xi = z16(), z16()
        for u in range(2):
            br, bi = pr[:, 8 * u:8 * u + 8], pi_[:, 8 * u:8 * u + 8]
            Xr = mfma32(C32[u], br, Xr); Xr = mfma32(S32[u], bi, Xr)
            Xi = mfma32(C32[u], bi, Xi); Xi = mfma32(-S32[u], br, Xi)
        wr = wt[T, :, :, :, 0].transpose(1, 0, 2).reshape(64, 16)
        wi = wt[T, :, :, :, 1].transpose(1, 0, 2).reshape(64, 16)
        Gr.append(bf16(Xr * wr - Xi * wi)); Gi.append(bf16(Xr * wi + Xi * wr))
    Rr, Ri = [], []
    for T in range(2):
        ar, ai = z16(), z16()
        for u in range(2):
            gr, gi = Gr[T][:, 8 * u:8 * u + 8], Gi[T][:, 8 * u:8 * u + 8]
            ar = mfma32(gr, C32[u], ar); ar = mfma32(gi, -S32[u], ar)
            ai = mfma32(gi, C32[u], ai); ai = mfma32(gr, S32[u], ai)
        c, s = TW2[T, :, :, 0], TW2[T, :, :, 1]
        Rr.append(bf16(ar * c - ai * s)); Ri.append(bf16(ai * c + ar * s))
    zr = np.zeros(S, np.float32); zi = np.zeros(S, np.float32)
    n = L & 31; hh = L >> 5
    for T2 in range(2):
        ar, ai = z16(), z16()
        for u in range(4):
            T, up = u >> 1, u & 1
            rr, ri = Rr[T][:, 8 * up:8 * up + 8], Ri[T][:, 8 * up:8 * up + 8]
            ar = mfma32(rr, C64[u, T2], ar); ar = mfma32(ri, -S64[u, T2], ar)
            ai = mfma32(ri, C64[u, T2], ai); ai = mfma32(rr, S64[u, T2], ai)
        for i in range(16):
            s_ = 32 * (32 * T2 + n) + 16 * hh + i
            zr[s_] = bf16(ar[:, i]); zi[s_] = bf16(ai[:, i])
    return zr, zi

def gelu(u):
    return 0.5 * u * (1 + np.tanh(np.sqrt(2 / np.pi) * (u + 0.044715 * u ** 3)))

def g_frag_from_g(g):
    G = np.zeros((8, 112, 2, 64, 8), np.float32)
    n = L & 31; h = L >> 5
    for i in range(8):
        for di in range(2):
            d = 64 * i + 32 * di + pi32(n)
            for j in range(8):
                f = sigma(np.arange(112)[:, None], h[None, :], j)
                G[i, :, di, :, j] = g[d[None, :], f]
    return G

def reference64(x, wr, wi, w1, b1, w2, b2):
    x = x.astype(np.float64)
    def ln(a):
        m = a.mean(1, keepdims=True); v = a.var(1, keepdims=True)
        return (a - m) / np.sqrt(v + 1e-5)
    xn = ln(x)
    X = np.fft.rfft2(xn) * (wr + 1j * wi)
    A = np.fft.irfft2(X, s=(S, D))
    h = ln(xn)
    u = gelu(h.T @ w1 + b1)
    y = u @ w2 + b2
    return x + A + y.T, A, y.T, u

if __name__ == "__main__":
    rng = np.random.default_rng(0)
    x = bf16(rng.standard_normal((S, D)) * 0.05)
    wr = bf16(bf16(rng.standard_normal((S, 257)) * 0.2) * 0.02)
    wi = bf16(bf16(rng.standard_normal((S, 257)) * 0.2) * 0.02)
    xn, h = k1_ln(x)
    rows = [0, 1, 77, 2047]
    YT = k1_rowfft(xn, rows)
    Yref = np.fft.rfft(xn.astype(np.float64), axis=1)
    for s in rows:
        e_re = np.abs(YT[2:512:2, s] - Yref[s, 1:256].real).max()
        e_im = np.abs(YT[3:512:2, s] - Yref[s, 1:256].imag).max()
        print("row", s, "err re/im", e_re, e_im, "nyq", YT[0, s], Yref[s, 256].real, YT[1, s], "scale", np.abs(Yref[s]).mean())
    tabs = k1_tables()
    WT = k1_WT(wr, wi)
    for c in (0, 1, 100, 255):
        k = int(kappa(np.array(c)))
        y = Yref[:, k]
        yr, yi = bf16(y.real), bf16(y.imag)
        zr, zi = k2_fft_col(yr, yi, WT[c], tabs)
        zref = np.fft.ifft(np.fft.fft(yr + 1j * yi) * (wr[:, k] + 1j * wi[:, k])) * 2048 * 2.0 ** -20
        print("col", c, "rel err", np.abs(zr + 1j * zi - zref).max() / np.abs(zref).std())
    Yfull = Yref
    Z = np.fft.ifft(np.fft.fft(Yfull, axis=0) * (wr + 1j * wi), axis=0) * 2048 * 2.0 ** -20
    ZT = np.zeros((512, S))
    for c in range(256):
        k = int(kappa(np.array(c)))
        ZT[2 * c] = Z[:, k].real; ZT[2 * c + 1] = Z[:, k].imag
    M = k1_M()
    A = np.zeros((S, D))
    n = L & 31; hh = L >> 5
    for i in range(8):
        for di in range(2):
            d = 64 * i + 32 * di + pi32(np.arange(32))
            Mm = np.zeros((32, 512))
            for kk in range(32):
                for j in range(8):
                    Mm[n, sigma(kk, hh, j)] = M[i, kk, di, :, j]
            A[:, d] = ZT.T @ Mm.T
    Aref = np.fft.irfft2(np.fft.rfft2(xn.astype(np.float64)) * (wr + 1j * wi), s=(S, D))
    print("A err", np.abs(A - Aref).max(), "A rms", Aref.std())
```

```python
import sys, importlib
KNAME = "parallel_sum__spectral_gfnet__mixer_token_mlp__prompt"
HEAD = """; Kernarg layout (88 bytes, pointers only, base s[0:1]):
"""
def assemble(parts):
    s = HEAD
    for (n, t, d, g, b, lds) in parts:
        s += f"; @launch kernel={n} grid=({g},1,1) block=({b},1,1) lds={lds}\n"
    s += '.amdgcn_target "amdgcn-amd-amdhsa--gfx950"\n.text\n'
    seen = set()
    for (n, t, d, g, b, lds) in parts:
        if n not in seen: s += t
        seen.add(n)
    s += '.section .rodata,"a"\n'
    seen = set()
    for (n, t, d, g, b, lds) in parts:
        if n not in seen: s += d
        seen.add(n)
    return s

def parts(which="123"):
    out = []
    if "1" in which:
        import k1
        t, d = k1.gen_k1(); out.append(("k1_kernel", t, d, 512, 256, k1.K1_LDS))
    if "2" in which:
        import k2
        t, d = k2.gen_k2(); out.append(("k2_kernel", t, d, 256, 512, k2.K2_LDS))
    if "3" in which:
        import k3
        t, d = k3.gen_k3(); out.append(("k3_kernel", t, d, 256, k3.K3_BLOCK, k3.K3_LDS))
    return out

if __name__ == "__main__":
    which = sys.argv[1] if len(sys.argv) > 1 else "123"
    out = sys.argv[2] if len(sys.argv) > 2 else f"cdna_kernels/{KNAME}.s"
    open(out, "w").write(assemble(parts(which)))
    print("wrote", out)
```

```python
import build, sys
from common import header, descriptor
base = build.parts("123")
e = ("e0_kernel", header("e0_kernel") + "  s_endpgm\n", descriptor("e0_kernel", 32, 32), 256, 256, 0)
k1, k2, k3 = base
V = {
 "vB": [k1, k2, k3, e, e, e],
 "vC": [e, e, e, k1, k2, k3],
 "vD": [k1, k2, k3, k1, k2, k3],
 "vE": [k1, k1, k2, k2, k3, k3],
 "vF": [k1, k2, k3] + [e] * 12,
}
for n, p in V.items():
    open(f"exp/{n}.s", "w").write(build.assemble(p))
```

```python
import re

TRANS = ("v_exp_f32", "v_log_f32", "v_rcp_f32", "v_rsq_f32", "v_sqrt_f32", "v_sin_f32", "v_cos_f32", "v_rcp_iflag_f32")
REG_RE = re.compile(r"^(-|abs\()?\s*([vas])(\d+|\[(\d+):(\d+)\])\)?$")
SPECIAL = {"vcc": ("s106", "s107"), "vcc_lo": ("s106",), "vcc_hi": ("s107",), "exec": ("s126", "s127"),
           "exec_lo": ("s126",), "exec_hi": ("s127",), "m0": ("m0",)}

def regs_of(tok):
    tok = tok.strip()
    if tok in SPECIAL: return set(SPECIAL[tok])
    if tok.startswith("-") and tok[1:] in SPECIAL: return set(SPECIAL[tok[1:]])
    m = REG_RE.match(tok)
    if not m: return set()
    k = m.group(2)
    if m.group(4) is not None:
        return {f"{k}{i}" for i in range(int(m.group(4)), int(m.group(5)) + 1)}
    return {f"{k}{m.group(3)}"}

def split_ops(s):
    out, depth, cur = [], 0, ""
    for ch in s:
        if ch in "[(": depth += 1
        if ch in "])": depth -= 1
        if ch == "," and depth == 0:
            out.append(cur.strip()); cur = ""
        else:
            cur += ch
    if cur.strip(): out.append(cur.strip())
    return out

class Inst:
    __slots__ = ("text", "mn", "dst", "src", "kind", "label", "target", "tags", "ops", "mods")
    def __init__(self, text):
        self.text = text
        code, _, comment = text.partition(";")
        code = code.strip()
        self.tags = dict(re.findall(r"@(\w+)=([\w.:,+-]+)", comment))
        self.label = None; self.target = None
        self.dst, self.src = set(), set()
        self.mn = ""; self.kind = "none"; self.ops = []; self.mods = ""
        if not code: return
        if code.endswith(":"):
            self.label = code[:-1]; self.kind = "label"; return
        if code.startswith("."):
            self.kind = "dir"; return
        parts = code.split(None, 1)
        mn = self.mn = parts[0]
        rest = parts[1] if len(parts) > 1 else ""
        ops = split_ops(rest)
        if ops:
            last = ops[-1].split()
            if len(last) > 1 and not last[0].endswith("("):
                ops[-1] = last[0]; self.mods = " ".join(last[1:])
        self.ops = ops
        R = [regs_of(o) for o in ops]
        base = re.sub(r"_(e32|e64|dpp|sdwa)$", "", mn)
        if mn.startswith("v_mfma"):
            self.kind = "mfma"; self.dst = R[0]; self.src = R[1] | R[2] | R[3]
        elif mn.startswith("v_"):
            self.kind = "trans" if base in TRANS else "valu"
            if base.startswith("v_cmp"):
                self.dst = R[0]; self.src = set().union(*R[1:])
                if base.startswith("v_cmpx"): self.dst |= set(SPECIAL["exec"])
            elif base in ("v_add_co_u32", "v_sub_co_u32", "v_addc_co_u32", "v_subb_co_u32", "v_subrev_co_u32"):
                self.dst = R[0] | R[1]; self.src = set().union(*R[2:])
            elif base.startswith("v_permlane") and "swap" in base:
                self.dst = R[0] | R[1]; self.src = R[0] | R[1]
            elif base in ("v_fmac_f32", "v_dot2c_f32_bf16", "v_pk_fmac_f16", "v_writelane_b32") or mn.endswith("_dpp"):
                self.dst = R[0]; self.src = set().union(*R)
            else:
                self.dst = R[0]; self.src = set().union(*R[1:]) if len(R) > 1 else set()
            if base == "v_cndmask_b32" and len(ops) == 3: self.src |= set(SPECIAL["vcc"])
        elif mn.startswith("buffer_") or mn.startswith("global_"):
            self.kind = "vmem"
            lds = "lds" in self.mods.split()
            if mn.startswith("buffer_load"):
                if lds: self.src = set().union(*R) | {"m0"}
                else: self.dst = R[0]; self.src = set().union(*R[1:])
            elif mn.startswith("global_load"):
                if "_lds_" in mn: self.src = set().union(*R) | {"m0"}
                else: self.dst = R[0]; self.src = set().union(*R[1:])
            elif mn.startswith("buffer_atomic") or mn.startswith("global_atomic"):
                self.src = set().union(*R)
                if "sc0" in self.mods.split(): self.dst = R[0]
            elif mn in ("buffer_wbl2", "buffer_inv"):
                pass
            else:
                self.src = set().union(*R)
        elif mn.startswith("ds_"):
            self.kind = "ds"
            if mn.startswith("ds_read") or mn.startswith("ds_bpermute") or mn.startswith("ds_swizzle") or mn.startswith("ds_permute"):
                self.dst = R[0]; self.src = set().union(*R[1:])
            else:
                self.src = set().union(*R)
        elif mn.startswith("s_"):
            self.kind = "salu"
            if mn.startswith("s_load") or mn.startswith("s_buffer_load") or mn in ("s_memtime", "s_memrealtime"):
                self.kind = "smem"; self.dst = R[0]; self.src = set().union(*R[1:]) if len(R) > 1 else set()
            elif mn.startswith("s_cbranch") or mn == "s_branch":
                self.kind = "branch"; self.target = ops[0]
            elif mn.startswith("s_cmp") or mn in ("s_waitcnt", "s_barrier", "s_nop", "s_endpgm", "s_sleep", "s_setprio"):
                self.src = set().union(*R) if R else set()
            elif "saveexec" in mn:
                self.dst = R[0] | set(SPECIAL["exec"]); self.src = R[1] | set(SPECIAL["exec"])
            else:
                self.dst = R[0] if R else set(); self.src = set().union(*R[1:]) if len(R) > 1 else set()
        else:
            raise ValueError("cannot parse: " + text)

    def states(self):
        if self.kind in ("label", "dir", "none"): return 0
        if self.mn == "s_nop": return int(self.ops[0], 0) + 1
        return 1

def mfma_passes(i):
    return 8 if "32x32" in i.mn else 4

def need(p, c):
    n = 0
    pv = p.kind in ("valu", "trans")
    cv = c.kind in ("valu", "trans")
    vd = {r for r in p.dst if r[0] in "va"}
    sd = {r for r in p.dst if r[0] == "s"}
    if p.kind == "mfma":
        ps = mfma_passes(p)
        big = {4: 8, 8: 12}[ps]
        if c.kind == "mfma":
            R = [regs_of(o) for o in c.ops]
            if vd & (R[1] | R[2]): n = max(n, big)
            if vd & R[3]:
                if not (R[3] == vd and mfma_passes(c) == ps): n = max(n, {4: 6, 8: 10}[ps])
            elif vd & R[0]: n = max(n, big)
        elif cv or c.kind in ("vmem", "ds"):
            if vd & (c.src | c.dst): n = max(n, big)
        srcC = regs_of(p.ops[3])
        if cv and (srcC & c.dst): n = max(n, {4: 3, 8: 7}[ps])
    if pv:
        if c.kind == "mfma" and (vd & c.src): n = max(n, 2)
        if p.kind == "trans" and c.kind == "valu" and (vd & c.src): n = max(n, 1)
        if p.kind == "trans" and c.kind in ("vmem", "ds") and (vd & c.src): n = max(n, 1)
        if cv and c.mn.endswith("_dpp") and (vd & c.src): n = max(n, 2)
        if cv and c.mn.startswith("v_permlane") and (vd & c.src): n = max(n, 2)
        if cv and (c.mn.startswith("v_readlane") or c.mn.startswith("v_readfirstlane")) and (vd & c.src): n = max(n, 1)
        if sd:
            if c.kind == "vmem" and (sd & c.src): n = max(n, 5)
            if cv and (sd & c.src):
                n = max(n, 4 if c.mn.startswith(("v_readlane", "v_writelane")) else 2)
            if c.kind in ("salu", "smem", "branch") and (sd & c.src): n = max(n, 3)
            ex = sd & {"s126", "s127"}
            if ex and c.kind == "mfma": n = max(n, 4)
            if ex and cv and c.mn.endswith("_dpp"): n = max(n, 5)
            if ex and cv and c.mn.startswith(("v_readlane", "v_readfirstlane", "v_permlane")): n = max(n, 4)
        if "s106" in sd and c.kind == "branch" and "vcc" in c.mn: n = max(n, 5)
    if p.kind == "salu" and "m0" in p.dst and c.kind == "vmem" and "m0" in c.src: n = max(n, 1)
    if p.kind == "vmem" and "store" in p.mn and ("x4" in p.mn or "x3" in p.mn):
        data = regs_of(p.ops[0]) if p.mn.startswith("buffer") else regs_of(p.ops[1])
        if (cv or c.kind in ("mfma", "ds", "vmem")) and (data & c.dst): n = max(n, 2)
    return n

MAXW = 20

class Asm:
    def __init__(self):
        self.lines = []
    def __call__(self, text):
        for l in text.split("\n"):
            if l.strip(): self.lines.append(l.rstrip() if l.strip().endswith(":") or l.lstrip().startswith(".") else "  " + l.strip())
    def ext(self, lst):
        for l in lst: self(l)

    def auto_waits(self):
        out = []; active = False; vm = []; lg = []
        def emit_wait(nv, nl):
            parts = []
            if nv is not None: nv = min(nv, 63)
            if nl is not None: nl = min(nl, 15)
            if nv is not None and nv < len(vm):
                parts.append(f"vmcnt({nv})"); del vm[:len(vm) - nv]
            if nl is not None and nl < len(lg):
                if any(x[1] == "__smem" for x in lg): nl = 0
                parts.append(f"lgkmcnt({nl})"); del lg[:len(lg) - nl]
            if parts: out.append("  s_waitcnt " + " ".join(parts))
        for l in self.lines:
            st = l.strip()
            if st == ";;AUTO_BEGIN": active = True; vm = []; lg = []; continue
            if st == ";;AUTO_RESUME": active = True; continue
            if st.startswith(";;AUTO_INJECT"):
                vm.append((set(), st.split()[1], l)); continue
            if st == ";;AUTO_END": active = False; continue
            if not active:
                out.append(l); continue
            if st.startswith("waitdef"):
                tags = st.split()[1].split(",")
                nv = nl = None
                for q, name in ((vm, "v"), (lg, "l")):
                    last = -1
                    for k, (d, tag, _) in enumerate(q):
                        if tag and any(t in tag.split(",") for t in tags): last = k
                    if last >= 0:
                        if name == "v": nv = len(q) - 1 - last
                        else: nl = len(q) - 1 - last
                emit_wait(nv, nl); continue
            i = Inst(l)
            if i.kind in ("label", "branch"):
                assert i.kind != "label", "labels are not allowed in an auto-wait region: " + l
            if i.mn == "s_waitcnt":
                t = l.split(";")[0]
                m = re.search(r"vmcnt\((\d+)\)", t)
                if m: del vm[:max(0, len(vm) - int(m.group(1)))]
                m = re.search(r"lgkmcnt\((\d+)\)", t)
                if m: del lg[:max(0, len(lg) - int(m.group(1)))]
                out.append(l); continue
            touched = i.src | i.dst
            uses = i.tags.get("use", "").split(",") if "use" in i.tags else []
            nv = nl = None
            for q, name in ((vm, "v"), (lg, "l")):
                last = -1
                for k, (d, tag, _) in enumerate(q):
                    hit = bool(d & touched)
                    if name == "v" and i.kind == "vmem" and not (d & i.src): hit = False
                    if name == "l" and i.kind == "ds" and not (d & i.src): hit = False
                    if tag and any(u in tag.split(",") for u in uses): hit = True
                    if hit: last = k
                if last >= 0:
                    if name == "v": nv = len(q) - 1 - last
                    else: nl = len(q) - 1 - last
            emit_wait(nv, nl)
            out.append(l)
            if i.kind == "vmem" and i.mn not in ("buffer_wbl2", "buffer_inv"): vm.append((set(i.dst), i.tags.get("def"), l))
            elif i.kind == "ds": lg.append((set(i.dst), i.tags.get("def"), l))
            elif i.kind == "smem": lg.append((set(i.dst), "__smem", l))
            assert len(vm) <= 63, "too many vector-memory ops in flight: " + l
        self.lines = out

    def finalize(self, verbose=False):
        self.auto_waits()
        ins = [Inst(l) for l in self.lines]
        added = 0
        def cfg():
            labels = {i.label: k for k, i in enumerate(ins) if i.label}
            preds = {}
            for k, i in enumerate(ins):
                if i.kind == "branch" and i.target in labels:
                    preds.setdefault(labels[i.target], []).append(k)
            return preds
        preds = cfg()
        def falls(k):
            return ins[k].mn not in ("s_branch", "s_endpgm")
        k = 0
        while k < len(ins):
            c = ins[k]
            if c.kind in ("label", "dir", "none"):
                k += 1; continue
            short = 0
            stack = [(k, 0)]; seen = set()
            while stack:
                pos, dist = stack.pop()
                prev = []
                if pos > 0 and falls(pos - 1): prev.append(pos - 1)
                if ins[pos].kind == "label": prev += preds.get(pos, [])
                for q in prev:
                    p = ins[q]
                    if p.kind not in ("label", "dir", "none"):
                        nd = need(p, c)
                        if nd > dist: short = max(short, nd - dist)
                    d2 = dist + p.states()
                    if d2 < MAXW and (q, d2) not in seen:
                        seen.add((q, d2)); stack.append((q, d2))
            if short > 0:
                nops = []
                while short > 0:
                    n = min(short, 16); nops.append(Inst(f"  s_nop {n-1}")); short -= n
                ins[k:k] = nops
                added += len(nops)
                k += len(nops)
                preds = cfg()
            k += 1
        if verbose: print("nops inserted:", added)
        self.ins = ins
        return "\n".join(i.text for i in ins) + "\n"

def check_waits(ins, trips=None, verbose=True, take=()):
    trips = dict(trips or {})
    labels = {i.label: k for k, i in enumerate(ins) if i.label}
    vm, lg = [], []
    errs = []
    count = {}
    pc = 0; steps = 0
    smem_out = False
    while pc < len(ins) and steps < 2000000:
        steps += 1
        i = ins[pc]
        if i.kind in ("label", "dir", "none"):
            pc += 1; continue
        if i.mn == "s_endpgm": break
        touched = i.src | i.dst
        for name, q in (("vm", vm), ("lgkm", lg)):
            for (d, tag, txt) in q:
                if d & touched and not (i.kind in ("vmem",) and name == "vm" and not (d & i.src)):
                    errs.append(f"{name} hazard: [{i.text.strip()}] touches in-flight dst of [{txt.strip()}]")
        if "use" in i.tags:
            for u in i.tags["use"].split(","):
                for (d, tag, txt) in vm + lg:
                    if tag and u in tag.split(","):
                        errs.append(f"tag hazard: [{i.text.strip()}] uses {u} still in flight from [{txt.strip()}]")
        if i.mn == "s_waitcnt":
            t = i.text.split(";")[0]
            m = re.search(r"vmcnt\((\d+)\)", t)
            if m:
                n = int(m.group(1))
                while len(vm) > n: vm.pop(0)
            m = re.search(r"lgkmcnt\((\d+)\)", t)
            if m:
                n = int(m.group(1))
                if any(x[1] == "__smem" for x in lg) and n != 0:
                    errs.append("counted lgkmcnt with SMEM in flight: " + i.text)
                while len(lg) > n: lg.pop(0)
        elif i.kind == "vmem" and i.mn not in ("buffer_wbl2", "buffer_inv"):
            vm.append((set(i.dst), i.tags.get("def"), i.text))
            if len(vm) > 63: errs.append("more than 63 vmem ops in flight at " + i.text)
        elif i.kind == "ds":
            lg.append((set(i.dst), i.tags.get("def"), i.text))
        elif i.kind == "smem":
            lg.append((set(i.dst), "__smem", i.text))
        if i.kind == "branch":
            tgt = labels[i.target]
            if i.mn == "s_branch":
                pc = tgt; continue
            if tgt <= pc:
                c = count.get(pc, 0)
                if c < trips.get(i.target, 1):
                    count[pc] = c + 1; pc = tgt; continue
                count[pc] = 0
            elif i.tags.get("take") == "1" or i.target in take:
                pc = tgt; continue
        pc += 1
    seen = set(); out = []
    for e in errs:
        if e not in seen: seen.add(e); out.append(e)
    if verbose:
        for e in out[:30]: print("WAITCHECK:", e)
    return out


def interleave(main, fill, ratio=None, start=0):
    n = len(main) - start
    out = list(main[:start]); k = 0
    for j, m in enumerate(main[start:]):
        out.append(m)
        want = (len(fill) * (j + 1) + n - 1) // n if ratio is None else min(len(fill), ratio * (j + 1))
        while k < want:
            out.append(fill[k]); k += 1
    out += fill[k:]
    return out
```

```python
import sys, importlib
KNAME = "parallel_sum__spectral_gfnet__mixer_token_mlp__prompt"
HEAD = """; Kernarg layout (88 bytes, pointers only, base s[0:1]):
"""
def assemble(parts):
    s = HEAD
    for (n, t, d, g, b, lds) in parts:
        s += f"; @launch kernel={n} grid=({g},1,1) block=({b},1,1) lds={lds}\n"
    s += '.amdgcn_target "amdgcn-amd-amdhsa--gfx950"\n.text\n'
    seen = set()
    for (n, t, d, g, b, lds) in parts:
        if n not in seen: s += t
        seen.add(n)
    s += '.section .rodata,"a"\n'
    seen = set()
    for (n, t, d, g, b, lds) in parts:
        if n not in seen: s += d
        seen.add(n)
    return s

def parts(which="123"):
    out = []
    if "1" in which:
        import k1
        t, d = k1.gen_k1(); out.append(("k1_kernel", t, d, 512, 256, k1.K1_LDS))
    if "2" in which:
        import k2
        t, d = k2.gen_k2(); out.append(("k2_kernel", t, d, 256, 512, k2.K2_LDS))
    if "3" in which:
        import k3
        t, d = k3.gen_k3(); out.append(("k3_kernel", t, d, 256, k3.K3_BLOCK, k3.K3_LDS))
    return out

if __name__ == "__main__":
    import common
    if "stamp" in sys.argv:
        sys.argv.remove("stamp"); common.STAMP = True
    if "dbgstamp" in sys.argv:
        sys.argv.remove("dbgstamp"); common.STAMP = True; common.DBGSTAMP = True
    which = sys.argv[1] if len(sys.argv) > 1 else "123"
    out = sys.argv[2] if len(sys.argv) > 2 else f"cdna_kernels/{KNAME}.s"
    open(out, "w").write(assemble(parts(which)))
    print("wrote", out)
```

```python
from asmlib import Asm, check_waits
from model import (WS_H, WS_G, WS_YT, WS_ZT, WS_WT, WS_TB, TB_C64, TB_S64, TB_N64, TB_C32, TB_S32, TB_N32,
                   TB_TW1, TB_TW2, TB_SIZE)

WS_BYTES = 0x10000000

def srd(a, sd, sbase, nbytes):
    a(f"s_mov_b32 s{sd}, s{sbase}")
    a(f"s_and_b32 s{sd+1}, s{sbase+1}, 0xffff")
    a(f"s_mov_b32 s{sd+2}, {nbytes}")
    a(f"s_mov_b32 s{sd+3}, 0x20000")

def descriptor(name, vgpr, sgpr=102, accum=None):
    return f""".p2align 6
.amdhsa_kernel {name}
  .amdhsa_next_free_vgpr {vgpr}
  .amdhsa_next_free_sgpr {sgpr}
  .amdhsa_accum_offset {accum or min(256, (vgpr + 3) // 4 * 4)}
  .amdhsa_group_segment_fixed_size 0
  .amdhsa_kernarg_size 88
  .amdhsa_user_sgpr_count 2
  .amdhsa_user_sgpr_kernarg_segment_ptr 1
  .amdhsa_system_sgpr_workgroup_id_x 1
  .amdhsa_float_denorm_mode_32 3
.end_amdhsa_kernel
"""

def header(name):
    return f".globl {name}\n.p2align 8\n.type {name},@function\n{name}:\n"

def vr(base, n=1):
    return f"v{base}" if n == 1 else f"v[{base}:{base+n-1}]"

def f32(x):
    import struct
    return "0x%08x" % struct.unpack("<I", struct.pack("<f", x))[0]

STAMP = False
STAMP_BASE = 0xF000000
def stamp(a, k):
    import common
    if common.STAMP:
        a(f"s_memrealtime s[{80+2*k}:{81+2*k}]")
        a("s_waitcnt lgkmcnt(0)")

def stamp_flush(a, kidx, nst, ws_lo=20, wave="s3"):
    import common
    if not common.STAMP: return
    a("s_waitcnt vmcnt(0) lgkmcnt(0)")
    a(f"s_memrealtime s[{80+2*nst}:{81+2*nst}]")
    a("s_waitcnt lgkmcnt(0)")
    if common.DBGSTAMP:
        a(f"s_mov_b32 s82, s84")
        a(f"s_mov_b32 s84, s86")
        a(f"s_mov_b32 s86, s88")
        a(f"s_mov_b32 s88, s{80+2*nst}")
        dbg_flush(a, kidx, 40, 5*kidx, 5)
        return
    a(f"s_mov_b32 s76, s{ws_lo}")
    a(f"s_and_b32 s77, s{ws_lo+1}, 0xffff")
    a(f"s_mov_b32 s78, {WS_BYTES}")
    a("s_mov_b32 s79, 0x20000")
    a("s_lshl_b32 s75, s2, 3")
    a(f"s_add_u32 s75, s75, {wave}")
    a("s_lshl_b32 s75, s75, 5")
    a(f"s_add_u32 s75, s75, {STAMP_BASE + kidx*0x40000}")
    a("v_mov_b32 v0, 0")
    for k in range(nst + 1):
        a(f"v_mov_b32 v1, s{80+2*k}")
        a(f"buffer_store_dword v1, v0, s[76:79], s75 offen offset:{4*k}")
    a("s_sub_u32 s94, s94, s92")
    a("v_mov_b32 v1, s94")
    a("buffer_store_dword v1, v0, s[76:79], s75 offen offset:24")


DBGSTAMP = False
def dbg_flush(a, kidx, wg, slot0, nst):
    lab = f"dbgskip_{kidx}_{slot0}_{len(a.lines)}"
    a(f"s_cmp_lg_u32 s2, {wg}")
    a(f"s_cbranch_scc1 {lab}")
    a("s_cmp_lg_u32 s3, 0")
    a(f"s_cbranch_scc1 {lab}")
    a("s_mov_b32 s76, s20")
    a("s_and_b32 s77, s21, 0xffff")
    a(f"s_mov_b32 s78, {WS_BYTES}")
    a("s_mov_b32 s79, 0x20000")
    a(f"s_mov_b32 s75, {STAMP_BASE}")
    a("v_mov_b32 v0, 0")
    for k in range(nst):
        a(f"v_mov_b32 v1, s{80+2*k}")
        a(f"buffer_store_dword v1, v0, s[76:79], s75 offen offset:{4*(slot0+k)}")
    if kidx == 2:
        a("s_waitcnt vmcnt(0)")
        a("v_mbcnt_lo_u32_b32 v0, -1, 0")
        a("v_mbcnt_hi_u32_b32 v0, -1, v0")
        a("v_lshlrev_b32 v0, 2, v0")
        a("buffer_load_dword v1, v0, s[76:79], s75 offen sc0 sc1")
        a("s_load_dwordx2 s[76:77], s[0:1], 72")
        a("s_waitcnt vmcnt(0) lgkmcnt(0)")
        a("s_and_b32 s77, s77, 0xffff")
        a("s_mov_b32 s78, 256")
        a("buffer_store_dword v1, v0, s[76:79], 0 offen")
    a(f"{lab}:")

DBGSUB = 0

def cyc(a, k):
    import common
    if common.STAMP:
        a(f"s_memtime s[{92+2*k}:{93+2*k}]")
        a("s_waitcnt lgkmcnt(0)")

def clk(a, k):
    import common
    if common.STAMP:
        a("s_memrealtime s[96:97]")
        a("s_memtime s[98:99]")
        a("s_waitcnt lgkmcnt(0)")
        a(f"s_mov_b32 s{62+2*k}, s96")
        a(f"s_mov_b32 s{63+2*k}, s98")

def clk_flush(a, n, base):
    import common
    if not common.STAMP: return
    a("s_mov_b32 s76, s20")
    a("s_and_b32 s77, s21, 0xffff")
    a(f"s_mov_b32 s78, {WS_BYTES}")
    a("s_mov_b32 s79, 0x20000")
    a("s_lshl_b32 s75, s2, 2")
    a("s_add_u32 s75, s75, s3")
    a("s_lshl_b32 s75, s75, 6")
    a(f"s_add_u32 s75, s75, {base}")
    a("v_mov_b32 v0, 0")
    for k in range(2 * n):
        a(f"v_mov_b32 v1, s{62+k}")
        a(f"buffer_store_dword v1, v0, s[76:79], s75 offen offset:{4*k}")
```

```python
from common import *

XN_OFF, HS_OFF, HS_PITCH = 0, 8192, 1088
K1_LDS = HS_OFF + 8 * HS_PITCH
WP_PITCH = 144
OPT = dict(st="", pf_w1=True, pf_code=True)

def code_prefetch(a, label_start, nbytes, vtmp, stmp):
    here = f"pf_{len(a.lines)}"
    a(f"s_getpc_b64 s[{stmp}:{stmp+1}]")
    a(f"{here}:")
    a(f"s_add_u32 s{stmp}, s{stmp}, {label_start}-{here}")
    a(f"s_addc_u32 s{stmp+1}, s{stmp+1}, 0")
    a(f"v_lshlrev_b32 v{vtmp}, 6, v1")
    for k in range((nbytes + 4095) // 4096):
        a(f"global_load_dword v{vtmp+1}, v{vtmp}, s[{stmp}:{stmp+1}]")
        if (k + 1) * 4096 < nbytes: a(f"v_add_u32 v{vtmp}, 0x1000, v{vtmp}")

def gen_k1(name="k1_kernel"):
    a = Asm()
    P = name
    ST = OPT["st"]
    stamp(a, 0)
    a(f"""
s_load_dwordx16 s[4:19], s[0:1], 0
s_load_dwordx2 s[20:21], s[0:1], 80
s_cmp_ge_u32 s2, 512
s_cbranch_scc1 {P}_done
v_lshrrev_b32 v2, 6, v0
v_and_b32 v1, 63, v0
v_readfirstlane_b32 s3, v2
s_cmp_ge_u32 s2, 256
s_cbranch_scc1 {P}_helper
""")
    C, NS, A2, TC, TS = 16, 20, 24, 28, 32
    VO, MK = 36, 38
    a(";;AUTO_BEGIN")
    a(f"""
s_and_b32 s22, s2, 7
s_lshl_b32 s22, s22, 5
s_lshr_b32 s23, s2, 3
s_add_u32 s22, s22, s23
s_lshl_b32 s23, s22, 3
s_lshl_b32 s44, s3, 1
s_add_u32 s44, s44, s23
s_lshl_b32 s44, s44, 10
v_lshlrev_b32 v3, 4, v1
s_and_b32 s45, s3, 1
s_lshr_b32 s46, s3, 1
v_and_b32 v4, 15, v1
v_lshrrev_b32 v5, 4, v1
s_lshl_b32 s47, s45, 4
v_add_u32 v6, s47, v4
v_cvt_f32_u32 v40, v6
v_mul_f32 v40, {f32(1/32)}, v40
v_lshlrev_b32 v41, 2, v5
v_cvt_f32_u32 v41, v41
v_mul_f32 v42, v41, v40
v_mul_f32 v43, {f32(16.0)}, v40
v_add_f32 v43, v43, v42
""")
    for j in range(8):
        src = 42 if j < 4 else 43
        if j % 4 == 0: a(f"v_mov_b32 v{44+j}, v{src}")
        else: a(f"v_add_f32 v{44+j}, v{44+j-1}, v40")
    a("s_waitcnt lgkmcnt(0)")
    srd(a, 24, 4, 2048 * 1024)
    a("buffer_load_dwordx4 v[8:11], v3, s[24:27], s44 offen")
    a("buffer_load_dwordx4 v[12:15], v3, s[24:27], s44 offen offset:1024")
    srd(a, 28, 20, WS_BYTES)
    for j in range(8): a(f"v_cos_f32 v{52+j}, v{44+j}")
    for j in range(8): a(f"v_sin_f32 v{44+j}, v{44+j}")
    for j in range(4): a(f"v_cvt_pk_bf16_f32 v{C+j}, v{52+2*j}, v{53+2*j}")
    for j in range(4): a(f"v_cvt_pk_bf16_f32 v{NS+j}, -v{44+2*j}, -v{45+2*j}")
    a(f"""
v_lshrrev_b32 v44, 1, v4
v_cvt_f32_u32 v44, v44
v_mul_f32 v44, {f32(1/16)}, v44
v_mul_f32 v45, v41, v44
v_add_f32 v46, v45, v44
v_add_f32 v47, v46, v44
v_add_f32 v48, v47, v44
v_and_b32 v49, 1, v4
v_cmp_eq_u32 vcc, 1, v49
""")
    for j in range(4): a(f"v_cos_f32 v{52+j}, v{45+j}")
    for j in range(4): a(f"v_sin_f32 v{56+j}, v{45+j}")
    for j in range(4):
        a(f"v_sub_f32 v{60}, 0, v{56+j}")
        a(f"v_cndmask_b32 v{44+j}, v{52+j}, v60, vcc")
        a(f"v_cndmask_b32 v{48+j}, v{56+j}, v{52+j}, vcc")
    for j in range(4): a(f"v_cvt_pk_bf16_f32 v{A2+j}, v{44+2*j}, v{45+2*j}")
    a(f"""
v_cmp_eq_u32 vcc, 0, v6
v_mov_b32 v44, 0x100
v_cndmask_b32 v44, v6, v44, vcc
v_cvt_f32_u32 v44, v44
v_mul_f32 v44, {f32(1/512)}, v44
v_mul_f32 v45, v41, v44
v_add_f32 v46, v45, v44
v_add_f32 v47, v46, v44
v_add_f32 v48, v47, v44
""")
    for i in range(4): a(f"v_cos_f32 v{TC+i}, v{45+i}")
    for i in range(4): a(f"v_sin_f32 v{TS+i}, v{45+i}")
    a("s_mov_b64 s[48:49], vcc")
    for ip in range(2):
        a(f"""
v_lshlrev_b32 v44, 1, v5
v_add_u32 v44, {ip}, v44
v_lshlrev_b32 v45, 5, v44
v_add_u32 v46, v6, v45
v_sub_u32 v47, 0x100, v45
v_cmp_lt_u32 vcc, 0, v44
s_and_b64 vcc, vcc, s[48:49]
v_cndmask_b32 v46, v46, v47, vcc
v_lshlrev_b32 v{VO+ip}, 5, v46
v_mov_b32 v47, 0x80008000
v_cndmask_b32 v{MK+ip}, 0, v47, vcc
""")
    a(f"""
s_lshl_b32 s50, s22, 13
s_lshl_b32 s51, s46, 3
s_add_u32 s50, s50, s51
s_add_u32 s50, s50, {WS_YT}
s_lshr_b32 s52, s22, 1
s_lshl_b32 s52, s52, 11
s_and_b32 s53, s22, 1
s_lshl_b32 s53, s53, 9
s_add_u32 s52, s52, s53
s_lshl_b32 s53, s3, 19
s_add_u32 s52, s52, s53
s_add_u32 s52, s52, {WS_H}
s_add_u32 s53, s52, 262144
s_lshl_b32 s54, s3, 11
v_add_u32 v2, s54, v3
s_mul_i32 s54, s3, {2*HS_PITCH}
s_add_u32 s54, s54, {HS_OFF}
v_add_u32 v7, s54, v3
v_bfe_u32 v44, v1, 2, 2
v_mul_u32_u24 v40, {HS_PITCH}, v44
v_lshrrev_b32 v44, 5, v1
v_lshlrev_b32 v44, 6, v44
v_add_u32 v40, v40, v44
v_and_b32 v44, 1, v1
v_lshlrev_b32 v44, 5, v44
v_add_u32 v40, v40, v44
v_bfe_u32 v44, v1, 4, 1
v_lshlrev_b32 v44, 4, v44
v_add_u32 v40, v40, v44
v_bfe_u32 v44, v1, 1, 1
v_lshlrev_b32 v44, 3, v44
v_add_u32 v40, v40, v44
s_lshl_b32 s54, s3, 8
s_add_u32 s54, s54, {HS_OFF}
v_add_u32 v40, s54, v40
v_lshrrev_b32 v44, 5, v1
v_lshlrev_b32 v44, 10, v44
v_and_b32 v45, 31, v1
v_lshlrev_b32 v45, 4, v45
v_add_u32 v41, v44, v45
s_lshl_b32 s54, s46, 12
v_lshlrev_b32 v42, 3, v1
v_add_u32 v42, s54, v42
v_mov_b32 v43, {f32(1/512)}
""")
    X = [64, 72]
    stamp(a, 1)
    for r in range(2):
        for k in range(4):
            a(f"v_lshlrev_b32 v{X[r]+2*k}, 16, v{8+4*r+k}")
            a(f"v_and_b32 v{X[r]+2*k+1}, 0xffff0000, v{8+4*r+k}")
    stamp(a, 2)
    SUM = [80, 84]; SQ = [82, 86]
    for r in range(2):
        a(f"v_pk_add_f32 v[{SUM[r]}:{SUM[r]+1}], v[{X[r]}:{X[r]+1}], v[{X[r]+2}:{X[r]+3}]")
        a(f"v_pk_mul_f32 v[{SQ[r]}:{SQ[r]+1}], v[{X[r]}:{X[r]+1}], v[{X[r]}:{X[r]+1}]")
    for k in (1, 2, 3):
        for r in range(2):
            if k > 1: a(f"v_pk_add_f32 v[{SUM[r]}:{SUM[r]+1}], v[{SUM[r]}:{SUM[r]+1}], v[{X[r]+2*k}:{X[r]+2*k+1}]")
            a(f"v_pk_fma_f32 v[{SQ[r]}:{SQ[r]+1}], v[{X[r]+2*k}:{X[r]+2*k+1}], v[{X[r]+2*k}:{X[r]+2*k+1}], v[{SQ[r]}:{SQ[r]+1}]")
    red = []
    for r in range(2):
        a(f"v_add_f32 v{SUM[r]}, v{SUM[r]}, v{SUM[r]+1}")
        a(f"v_add_f32 v{SQ[r]}, v{SQ[r]}, v{SQ[r]+1}")
        red += [SUM[r], SQ[r]]
    for step in ("row_shr:1", "row_shr:2", "row_shr:4", "row_shr:8"):
        for v in red: a(f"v_add_f32_dpp v{v}, v{v}, v{v} {step} row_mask:0xf bank_mask:0xf")
    for v in red: a(f"v_add_f32_dpp v{v}, v{v}, v{v} row_bcast:15 row_mask:0xa bank_mask:0xf")
    for v in red: a(f"v_add_f32_dpp v{v}, v{v}, v{v} row_bcast:31 row_mask:0xc bank_mask:0xf")
    for k, v in enumerate(red): a(f"v_readlane_b32 s{56+k}, v{v}, 63")
    for r in range(2):
        b = 88 + 8 * r
        a(f"v_mul_f32 v{b}, s{56+2*r}, v43")
        a(f"v_mul_f32 v{b+1}, s{57+2*r}, v43")
    for r in range(2):
        b = 88 + 8 * r
        a(f"v_fma_f32 v{b+1}, -v{b}, v{b}, v{b+1}")
    for r in range(2):
        b = 88 + 8 * r
        a(f"v_max_f32 v{b+1}, 0, v{b+1}")
    for r in range(2):
        b = 88 + 8 * r
        a(f"v_add_f32 v{b+2}, {f32(1e-5)}, v{b+1}")
    for r in range(2):
        b = 88 + 8 * r
        a(f"v_rsq_f32 v{b+4}, v{b+2}")
    for r in range(2):
        b = 88 + 8 * r
        a(f"v_mul_f32 v{b+2}, v{b+4}, v{b+4}")
    for r in range(2):
        b = 88 + 8 * r
        a(f"v_mul_f32 v{b+6}, -v{b}, v{b+4}")
        a(f"v_mul_f32 v{b+2}, v{b+2}, v{b+1}")
    for r in range(2):
        b = 88 + 8 * r
        a(f"v_add_f32 v{b+2}, {f32(1e-5)}, v{b+2}")
    for r in range(2):
        b = 88 + 8 * r
        a(f"v_rsq_f32 v{b+3}, v{b+2}")
    for r in range(2):
        b = 88 + 8 * r
        XN = 104 + 16 * r
        for k in range(4):
            a(f"v_pk_fma_f32 v[{XN+2*k}:{XN+2*k+1}], v[{X[r]+2*k}:{X[r]+2*k+1}], v[{b+4}:{b+5}], v[{b+6}:{b+7}] op_sel:[0,0,0] op_sel_hi:[1,0,0]")
        for k in range(4): a(f"v_cvt_pk_bf16_f32 v{8+4*r+k}, v{XN+2*k}, v{XN+2*k+1}")
        a(f"ds_write_b128 v2, v[{8+4*r}:{11+4*r}] offset:{XN_OFF+1024*r}")
    for r in range(2):
        b = 88 + 8 * r
        a(f"v_mul_f32 v{b+5}, v{b+4}, v{b+3}")
        a(f"v_mul_f32 v{b+7}, -v{b}, v{b+5}")
    for r in range(2):
        b = 88 + 8 * r
        HH = 112 + 16 * r
        for k in range(4):
            a(f"v_pk_fma_f32 v[{HH+2*k}:{HH+2*k+1}], v[{X[r]+2*k}:{X[r]+2*k+1}], v[{b+4}:{b+5}], v[{b+6}:{b+7}] op_sel:[0,1,1] op_sel_hi:[1,1,1]")
        for k in range(4): a(f"v_cvt_pk_bf16_f32 v{136+4*r+k}, v{HH+2*k}, v{HH+2*k+1}")
        a(f"ds_write_b128 v7, v[{136+4*r}:{139+4*r}] offset:{HS_PITCH*r}")
    a("s_waitcnt lgkmcnt(0)")
    a("s_barrier")
    stamp(a, 3)
    for rho in range(4):
        for rd in range(2):
            a(f"ds_read_b64_tr_b16 v[{64+4*rho+2*rd}:{65+4*rho+2*rd}], v42 offset:{XN_OFF+1024*rho+512*rd}")
    for ii in range(2):
        for rd in range(2):
            a(f"ds_read_b64_tr_b16 v[{144+4*ii+2*rd}:{145+4*ii+2*rd}], v40 offset:{128*ii+4*HS_PITCH*rd}")
    TR, TI = 80, 96
    for rho in range(4):
        a(f"v_mfma_f32_16x16x32_bf16 v[{TR+4*rho}:{TR+4*rho+3}], v[{64+4*rho}:{67+4*rho}], v[{C}:{C+3}], 0")
        a(f"v_mfma_f32_16x16x32_bf16 v[{TI+4*rho}:{TI+4*rho+3}], v[{64+4*rho}:{67+4*rho}], v[{NS}:{NS+3}], 0")
    a(f"buffer_store_dwordx4 v[144:147], v41, s[28:31], s52 offen {ST}")
    a(f"buffer_store_dwordx4 v[148:151], v41, s[28:31], s53 offen {ST}")
    BB = 64; XO = 124
    for rho in range(4):
        tr, ti = TR + 4 * rho, TI + 4 * rho
        PR, PI, TT = 112, 116, 120
        if rho & 1: PR, PI, TT = 152, 156, 160
        for p in range(2):
            o = 2 * p
            a(f"v_pk_mul_f32 v[{TT}:{TT+1}], v[{ti+o}:{ti+o+1}], v[{TS+o}:{TS+o+1}]")
            a(f"v_pk_mul_f32 v[{TT+2}:{TT+3}], v[{tr+o}:{tr+o+1}], v[{TS+o}:{TS+o+1}]")
            a(f"v_pk_fma_f32 v[{PR+o}:{PR+o+1}], v[{tr+o}:{tr+o+1}], v[{TC+o}:{TC+o+1}], v[{TT}:{TT+1}]")
            a(f"v_pk_fma_f32 v[{PI+o}:{PI+o+1}], v[{ti+o}:{ti+o+1}], v[{TC+o}:{TC+o+1}], v[{TT+2}:{TT+3}] neg_lo:[0,0,1] neg_hi:[0,0,1]")
        b = BB + 4 * rho
        a(f"v_cvt_pk_bf16_f32 v{b}, v{PR}, v{PR+1}")
        a(f"v_cvt_pk_bf16_f32 v{b+1}, v{PR+2}, v{PR+3}")
        a(f"v_cvt_pk_bf16_f32 v{b+2}, v{PI}, v{PI+1}")
        a(f"v_cvt_pk_bf16_f32 v{b+3}, v{PI+2}, v{PI+3}")
        a(f"v_mfma_f32_16x16x32_bf16 v[{XO+4*rho}:{XO+4*rho+3}], v[{A2}:{A2+3}], v[{b}:{b+3}], 0")
    for i in range(4):
        o = 144 + 2 * i
        a(f"v_cvt_pk_bf16_f32 v{o}, v{XO+i}, v{XO+4+i}")
        a(f"v_cvt_pk_bf16_f32 v{o+1}, v{XO+8+i}, v{XO+12+i}")
        if i & 1:
            a(f"v_xor_b32 v{o}, v{MK+(i>>1)}, v{o}")
            a(f"v_xor_b32 v{o+1}, v{MK+(i>>1)}, v{o+1}")
        a(f"buffer_store_dwordx2 v[{o}:{o+1}], v{VO+(i>>1)}, s[28:31], s50 offen offset:{16*(i&1)} {ST}")
    a(";;AUTO_END")
    stamp(a, 4)
    stamp_flush(a, 0, 5)
    a("s_endpgm")

    a(f"{P}_helper:")
    a(f"""
s_sub_u32 s22, s2, 256
s_and_b32 s23, s22, 7
s_lshr_b32 s44, s22, 3
s_and_b32 s45, s44, 3
s_lshr_b32 s44, s44, 2
s_lshl_b32 s44, s44, 3
s_add_u32 s44, s44, s23
s_and_b32 s46, s44, 1
s_bfe_u32 s47, s44, 0x10001
s_bfe_u32 s48, s44, 0x20002
s_lshr_b32 s49, s44, 4
s_lshl_b32 s49, s49, 3
s_lshl_b32 s50, s46, 5
s_add_u32 s50, s50, s49
s_lshl_b32 s51, s3, 1
s_add_u32 s50, s50, s51
s_lshl_b32 s51, s47, 10
s_add_u32 s50, s50, s51
s_lshl_b32 s51, s48, 8
s_add_u32 s50, s50, s51
s_mul_i32 s50, s50, 514
s_lshl_b32 s57, s45, 6
v_add_u32 v3, s57, v1
v_mov_b32 v4, 0x100
v_cmp_eq_u32 vcc, 0, v3
v_cndmask_b32 v4, v3, v4, vcc
v_lshlrev_b32 v4, 1, v4
s_waitcnt lgkmcnt(0)
""")
    srd(a, 32, 6, 2048 * 514)
    srd(a, 36, 8, 2048 * 514)
    srd(a, 28, 20, WS_BYTES)
    for ii in range(4):
        if ii: a(f"s_add_u32 s50, s50, {64*514}")
        for nn in range(2):
            a(f"buffer_load_ushort v{8+8*nn+2*ii}, v4, s[32:35], s50 offen offset:{514*nn}")
            a(f"buffer_load_ushort v{9+8*nn+2*ii}, v4, s[36:39], s50 offen offset:{514*nn}")
    NPF = 16 if OPT["pf_w1"] else 0
    if OPT["pf_w1"]:
        srd(a, 40, 12, 2048 * 3584)
        a(f"""
s_lshr_b32 s58, s23, 1
s_mul_i32 s58, s58, 896
s_lshr_b32 s59, s22, 3
s_lshl_b32 s59, s59, 2
s_add_u32 s59, s59, s3
s_mul_i32 s59, s59, {16*3584}
s_add_u32 s58, s58, s59
v_cmp_gt_u32 vcc, 56, v1
v_lshlrev_b32 v70, 4, v1
v_mov_b32 v71, 0x7fffff00
v_cndmask_b32 v70, v71, v70, vcc
""")
        for k in range(16):
            a(f"buffer_load_dwordx4 v[72:75], v70, s[40:43], s58 offen")
            if k < 15: a(f"s_add_u32 s58, s58, 3584")
    a("s_mov_b32 s62, 0")
    a("s_mov_b32 s54, 0")
    a("s_mov_b32 s56, 0")
    a("v_lshlrev_b32 v33, 4, v1")
    a(f"""
s_lshl_b32 s51, s46, 12
s_lshl_b32 s52, s48, 10
s_add_u32 s51, s51, s52
s_lshl_b32 s52, s47, 5
s_add_u32 s52, s52, s49
s_lshl_b32 s52, s52, 4
s_add_u32 s51, s51, s52
s_add_u32 s51, s51, {WS_WT}
s_lshl_b32 s52, s45, 19
s_add_u32 s51, s51, s52
""")
    a(f"""
s_cmp_ge_u32 s3, 2
s_cbranch_scc1 {P}_tabs
s_lshr_b32 s52, s22, 5
s_and_b32 s53, s22, 31
v_and_b32 v24, 31, v1
v_lshrrev_b32 v25, 5, v1
v_bfe_u32 v26, v24, 2, 1
v_lshlrev_b32 v26, 4, v26
v_lshrrev_b32 v27, 3, v24
v_lshlrev_b32 v27, 2, v27
v_add_u32 v26, v26, v27
v_and_b32 v27, 3, v24
v_add_u32 v26, v26, v27
s_lshl_b32 s54, s52, 6
s_lshl_b32 s55, s3, 5
s_add_u32 s54, s54, s55
v_add_u32 v26, s54, v26
s_lshl_b32 s55, s53, 3
v_lshlrev_b32 v27, 1, v25
v_add_u32 v27, s55, v27
v_mov_b32 v40, 0x100
""")
    for jj, dc in enumerate((0, 1, 4, 5)):
        a(f"""
v_add_u32 v28, {dc}, v27
v_cmp_eq_u32 vcc, 0, v28
v_cndmask_b32 v29, v28, v40, vcc
v_cndmask_b32 v30, 2.0, 1.0, vcc
v_mul_u32_u24 v29, v29, v26
v_and_b32 v29, 0x1ff, v29
v_cvt_f32_u32 v29, v29
v_mul_f32 v29, {f32(1/512)}, v29
v_cos_f32 v31, v29
v_sin_f32 v32, v29
v_mul_f32 v31, v31, v30
v_mul_f32 v32, v32, v30
v_cvt_pk_bf16_f32 v{36+jj}, v31, -v32
""")
    a(f"""
s_mul_i32 s54, s52, 144
s_add_u32 s54, s54, s53
s_add_u32 s54, s54, 112
s_lshl_b32 s54, s54, 1
s_add_u32 s54, s54, s3
s_lshl_b32 s54, s54, 10
s_add_u32 s54, s54, {WS_G}
v_lshlrev_b32 v33, 4, v1
s_mov_b32 s62, 1
s_branch {P}_wfin
""")
    a(f"{P}_tabs:")
    a(f"""
v_and_b32 v24, 31, v1
v_lshrrev_b32 v25, 5, v1
v_bfe_u32 v26, v24, 2, 1
v_lshlrev_b32 v26, 4, v26
v_lshrrev_b32 v27, 3, v24
v_lshlrev_b32 v27, 2, v27
v_add_u32 v26, v26, v27
v_and_b32 v27, 3, v24
v_add_u32 v26, v26, v27
v_lshlrev_b32 v33, 4, v1
s_cmp_ge_u32 s22, 16
s_cbranch_scc1 {P}_tab64
s_lshr_b32 s52, s22, 3
s_and_b32 s53, s22, 7
s_lshl_b32 s54, s22, 10
s_cmp_eq_u32 s3, 3
s_cbranch_scc1 {P}_tw2
s_lshl_b32 s55, s52, 5
v_add_u32 v28, s55, v24
v_lshlrev_b32 v29, 4, v25
s_lshl_b32 s55, s53, 1
v_add_u32 v29, s55, v29
v_add_u32 v30, 1, v29
v_mul_u32_u24 v29, v29, v28
v_mul_u32_u24 v30, v30, v28
v_mov_b32 v31, 1.0
s_add_u32 s54, s54, {WS_TB+TB_TW1}
s_branch {P}_twfin
""")
    a(f"{P}_tw2:")
    a(f"""
s_lshl_b32 s55, s52, 5
s_lshr_b32 s56, s53, 1
s_lshl_b32 s56, s56, 3
s_add_u32 s55, s55, s56
s_and_b32 s56, s53, 1
s_lshl_b32 s56, s56, 1
s_add_u32 s55, s55, s56
v_lshlrev_b32 v29, 2, v25
v_add_u32 v29, s55, v29
v_add_u32 v30, 1, v29
v_mul_u32_u24 v29, v29, v26
v_mul_u32_u24 v30, v30, v26
v_mov_b32 v31, {f32(2.0**-20)}
s_add_u32 s54, s54, {WS_TB+TB_TW2}
""")
    a(f"{P}_twfin:")
    a(f"""
v_cvt_f32_u32 v29, v29
v_cvt_f32_u32 v30, v30
v_mul_f32 v29, {f32(1/2048)}, v29
v_mul_f32 v30, {f32(1/2048)}, v30
v_cos_f32 v36, v29
v_cos_f32 v37, v30
v_sin_f32 v38, v29
v_sin_f32 v39, v30
v_mul_f32 v36, v36, v31
v_mul_f32 v37, v37, v31
v_mul_f32 v38, v38, v31
v_mul_f32 v39, v39, v31
s_mov_b32 s62, 1
s_branch {P}_wfin
""")
    a(f"{P}_tab64:")
    a(f"""
s_cmp_eq_u32 s3, 3
s_cbranch_scc1 {P}_wfin
s_cmp_ge_u32 s22, 26
s_cbranch_scc1 {P}_wfin
s_cmp_ge_u32 s22, 24
s_cbranch_scc1 {P}_tab32
s_sub_u32 s52, s22, 16
s_lshr_b32 s53, s52, 1
s_and_b32 s55, s52, 1
s_lshl_b32 s55, s55, 5
v_add_u32 v28, s55, v24
s_lshl_b32 s55, s53, 4
v_lshlrev_b32 v29, 2, v25
v_add_u32 v29, s55, v29
s_lshl_b32 s54, s52, 10
s_add_u32 s54, s54, {WS_TB+TB_C64}
s_mov_b32 s56, 8192
v_mov_b32 v31, {f32(1/64)}
v_mov_b32 v34, 4
s_branch {P}_tabfin
""")
    a(f"{P}_tab32:")
    a(f"""
s_sub_u32 s52, s22, 24
v_mov_b32 v28, v26
s_lshl_b32 s55, s52, 3
v_lshlrev_b32 v29, 4, v25
v_add_u32 v29, s55, v29
s_lshl_b32 s54, s52, 10
s_add_u32 s54, s54, {WS_TB+TB_C32}
s_mov_b32 s56, 2048
v_mov_b32 v31, {f32(1/32)}
v_mov_b32 v34, 0
""")
    a(f"{P}_tabfin:")
    a("v_cvt_f32_u32 v35, v28")
    a("v_mul_f32 v35, v35, v31")
    for j in range(8):
        a(f"v_add_u32 v30, {(j&3) + 4*(j>>2)}, v29")
        if j >= 4: a("v_add_u32 v30, v30, v34")
        a("v_cvt_f32_u32 v30, v30")
        a("v_mul_f32 v30, v30, v35")
        a("v_fract_f32 v30, v30")
        a(f"v_cos_f32 v{40+j}, v30")
        a(f"v_sin_f32 v{48+j}, v30")
    for j in range(4): a(f"v_cvt_pk_bf16_f32 v{36+j}, v{40+2*j}, v{41+2*j}")
    for j in range(4): a(f"v_cvt_pk_bf16_f32 v{56+j}, v{48+2*j}, v{49+2*j}")
    for j in range(4): a(f"v_cvt_pk_bf16_f32 v{60+j}, -v{48+2*j}, -v{49+2*j}")
    a("s_mov_b32 s62, 3")
    a(f"{P}_wfin:")
    a(f"""
v_mul_u32_u24 v5, {WP_PITCH}, v1
s_lshl_b32 s52, s3, 5
v_add_u32 v5, s52, v5
v_lshrrev_b32 v6, 3, v1
s_lshl_b32 s52, s3, 4
v_add_u32 v6, s52, v6
v_and_b32 v7, 7, v1
v_lshlrev_b32 v7, 4, v7
v_mul_u32_u24 v80, {WP_PITCH}, v6
v_add_u32 v80, v80, v7
v_lshlrev_b32 v81, 13, v6
v_add_u32 v81, v81, v7
s_waitcnt vmcnt({NPF})
""")
    for nn in range(2):
        for ii in range(4):
            a(f"v_lshl_or_b32 v{64+4*nn+ii}, v{9+8*nn+2*ii}, 16, v{8+8*nn+2*ii}")
        a(f"ds_write_b128 v5, v[{64+4*nn}:{67+4*nn}] offset:{16*nn}")
    a("s_waitcnt lgkmcnt(0)")
    a("s_barrier")
    a(f"ds_read_b128 v[64:67], v80")
    a(f"ds_read_b128 v[68:71], v80 offset:{8*WP_PITCH}")
    a("s_add_u32 s52, s51, 65536")
    a("s_waitcnt lgkmcnt(1)")
    a(f"buffer_store_dwordx4 v[64:67], v81, s[28:31], s51 offen {ST}")
    a("s_waitcnt lgkmcnt(0)")
    a(f"buffer_store_dwordx4 v[68:71], v81, s[28:31], s52 offen {ST}")
    a(f"""
s_cmp_eq_u32 s62, 0
s_cbranch_scc1 {P}_tdone
buffer_store_dwordx4 v[36:39], v33, s[28:31], s54 offen {ST}
s_cmp_eq_u32 s62, 1
s_cbranch_scc1 {P}_tdone
s_add_u32 s54, s54, s56
buffer_store_dwordx4 v[56:59], v33, s[28:31], s54 offen {ST}
s_add_u32 s54, s54, s56
buffer_store_dwordx4 v[60:63], v33, s[28:31], s54 offen {ST}
""")
    a(f"{P}_tdone:")
    if OPT["pf_code"]:
        a("s_cmp_ge_u32 s22, 8")
        a(f"s_cbranch_scc1 {P}_nopf")
        a("s_cmp_lg_u32 s3, 3")
        a(f"s_cbranch_scc1 {P}_nopf")
        code_prefetch(a, "k2_kernel", 16384, 76, 60)
        code_prefetch(a, "k3_kernel", 12288, 78, 62)
        a(f"{P}_nopf:")
    stamp(a, 1); stamp(a, 2); stamp(a, 3); stamp(a, 4)
    stamp_flush(a, 0, 5)
    a(f"{P}_done:")
    a("s_endpgm")
    text = a.finalize()
    errs = check_waits(a.ins)
    for tk in ([f"{P}_helper"], [f"{P}_helper", f"{P}_tabs"], [f"{P}_helper", f"{P}_tabs", f"{P}_tw2"],
               [f"{P}_helper", f"{P}_tabs", f"{P}_tab64"], [f"{P}_helper", f"{P}_tabs", f"{P}_tab64", f"{P}_tab32"]):
        errs += check_waits(a.ins, take=tk)
    assert not errs
    return header(name) + text, descriptor(name, 168, 102)

if __name__ == "__main__":
    t, d = gen_k1()
    print(len(t.splitlines()))
```

```python
from common import *
from gemm import *
from asmlib import interleave

K2_LDS = 131072
DEPTH = 8
C1 = -2.0 * 0.7978845608028654 * 1.4426950408889634
C2 = C1 * 0.044715
OPT = dict(st="", pf_w2=True, filt="", prio=0, depth=8, m16=False, nomfma=False)

def reduce_addrs(a):
    a(f"""
v_lshlrev_b32 v8, 4, v1
s_xor_b32 s53, s3, 1
s_mul_i32 s53, s53, 12288
v_add_u32 v9, s53, v8
s_xor_b32 s53, s3, 2
s_mul_i32 s53, s53, 12288
s_add_u32 s53, s53, 4096
v_add_u32 v10, s53, v8
s_xor_b32 s53, s3, 3
s_mul_i32 s53, s53, 12288
s_add_u32 s53, s53, 8192
v_add_u32 v11, s53, v8
s_mul_i32 s53, s3, 12288
v_add_u32 v12, s53, v8
""")

def gemm1(a, P):
    ST = OPT["st"]
    a(f"""
s_cmp_ge_u32 s3, 4
s_cbranch_scc1 {P}_done
s_sub_u32 s23, s23, 4
s_and_b32 s44, s22, 1
s_lshl_b32 s44, s44, 2
s_and_b32 s45, s23, 3
s_add_u32 s44, s44, s45
s_lshr_b32 s45, s22, 1
s_mul_i32 s45, s45, 7
s_lshr_b32 s46, s23, 2
s_add_u32 s45, s45, s46
""")
    lane_dma_offsets(a, 2, 3, 3584)
    tr_addr(a, 5, 8)
    a(f"""
s_lshr_b32 s47, s3, 1
s_and_b32 s48, s3, 1
s_lshl_b32 s49, s47, 6
v_xor_b32 v5, s49, v5
s_lshl_b32 s50, s3, 14
v_add_u32 v5, s50, v5
v_xor_b32 v6, 64, v5
v_lshlrev_b32 v8, 4, v1
s_lshl_b32 s49, s48, 10
v_add_u32 v4, s49, v8
s_xor_b32 s49, s49, 1024
v_add_u32 v7, s49, v8
s_mul_i32 s51, s3, {512*3584}
s_lshl_b32 s52, s45, 7
s_add_u32 s51, s51, s52
s_lshl_b32 s52, s44, 18
s_lshl_b32 s53, s3, 16
s_add_u32 s52, s52, s53
s_add_u32 s52, s52, {WS_H}
v_lshrrev_b32 v13, 5, v1
v_lshlrev_b32 v13, 3, v13
s_lshl_b32 s56, s45, 7
s_lshl_b32 s54, s47, 6
s_add_u32 s56, s56, s54
s_waitcnt lgkmcnt(0)
""")
    srd(a, 24, 12, 2048 * 3584)
    srd(a, 36, 20, WS_BYTES)
    def dma(slot, k):
        v, off = (2, "") if k == 0 else (3, " offset:1024")
        a(f"buffer_load_dwordx4 v{v}, s[24:27], s51 offen{off} lds ; @def=w{slot}")
    def hload(slot, k):
        a(f"buffer_load_dwordx4 v[{BR+8*slot+4*k}:{BR+8*slot+4*k+3}], v{4 if k == 0 else 7}, s[36:39], s52 offen")
    def advance():
        a(f"s_add_u32 s51, s51, {16*3584}")
        a(f"s_add_u32 s52, s52, 2048")
    def issue(slot):
        a(f"s_add_u32 m0, s50, {slot*2048}")
        dma(slot, 0); dma(slot, 1); hload(slot, 0); hload(slot, 1); advance()
    def trreads(slot, p):
        for bf in range(2):
            for rd in range(2):
                d = AR + 8 * p + 4 * bf + 2 * rd
                a(f"ds_read_b64_tr_b16 v[{d}:{d+1}], v{5+bf} offset:{slot*2048+rd*512} ; @use=w{slot}")
    for s in range(DEPTH): issue(s)
    srd(a, 32, 14, 1792 * 2)
    srd(a, 28, 20, WS_BYTES)
    for g in range(4):
        a(f"buffer_load_dwordx2 v[{16+2*g}:{17+2*g}], v13, s[32:35], s56 offen offset:{16*g}")
    for i in range(64): a(f"v_mov_b32 v{ACC+i}, 0")
    reduce_addrs(a)
    stamp(a, 1)
    a(f"s_waitcnt vmcnt({4*(DEPTH-1)+4})")
    stamp(a, 2)
    cyc(a, 0)
    trreads(0, 0)
    def step(j, wait, load, last=False):
        a(f"s_waitcnt vmcnt({wait})")
        if not last:
            trreads((j + 1) % DEPTH, (j + 1) & 1)
            if load: a(f"s_add_u32 m0, s50, {j*2048}")
            a("s_waitcnt lgkmcnt(4)")
        else:
            a("s_waitcnt lgkmcnt(0)")
        p = j & 1
        order = [(0, 0), (1, 0), (0, 1), (1, 1)]
        for n, (bf, bd) in enumerate(order):
            acc = ACC + 16 * (2 * bf + bd)
            A = AR + 8 * p + 4 * bf; B = BR + 8 * j + 4 * bd
            if OPT["m16"]:
                a(f"v_mfma_f32_16x16x32_bf16 v[{acc}:{acc+3}], v[{A}:{A+3}], v[{B}:{B+3}], v[{acc}:{acc+3}]")
                a(f"v_mfma_f32_16x16x32_bf16 v[{acc+4}:{acc+7}], v[{A}:{A+3}], v[{B}:{B+3}], v[{acc+4}:{acc+7}]")
            elif not OPT["nomfma"]:
                a(f"v_mfma_f32_32x32x16_bf16 v[{acc}:{acc+15}], v[{A}:{A+3}], v[{B}:{B+3}], v[{acc}:{acc+15}]")
            if load:
                if n < 2: dma(j, n)
                else: hload(j, n - 2)
        if load: advance()
    a("s_mov_b32 s55, 0")
    a(f"{P}_gloop:")
    for j in range(DEPTH): step(j, 4 * (DEPTH - 2), True)
    a("s_add_u32 s55, s55, 1")
    a(f"s_cmp_lt_u32 s55, {32 // DEPTH - 1}")
    a(f"s_cbranch_scc1 {P}_gloop")
    for j in range(DEPTH): step(j, max(0, 4 * (DEPTH - 2 - j)), False, last=(j == DEPTH - 1))
    cyc(a, 1)
    stamp(a, 3)
    a("s_barrier")
    for b in (1, 2, 3):
        for g in range(4):
            r = ACC + 16 * b + 4 * g
            a(f"ds_write_b128 v{8+b}, v[{r}:{r+3}] offset:{1024*g}")
    for g in range(4):
        for k in range(2):
            a(f"v_lshlrev_b32 v{32+4*g+2*k}, 16, v{16+2*g+k}")
            a(f"v_and_b32 v{33+4*g+2*k}, 0xffff0000, v{16+2*g+k}")
    for k in range(8):
        a(f"v_pk_add_f32 v[{ACC+2*k}:{ACC+2*k+1}], v[{ACC+2*k}:{ACC+2*k+1}], v[{32+2*k}:{33+2*k}]")
    a(f"v_mov_b32 v14, {f32(C1)}")
    a(f"v_mov_b32 v16, {f32(C2)}")
    a("s_waitcnt lgkmcnt(0)")
    a("s_barrier")
    for b in range(3):
        for g in range(4):
            r = 128 + 16 * b + 4 * g
            a(f"ds_read_b128 v[{r}:{r+3}], v12 offset:{4096*b+1024*g}")
    for b in range(3):
        a(f"s_waitcnt lgkmcnt({8-4*b})")
        for k in range(8):
            r = 128 + 16 * b + 2 * k
            a(f"v_pk_add_f32 v[{ACC+2*k}:{ACC+2*k+1}], v[{ACC+2*k}:{ACC+2*k+1}], v[{r}:{r+1}]")
    pr = lambda b, k: f"v[{b+2*k}:{b+2*k+1}]"
    bc = " op_sel:[0,0,0] op_sel_hi:[1,0,0]"
    for k in range(8): a(f"v_pk_mul_f32 {pr(128,k)}, {pr(ACC,k)}, {pr(ACC,k)}")
    for k in range(8): a(f"v_pk_fma_f32 {pr(128,k)}, {pr(128,k)}, v[16:17], v[14:15]{bc}")
    for k in range(8): a(f"v_pk_mul_f32 {pr(128,k)}, {pr(128,k)}, {pr(ACC,k)}")
    for i in range(16): a(f"v_exp_f32 v{128+i}, v{128+i}")
    for k in range(8): a(f"v_pk_add_f32 {pr(128,k)}, {pr(128,k)}, 1.0 op_sel_hi:[1,0]")
    for i in range(16): a(f"v_rcp_f32 v{128+i}, v{128+i}")
    for k in range(8): a(f"v_pk_mul_f32 {pr(128,k)}, {pr(128,k)}, {pr(ACC,k)}")
    for k in range(8): a(f"v_cvt_pk_bf16_f32 v{144+k}, v{128+2*k}, v{129+2*k}")
    a(f"""
s_mul_i32 s53, s44, 144
s_lshl_b32 s54, s45, 2
s_add_u32 s53, s53, s54
s_lshl_b32 s54, s47, 1
s_add_u32 s53, s53, s54
s_lshl_b32 s53, s53, 1
s_add_u32 s53, s53, s48
s_lshl_b32 s53, s53, 10
s_add_u32 s53, s53, {WS_G}
v_lshlrev_b32 v8, 4, v1
buffer_store_dwordx4 v[144:147], v8, s[28:31], s53 offen {ST}
buffer_store_dwordx4 v[148:151], v8, s[28:31], s53 offen offset:2048 {ST}
""")
    stamp(a, 4)
    stamp_flush(a, 1, 5)
    a("s_endpgm")

YR, YI = 32, 48
PKT = (240, 32)
AC = 64
K32 = 8
KB = 128
WR = 152
TW = 184
TMP = 216
COLBASE = 65536
ZT2 = (AC, WR)

def cread(buf, offs, base=KB):
    return [f"ds_read_b128 v[{base+12*buf+4*k}:{base+12*buf+4*k+3}], v2 offset:{o} ; @use=tab" for k, o in enumerate(offs)]

def k64(u, T): return [TB_C64 + (2*u+T)*1024, TB_S64 + (2*u+T)*1024, TB_N64 + (2*u+T)*1024]
def k32(u): return [TB_C32 + u*1024, TB_S32 + u*1024, TB_N32 + u*1024]

def mf(d, x, y, first):
    return f"v_mfma_f32_32x32x16_bf16 v[{d}:{d+15}], v[{x}:{x+3}], v[{y}:{y+3}], " + ("0" if first else f"v[{d}:{d+15}]")

NEG = " neg_lo:[0,0,1] neg_hi:[0,0,1]"

def cmul(r, i, c, s_, t, conj_minus_on_re):
    if conj_minus_on_re:
        return [f"v_mul_f32 v{t}, v{i}, v{s_}", f"v_mul_f32 v{t+1}, v{i}, v{c}",
                f"v_fma_f32 v{t}, v{r}, v{c}, -v{t}", f"v_fmac_f32 v{t+1}, v{r}, v{s_}"]
    return [f"v_mul_f32 v{t}, v{r}, v{c}", f"v_mul_f32 v{t+1}, v{r}, v{s_}",
            f"v_fmac_f32 v{t}, v{i}, v{s_}", f"v_fma_f32 v{t+1}, v{i}, v{c}, -v{t+1}"]

def zip2(x, y):
    o = []
    for p, q in zip(x, y): o += [p, q]
    return o

def twiddle(T, table, conj):
    o = [f"ds_read_b128 v[{TW+4*e}:{TW+4*e+3}], v2 offset:{table + (T*8+e)*1024} ; @use=tab" for e in range(8)]
    re, im = AC + 32 * T, AC + 32 * T + 16
    for e in range(8):
        t = TMP + 4 * (e & 1)
        c0, c1, s0, s1 = TW + 4 * e, TW + 4 * e + 1, TW + 4 * e + 2, TW + 4 * e + 3
        o += zip2(cmul(re + 2 * e, im + 2 * e, c0, s0, t, conj), cmul(re + 2 * e + 1, im + 2 * e + 1, c1, s1, t + 2, conj))
        o += [f"v_cvt_pk_bf16_f32 v{PKT[T]+e}, v{t}, v{t+2}", f"v_cvt_pk_bf16_f32 v{PKT[T]+8+e}, v{t+1}, v{t+3}"]
    return o

def wmult(T):
    re, im = AC + 32 * T, AC + 32 * T + 16
    o = []
    for e in range(8):
        w0, w1 = WR + 16 * T + 2 * e, WR + 16 * T + 2 * e + 1
        t = TMP + 8 * (e & 1)
        o += [f"v_lshlrev_b32 v{t+4}, 16, v{w0}", f"v_and_b32 v{t+5}, 0xffff0000, v{w0}",
              f"v_lshlrev_b32 v{t+6}, 16, v{w1}", f"v_and_b32 v{t+7}, 0xffff0000, v{w1}"]
        o += zip2(cmul(re + 2 * e, im + 2 * e, t + 4, t + 5, t, True), cmul(re + 2 * e + 1, im + 2 * e + 1, t + 6, t + 7, t + 2, True))
        o += [f"v_cvt_pk_bf16_f32 v{PKT[T]+e}, v{t}, v{t+2}", f"v_cvt_pk_bf16_f32 v{PKT[T]+8+e}, v{t+1}, v{t+3}"]
    return o

def stage64(seq, data, dst, sign, n0=0):
    o = []
    for n, (T, u, first) in enumerate(seq):
        if n + 1 < len(seq):
            o += cread((n0 + n + 1) & 1, k64(seq[n + 1][1], seq[n + 1][0]))
        K = KB + 12 * ((n0 + n) & 1); Cc, Ss, Nn = K, K + 4, K + 8
        re, im = dst(T); dr, di = data(u)
        if sign == "fwd": o += [mf(re, dr, Cc, first), mf(im, di, Cc, first), mf(re, di, Ss, False), mf(im, dr, Nn, False)]
        else: o += [mf(re, dr, Cc, first), mf(im, di, Cc, first), mf(re, di, Nn, False), mf(im, dr, Ss, False)]
    return o

def f2(T):
    re, im = AC + 32 * T, AC + 32 * T + 16
    o = []
    for u in range(2):
        K = K32 + 12 * u; Cc, Ss, Nn = K, K + 4, K + 8
        pr, pi = PKT[T] + 4 * u, PKT[T] + 8 + 4 * u
        o += [mf(re, Cc, pr, u == 0), mf(im, Cc, pi, u == 0), mf(re, Ss, pi, False), mf(im, Nn, pr, False)]
    return o

def i1(T):
    re, im = AC + 32 * T, AC + 32 * T + 16
    o = []
    for u in range(2):
        K = K32 + 12 * u; Cc, Ss, Nn = K, K + 4, K + 8
        gr, gi = PKT[T] + 4 * u, PKT[T] + 8 + 4 * u
        o += [mf(re, gr, Cc, u == 0), mf(im, gi, Cc, u == 0), mf(re, gi, Nn, False), mf(im, gr, Ss, False)]
    return o

def outp(T2, ST):
    o = []
    for part in range(2):
        src = ZT2[T2] + 16 * part
        t = TMP + 8 * part
        o += [f"v_cvt_pk_bf16_f32 v{t+k}, v{src+2*k}, v{src+2*k+1}" for k in range(8)]
        o += [f"buffer_store_dwordx4 v[{t}:{t+3}], v4, s[28:31], s{48+part} offen offset:{2048*T2} {ST}",
              f"buffer_store_dwordx4 v[{t+4}:{t+7}], v4, s[28:31], s{48+part} offen offset:{2048*T2+16} {ST}"]
    return o

def fft(a, P):
    ST = OPT["st"]
    a(";;AUTO_BEGIN")
    a(f"""
s_lshl_b32 s43, s22, 2
s_add_u32 s43, s43, s23
s_lshl_b32 s44, s43, 3
s_add_u32 s44, s44, s3
v_lshlrev_b32 v2, 4, v1
s_lshl_b32 s45, s44, 13
s_add_u32 s47, s45, {WS_WT}
s_add_u32 s48, s45, {WS_ZT}
s_add_u32 s49, s48, 4096
s_lshl_b32 s46, s43, 8
s_lshl_b32 s50, s3, 18
s_add_u32 s46, s46, s50
s_add_u32 s46, s46, {WS_YT}
s_lshl_b32 s52, s3, 13
s_add_u32 s51, s52, {COLBASE}
v_lshrrev_b32 v8, 4, v1
v_and_b32 v9, 15, v1
v_lshlrev_b32 v10, 13, v8
""")
    for m in range(4):
        a(f"v_add_u32 v11, {4*m}, v8")
        a(f"v_xor_b32 v11, v11, v9")
        a(f"v_lshlrev_b32 v11, 4, v11")
        a(f"v_add_u32 v{20+m}, v10, v11")
    a("s_waitcnt lgkmcnt(0)")
    srd(a, 28, 20, WS_BYTES)
    for k in range(8):
        a(f"s_add_u32 m0, s51, {1024*k}")
        a(f"buffer_load_dwordx4 v{20+(k&3)}, s[28:31], s46 offen lds ; @def=col")
        a(f"s_add_u32 s46, s46, {4*8192}")
    a(f"s_mul_i32 s52, s3, 3072")
    a(f"s_add_u32 s50, s52, {WS_TB}")
    a("s_mov_b32 m0, s52")
    for k in range(3): a(f"buffer_load_dwordx4 v2, s[28:31], s50 offen offset:{1024*k} lds ; @def=tabA")
    late = [f"s_mul_i32 s52, s3, 5120", f"s_add_u32 s52, s52, 24576", f"s_add_u32 s50, s52, {WS_TB}", "s_mov_b32 m0, s52", "s_nop 0"]
    late += [f"buffer_load_dwordx4 v2, s[28:31], s50 offen offset:{1024*k} lds ; @def=tabB" for k in range(4)]
    late += ["s_add_u32 m0, s52, 4096", "s_add_u32 s50, s50, 4096", f"buffer_load_dwordx4 v2, s[28:31], s50 offen lds ; @def=tabB"]
    for k in range(8):
        if k == 4: late.append("s_add_u32 s47, s47, 4096")
        late.append(f"buffer_load_dwordx4 v[{WR+4*k}:{WR+4*k+3}], v2, s[28:31], s47 offen offset:{1024*(k&3)}")
    a(f"""
v_lshrrev_b32 v8, 5, v1
v_lshlrev_b32 v8, 2, v8
v_bfe_u32 v9, v1, 2, 2
v_add_u32 v8, v8, v9
v_lshlrev_b32 v8, 2, v8
v_and_b32 v10, 1, v1
v_lshlrev_b32 v10, 1, v10
v_bfe_u32 v11, v1, 4, 1
v_add_u32 v10, v10, v11
v_add_u32 v8, v8, v10
v_lshlrev_b32 v8, 8, v8
v_lshlrev_b32 v9, 2, v9
v_add_u32 v9, v9, v10
s_lshl_b32 s52, s3, 1
v_xor_b32 v9, s52, v9
v_lshlrev_b32 v9, 4, v9
v_add_u32 v8, v8, v9
v_bfe_u32 v9, v1, 1, 1
v_lshlrev_b32 v9, 3, v9
v_add_u32 v8, v8, v9
v_add_u32 v3, {COLBASE}, v8
v_xor_b32 v5, 16, v3
v_and_b32 v8, 31, v1
v_lshlrev_b32 v8, 6, v8
v_lshrrev_b32 v9, 5, v1
v_lshlrev_b32 v9, 5, v9
v_add_u32 v4, v8, v9
""")
    if OPT["prio"]:
        a(";;AUTO_END")
        a("s_cmp_ge_u32 s3, 4")
        a(f"s_cbranch_scc{1 if OPT['prio'] > 0 else 0} {P}_noprio")
        a(f"s_setprio {abs(OPT['prio'])}")
        a(f"{P}_noprio:")
        a(";;AUTO_RESUME")
    stamp(a, 1)
    a("waitdef col,tabA")
    a("s_barrier")
    stamp(a, 2)
    ydat = lambda u: (YR + 4 * u, YI + 4 * u)
    adst = lambda T: (AC + 32 * T, AC + 32 * T + 16)
    pre = []
    for u in range(4):
        for part, base, v in ((0, YR, 3), (1, YI, 5)):
            for rd in range(2):
                d = base + 4 * u + 2 * rd
                pre.append(f"ds_read_b64_tr_b16 v[{d}:{d+1}], v{v} offset:{16384*u+8192*rd}")
    a.ext(pre[:4]); a.ext(cread(0, k64(0, 0))); a.ext(pre[4:])
    seq = [(T, u, u == 0) for T in range(2) for u in range(4)]
    f1 = stage64(seq, ydat, adst, "fwd")
    half = len(stage64(seq[:4], ydat, adst, "fwd")) + 3
    a.ext(late[:11])
    a.ext(interleave(f1[:half], late[11:]))
    a("waitdef tabB")
    a("s_barrier")
    stamp(a, 3)
    cyc(a, 0)
    a.ext(cread(0, k32(0), K32)); a.ext(cread(1, k32(1), K32))
    pf = []
    if OPT["pf_w2"]:
        srd(a, 24, 16, 1792 * 4096)
        a(f"""
s_lshl_b32 s53, s23, 3
s_add_u32 s53, s53, s3
s_mul_i32 s53, s53, {56*4096}
s_lshl_b32 s54, s22, 9
s_add_u32 s53, s53, s54
s_mov_b32 m0, s51
v_lshrrev_b32 v6, 5, v1
v_lshlrev_b32 v6, 12, v6
v_and_b32 v7, 31, v1
v_lshlrev_b32 v7, 4, v7
v_add_u32 v6, v6, v7
""")
        for k in range(28):
            pf.append([f"buffer_load_dwordx4 v6, s[24:27], s53 offen lds", "s_add_u32 s53, s53, 8192"])
    def with_pf(lst, n):
        ex = []
        for _ in range(min(n, len(pf))): ex += pf.pop(0)
        return interleave(lst, ex)
    a.ext(with_pf(interleave(f1[half:], twiddle(0, TB_TW1, False), start=3), 6))
    a.ext(with_pf(interleave(f2(0), twiddle(1, TB_TW1, False)), 4))
    a.ext(with_pf(interleave(f2(1), wmult(0)), 4))
    a.ext(with_pf(interleave(i1(0), wmult(1)), 4))
    a.ext(with_pf(interleave(i1(1), twiddle(0, TB_TW2, True)), 4))
    rdat = lambda u: (PKT[u >> 1] + 4 * (u & 1), PKT[u >> 1] + 8 + 4 * (u & 1))
    zdst = lambda T2: (ZT2[T2], ZT2[T2] + 16)
    seq = [(0, 0, True), (0, 1, False), (1, 0, True), (1, 1, False), (0, 2, False), (0, 3, False), (1, 2, False), (1, 3, False)]
    a.ext(cread(0, k64(0, 0)))
    i2 = stage64(seq, rdat, zdst, "inv")
    n1 = len(stage64(seq[:4], rdat, zdst, "inv")) + 3
    n2 = len(stage64(seq[:6], rdat, zdst, "inv")) + 3
    a.ext(with_pf(interleave(i2[:n1], twiddle(1, TB_TW2, True)), 6))
    a.ext(i2[n1:n2])
    a.ext(interleave(i2[n2:], outp(0, ST)))
    a.ext(outp(1, ST))
    if OPT["filt"]:
        k0 = max(k for k, l in enumerate(a.lines) if "s_barrier" in l)
        keep = []
        for l in a.lines[k0:]:
            t = l.strip()
            if "v" in OPT["filt"] and t.startswith("v_") and not t.startswith("v_mfma"): continue
            if "m" in OPT["filt"] and t.startswith("v_mfma"): continue
            if "d" in OPT["filt"] and t.startswith("ds_read"): continue
            keep.append(l)
        a.lines[k0:] = keep
    a(";;AUTO_END")
    cyc(a, 1)
    stamp(a, 4)
    stamp_flush(a, 1, 5)
    a("s_endpgm")

def gen_k2(name="k2_kernel"):
    a = Asm(); P = name
    stamp(a, 0)
    a(f"""
s_load_dwordx16 s[4:19], s[0:1], 0
s_load_dwordx2 s[20:21], s[0:1], 80
s_cmp_ge_u32 s2, 256
s_cbranch_scc1 {P}_done
v_lshrrev_b32 v2, 6, v0
v_and_b32 v1, 63, v0
v_readfirstlane_b32 s3, v2
s_and_b32 s22, s2, 7
s_lshr_b32 s23, s2, 3
s_cmp_lt_u32 s23, 4
s_cbranch_scc1 {P}_fft
""")
    gemm1(a, P)
    a(f"{P}_fft:")
    fft(a, P)
    a(f"{P}_done:")
    a("s_endpgm")
    text = a.finalize()
    errs = check_waits(a.ins, trips={f"{P}_gloop": 2})
    errs += check_waits(a.ins, take=[f"{P}_fft"], verbose=not OPT["filt"])
    assert not errs or OPT["filt"]
    return header(name) + text, descriptor(name, 256, 102)

if __name__ == "__main__":
    t, d = gen_k2(); print(len(t.splitlines()))
```

```python
from common import *
from gemm import *
from k2 import reduce_addrs

DEPTH = 9
K3_BLOCK = 256
K3_LDS = 4 * DEPTH * 2048
AR3, BR3 = 128, 32
OPT = dict(mapping="B", st="", m16=False, nomfma=False)

def gen_k3(name="k3_kernel"):
    a = Asm(); P = name
    stamp(a, 0)
    a(f"""
s_load_dwordx16 s[4:19], s[0:1], 0
s_load_dwordx2 s[20:21], s[0:1], 80
s_load_dwordx2 s[22:23], s[0:1], 64
s_cmp_ge_u32 s2, 256
s_cbranch_scc1 {P}_done
v_lshrrev_b32 v2, 6, v0
v_and_b32 v1, 63, v0
v_readfirstlane_b32 s3, v2
s_and_b32 s40, s2, 7
s_lshr_b32 s41, s2, 3
""")
    if OPT["mapping"] == "A":
        a("""
s_and_b32 s44, s40, 1
s_lshl_b32 s44, s44, 2
s_and_b32 s45, s41, 3
s_add_u32 s44, s44, s45
s_lshr_b32 s45, s40, 1
s_lshl_b32 s45, s45, 3
s_lshr_b32 s46, s41, 2
s_add_u32 s45, s45, s46
""")
    else:
        a("""
s_and_b32 s44, s41, 7
s_lshl_b32 s45, s40, 2
s_lshr_b32 s46, s41, 3
s_add_u32 s45, s45, s46
""")
    lane_dma_offsets(a, 2, 3, 4096)
    tr_addr(a, 5, 4)
    a(f"""
s_lshr_b32 s47, s3, 1
s_and_b32 s48, s3, 1
s_lshl_b32 s49, s48, 6
v_xor_b32 v5, s49, v5
s_mul_i32 s50, s3, {DEPTH*2048}
v_add_u32 v5, s50, v5
v_xor_b32 v6, 64, v5
v_lshlrev_b32 v8, 4, v1
s_lshl_b32 s49, s47, 10
v_add_u32 v4, s49, v8
s_xor_b32 s49, s49, 1024
v_add_u32 v7, s49, v8
s_lshl_b32 s56, s45, 7
s_lshl_b32 s51, s3, 19
s_add_u32 s51, s51, s56
s_add_u32 s51, s51, {WS_ZT}
s_mul_i32 s52, s44, 144
s_lshl_b32 s53, s3, 3
s_add_u32 s53, s53, s52
s_add_u32 s53, s53, 112
s_lshl_b32 s53, s53, 11
s_add_u32 s53, s53, {WS_G}
s_mul_i32 s54, s3, 28
s_add_u32 s57, s54, s52
s_lshl_b32 s57, s57, 11
s_add_u32 s57, s57, {WS_G}
s_lshl_b32 s54, s54, 16
s_add_u32 s54, s54, s56
v_and_b32 v8, 31, v1
v_lshlrev_b32 v9, 10, v8
v_lshrrev_b32 v10, 5, v1
v_lshlrev_b32 v10, 5, v10
v_add_u32 v13, v9, v10
s_lshl_b32 s58, s45, 1
s_add_u32 s58, s58, s48
s_lshl_b32 s59, s58, 15
s_lshl_b32 s61, s44, 1
s_add_u32 s61, s61, s47
s_lshl_b32 s61, s61, 6
s_add_u32 s59, s59, s61
s_lshl_b32 s58, s58, 6
v_lshlrev_b32 v14, 1, v8
s_waitcnt lgkmcnt(0)
""")
    srd(a, 28, 20, WS_BYTES)
    srd(a, 24, 16, 1792 * 4096)
    def dma(slot, k, z):
        v, off = (2, "") if k == 0 else (3, " offset:1024")
        sr, so = ("s[28:31]", 51) if z else ("s[24:27]", 54)
        a(f"buffer_load_dwordx4 v{v}, {sr}, s{so} offen{off} lds ; @def=w{slot}")
    def gload(slot, k, z):
        a(f"buffer_load_dwordx4 v[{AR3+8*slot+4*k}:{AR3+8*slot+4*k+3}], v{4 if k == 0 else 7}, s[28:31], s{53 if z else 57} offen")
    def advance(z):
        a(f"s_add_u32 s{51 if z else 54}, s{51 if z else 54}, {16*4096}")
        a(f"s_add_u32 s{53 if z else 57}, s{53 if z else 57}, 2048")
    def issue(slot, z):
        a(f"s_add_u32 m0, s50, {slot*2048}")
        dma(slot, 0, z); dma(slot, 1, z); gload(slot, 0, z); gload(slot, 1, z); advance(z)
    def trreads(slot, p):
        for bs in range(2):
            for rd in range(2):
                d = BR3 + 8 * p + 4 * bs + 2 * rd
                a(f"ds_read_b64_tr_b16 v[{d}:{d+1}], v{5+bs} offset:{slot*2048+rd*1024} ; @use=w{slot}")
    issue(8, False) if False else None
    for s in range(8): issue(s, True)
    issue(8, False)
    srd(a, 40, 4, 2048 * 1024)
    srd(a, 32, 18, 2048 * 2)
    a("buffer_load_dwordx4 v[16:19], v13, s[40:43], s59 offen")
    a("buffer_load_dwordx4 v[20:23], v13, s[40:43], s59 offen offset:16")
    a("buffer_load_ushort v24, v14, s[32:35], s58 offen")
    for i in range(64): a(f"v_mov_b32 v{ACC+i}, 0")
    reduce_addrs(a)
    stamp(a, 1)
    a(f"s_waitcnt vmcnt({4*(DEPTH-1)+3})")
    stamp(a, 2)
    cyc(a, 0)
    trreads(0, 0)
    def step(j, par, wait, load, last=False):
        a(f"s_waitcnt vmcnt({wait})")
        if not last:
            trreads((j + 1) % DEPTH, par ^ 1)
            if load: a(f"s_add_u32 m0, s50, {j*2048}")
            a("s_waitcnt lgkmcnt(4)")
        else:
            a("s_waitcnt lgkmcnt(0)")
        for n, (bd, bs) in enumerate([(0, 0), (0, 1), (1, 0), (1, 1)]):
            acc = ACC + 16 * (2 * bd + bs)
            A = AR3 + 8 * j + 4 * bd; B = BR3 + 8 * par + 4 * bs
            if OPT["m16"]:
                a(f"v_mfma_f32_16x16x32_bf16 v[{acc}:{acc+3}], v[{A}:{A+3}], v[{B}:{B+3}], v[{acc}:{acc+3}]")
                a(f"v_mfma_f32_16x16x32_bf16 v[{acc+4}:{acc+7}], v[{A}:{A+3}], v[{B}:{B+3}], v[{acc+4}:{acc+7}]")
            elif not OPT["nomfma"]:
                a(f"v_mfma_f32_32x32x16_bf16 v[{acc}:{acc+15}], v[{A}:{A+3}], v[{B}:{B+3}], v[{acc}:{acc+15}]")
            if load:
                if n < 2: dma(j, n, False)
                else: gload(j, n - 2, False)
        if load: advance(False)
    clk(a, 0)
    for rnd in range(3):
        for j in range(DEPTH): step(j, (j + rnd) & 1, 4 * (DEPTH - 2), True)
        clk(a, rnd + 1)
    for j in range(DEPTH): step(j, (j + 3) & 1, max(0, 4 * (DEPTH - 2 - j)), False, last=(j == DEPTH - 1))
    clk(a, 4)
    cyc(a, 1)
    stamp(a, 3)
    a("s_barrier")
    for b in (1, 2, 3):
        for g in range(4):
            r = ACC + 16 * b + 4 * g
            a(f"ds_write_b128 v{8+b}, v[{r}:{r+3}] offset:{1024*g}")
    for k in range(8):
        a(f"v_lshlrev_b32 v{32+2*k}, 16, v{16+k}")
        a(f"v_and_b32 v{33+2*k}, 0xffff0000, v{16+k}")
    a("v_lshlrev_b32 v25, 16, v24")
    a("v_lshlrev_b32 v24, 16, v24")
    for k in range(8):
        a(f"v_pk_add_f32 v[{ACC+2*k}:{ACC+2*k+1}], v[{ACC+2*k}:{ACC+2*k+1}], v[{32+2*k}:{33+2*k}]")
    for k in range(8):
        a(f"v_pk_add_f32 v[{ACC+2*k}:{ACC+2*k+1}], v[{ACC+2*k}:{ACC+2*k+1}], v[24:25]")
    srd(a, 40, 22, 2048 * 1024)
    a("s_waitcnt lgkmcnt(0)")
    a("s_barrier")
    for b in range(3):
        for g in range(4):
            r = 128 + 16 * b + 4 * g
            a(f"ds_read_b128 v[{r}:{r+3}], v12 offset:{4096*b+1024*g}")
    for b in range(3):
        a(f"s_waitcnt lgkmcnt({8-4*b})")
        for k in range(8):
            r = 128 + 16 * b + 2 * k
            a(f"v_pk_add_f32 v[{ACC+2*k}:{ACC+2*k+1}], v[{ACC+2*k}:{ACC+2*k+1}], v[{r}:{r+1}]")
    for k in range(8): a(f"v_cvt_pk_bf16_f32 v{16+k}, v{ACC+2*k}, v{ACC+2*k+1}")
    a(f"buffer_store_dwordx4 v[16:19], v13, s[40:43], s59 offen {OPT['st']}")
    a(f"buffer_store_dwordx4 v[20:23], v13, s[40:43], s59 offen offset:16 {OPT['st']}")
    stamp(a, 4)
    clk_flush(a, 5, 0xE000000)
    stamp_flush(a, 2, 5)
    a(f"{P}_done:")
    a("s_endpgm")
    text = a.finalize()
    errs = check_waits(a.ins, trips={})
    assert not errs
    return header(name) + text, descriptor(name, 200, 102)

if __name__ == "__main__":
    t, d = gen_k3(); print(len(t.splitlines()))
```

```python
import sys, ast, copy
import common, build, k1, k2, k3
base = {m.__name__: copy.deepcopy(m.OPT) for m in (k1, k2, k3)}
stampflag = "nostamp" not in sys.argv
for a in sys.argv[1:]:
    if a == "nostamp": continue
    name, _, opts = a.partition(":")
    for m in (k1, k2, k3): m.OPT.clear(); m.OPT.update(copy.deepcopy(base[m.__name__]))
    seq = "123"
    for o in filter(None, opts.split(",")):
        k, v = o.split("=")
        if k == "seq": seq = v; continue
        mod, key = k.split(".")
        try: v = ast.literal_eval(v)
        except Exception: v = v.replace("+", " ")
        {"k1": k1, "k2": k2, "k3": k3}[mod].OPT[key] = v
    common.STAMP = stampflag
    p = dict(zip("123", build.parts("123")))
    open(f"var_{name}.s", "w").write(build.assemble([p[c] for c in seq]))
    print("var", name)
```

```python
import sys, importlib
KNAME = "parallel_sum__spectral_gfnet__mixer_token_mlp__prompt"
HEAD = """; Kernarg layout (88 bytes, pointers only, base s[0:1]):
"""
def assemble(parts):
    s = HEAD
    for (n, t, d, g, b, lds) in parts:
        s += f"; @launch kernel={n} grid=({g},1,1) block=({b},1,1) lds={lds}\n"
    s += '.amdgcn_target "amdgcn-amd-amdhsa--gfx950"\n.text\n'
    seen = set()
    for (n, t, d, g, b, lds) in parts:
        if n not in seen: s += t
        seen.add(n)
    s += '.section .rodata,"a"\n'
    seen = set()
    for (n, t, d, g, b, lds) in parts:
        if n not in seen: s += d
        seen.add(n)
    return s

def parts(which="123"):
    out = []
    if "1" in which:
        import k1
        t, d = k1.gen_k1(); out.append(("k1_kernel", t, d, 512, 256, k1.K1_LDS))
    if "2" in which:
        import k2
        t, d = k2.gen_k2(); out.append(("k2_kernel", t, d, 256, 512, k2.K2_LDS))
    if "3" in which:
        import k3
        t, d = k3.gen_k3(); out.append(("k3_kernel", t, d, 256, k3.K3_BLOCK, k3.K3_LDS))
    return out

def fused_file():
    import fused
    t, d = fused.gen_fused()
    head = """; Kernarg layout (88 bytes, pointers only, base s[0:1]):
"""
    s = head + f"; @launch grid=(256,1,1) block=(256,1,1) lds={fused.LDS_BYTES}\n"
    s += '.amdgcn_target "amdgcn-amd-amdhsa--gfx950"\n.text\n' + t + '.section .rodata,"a"\n' + d
    return s

if __name__ == "__main__":
    import common
    if "stamp" in sys.argv:
        sys.argv.remove("stamp"); common.STAMP = True
    if "dbgstamp" in sys.argv:
        sys.argv.remove("dbgstamp"); common.STAMP = True; common.DBGSTAMP = True
    which = sys.argv[1] if len(sys.argv) > 1 else "123"
    out = sys.argv[2] if len(sys.argv) > 2 else f"cdna_kernels/{KNAME}.s"
    open(out, "w").write(assemble(parts(which)))
    print("wrote", out)
```

```python
from common import *
from gemm import lane_dma_offsets, tr_addr
from asmlib import interleave
import k2 as K2

LDS_BYTES = 163840
RING1_SLOTS = 15
RING1 = RING1_SLOTS * 2048
P1 = 4 * RING1
XN_OFF, HS_OFF, HS_PITCH = P1, P1 + 8192, 1088
WP_OFF, WP_PITCH = HS_OFF + 8 * HS_PITCH, 144
YS_OFF = WP_OFF + 64 * WP_PITCH
assert YS_OFF + 8192 <= LDS_BYTES
RED = 0
RING2_SLOTS = 14
RING2_BASE = 49152
WS_CNT = 0xC00000
CNT_A, CNT_G, CNT_Z = WS_CNT, WS_CNT + 32 * 128, WS_CNT + 64 * 128
ACC = 64
SPIN_LIMIT = 1 << 17
OPT = dict(stop="", pfflag="", xflag="", wflag="", pf1a=8, w2flag="", stvar="", rot1=False, rot3=False, early2=True, ld="sc1", inv=False, hd=8, gd=8, zat=20, zlate=True, ffilt="", sprinkle=0.0, nef=4, w2pf="tail", mlat=24, pfat=28, fst=False, spr0=0.0, cpf=1, fdma=0, pf2at="end", npre=2, p1order=1)

def stamp(a, k):
    import common
    if common.STAMP:
        a("s_memrealtime s[76:77]")
        a("s_waitcnt lgkmcnt(0)")
        a(f"s_mov_b32 s{80+k}, s76")

def poll(a, name, nlanes, soff, target, vt=250):
    a(f"""
s_cmp_lg_u32 s3, 0
s_cbranch_scc1 {name}_skip
v_lshlrev_b32 v{vt}, 7, v1
v_mov_b32 v{vt+1}, {target}
s_mov_b32 s72, {soff}
s_mov_b32 s73, 0
s_mov_b32 exec_lo, {hex((1 << nlanes) - 1)}
s_mov_b32 exec_hi, 0
{name}_loop:
buffer_load_dword v{vt+2}, v{vt}, s[28:31], s72 offen sc1
s_add_u32 s73, s73, 1
s_waitcnt vmcnt(0)
v_cmp_ge_u32 vcc, v{vt+2}, v{vt+1}
s_cmp_eq_u64 vcc, exec
s_cbranch_scc1 {name}_done
s_cmp_lt_u32 s73, {SPIN_LIMIT}
s_cbranch_scc1 {name}_loop
{name}_done:
s_mov_b64 exec, -1
{name}_skip:
s_barrier
""")
    if OPT["inv"]: a("buffer_inv sc1")

def signal(a, name, soff_sreg, vt=250):
    a(f"""
s_cmp_lg_u32 s3, 0
s_cbranch_scc1 {name}_skip
v_mov_b32 v{vt}, 0
v_mov_b32 v{vt+1}, 1
s_mov_b64 exec, 1
buffer_atomic_add v{vt+1}, v{vt}, s[28:31], {soff_sreg} offen sc1
s_mov_b64 exec, -1
{name}_skip:
""")

def phase1(a, P):
    C, NS, A2, TC, TS, VO, MK = 16, 20, 24, 28, 32, 36, 38
    WL = 172
    MC = 216
    a(";;AUTO_BEGIN")
    a(f"""
s_lshl_b32 s44, s64, 5
s_add_u32 s44, s44, s65
s_lshl_b32 s45, s44, 3
s_lshl_b32 s46, s3, 1
s_add_u32 s46, s46, s45
s_lshl_b32 s46, s46, 10
v_lshlrev_b32 v3, 4, v1
s_and_b32 s47, s65, 3
s_lshr_b32 s48, s65, 2
s_lshl_b32 s48, s48, 3
s_add_u32 s48, s48, s64
s_and_b32 s49, s48, 1
s_bfe_u32 s50, s48, 0x10001
s_bfe_u32 s51, s48, 0x20002
s_lshr_b32 s52, s48, 4
s_lshl_b32 s52, s52, 3
s_lshl_b32 s53, s49, 5
s_add_u32 s53, s53, s52
s_lshl_b32 s54, s3, 1
s_add_u32 s53, s53, s54
s_lshl_b32 s54, s50, 10
s_add_u32 s53, s53, s54
s_lshl_b32 s54, s51, 8
s_add_u32 s53, s53, s54
s_mul_i32 s53, s53, 514
s_lshl_b32 s54, s47, 6
v_add_u32 v4, s54, v1
v_mov_b32 v5, 0x100
v_cmp_eq_u32 vcc, 0, v4
v_cndmask_b32 v188, v4, v5, vcc
v_lshlrev_b32 v188, 1, v188
s_waitcnt lgkmcnt(0)
""")
    srd(a, 24, 4, 2048 * 1024)
    a(f"buffer_load_dwordx4 v[8:11], v3, s[24:27], s46 offen {OPT['xflag']}")
    a(f"buffer_load_dwordx4 v[12:15], v3, s[24:27], s46 offen offset:1024 {OPT['xflag']}")
    srd(a, 32, 6, 2048 * 514)
    srd(a, 36, 8, 2048 * 514)
    for ii in range(4):
        if ii: a(f"s_add_u32 s53, s53, {64*514}")
        for nn in range(2):
            a(f"buffer_load_ushort v{WL+8*nn+2*ii}, v188, s[32:35], s53 offen offset:{514*nn} {OPT['wflag']}")
            a(f"buffer_load_ushort v{WL+1+8*nn+2*ii}, v188, s[36:39], s53 offen offset:{514*nn} {OPT['wflag']}")
    srd(a, 28, 20, WS_BYTES)
    if OPT["cpf"]:
        a(f"""
s_getpc_b64 s[40:41]
""")
        a(";;AUTO_END")
        a(f"{P}_pc:")
        a(";;AUTO_RESUME")
        a(f"""
s_sub_u32 s40, s40, {P}_pc-{P}_start
s_subb_u32 s41, s41, 0
s_lshl_b32 s72, s65, 11
s_lshl_b32 s73, s3, 9
s_add_u32 s72, s72, s73
v_and_b32 v190, 7, v1
v_lshlrev_b32 v190, 6, v190
v_add_u32 v190, s72, v190
v_min_u32 v190, {P}_codeend-{P}_start-4, v190
s_mov_b64 exec, 0xff
global_load_dword v191, v190, s[40:41]
s_mov_b64 exec, -1
""")
    a(";;AUTO_END")
    a(f"""
s_cmp_lg_u32 s2, 0
s_cbranch_scc1 {P}_noinit
s_cmp_lg_u32 s3, 3
s_cbranch_scc1 {P}_noinit
v_lshlrev_b32 v190, 7, v1
v_mov_b32 v191, 0
s_mov_b32 s72, {WS_CNT}
buffer_store_dword v191, v190, s[28:31], s72 offen sc1
s_add_u32 s72, s72, 8192
buffer_store_dword v191, v190, s[28:31], s72 offen sc1
s_waitcnt vmcnt(0)
s_mov_b32 s40, s62
s_and_b32 s41, s63, 0xffff
s_mov_b32 s42, 256
s_mov_b32 s43, 0x20000
v_mov_b32 v190, 0
v_mov_b32 v191, 1
s_mov_b64 exec, 1
buffer_store_dword v191, v190, s[40:43], 0 offen sc1
s_mov_b64 exec, -1
{P}_noinit:
""")
    a(";;AUTO_RESUME")
    srd(a, 40, 12, 2048 * 3584)
    a(f"""
s_lshr_b32 s58, s64, 1
s_mul_i32 s58, s58, 896
s_lshl_b32 s59, s65, 2
s_add_u32 s59, s59, s3
s_lshl_b32 s59, s59, 4
s_and_b32 s57, s64, 1
s_lshl_b32 s57, s57, 3
s_add_u32 s101, s59, 8
s_sub_u32 s101, s101, s57
s_add_u32 s59, s59, s57
s_mul_i32 s59, s59, 3584
s_mul_i32 s101, s101, 3584
s_add_u32 s101, s101, s58
s_add_u32 s58, s58, s59
v_cmp_gt_u32 vcc, 56, v1
v_mov_b32 v190, 0x7fffff00
v_cndmask_b32 v189, v190, v3, vcc
""")
    def pf1(n, sreg=58):
        for k in range(n):
            a(f"buffer_load_dwordx4 v[192:195], v189, s[40:43], s{sreg} offen {OPT['pfflag']}")
            a(f"s_add_u32 s{sreg}, s{sreg}, 3584")
    pf1(8)
    def constA():
        a(f"""
s_and_b32 s55, s3, 1
s_lshr_b32 s56, s3, 1
v_and_b32 v4, 15, v1
v_lshrrev_b32 v5, 4, v1
s_lshl_b32 s57, s55, 4
v_add_u32 v6, s57, v4
v_cvt_f32_u32 v40, v6
v_mul_f32 v40, {f32(1/32)}, v40
v_lshlrev_b32 v41, 2, v5
v_cvt_f32_u32 v41, v41
v_mul_f32 v42, v41, v40
v_mul_f32 v43, {f32(16.0)}, v40
v_add_f32 v43, v43, v42
""")
        for j in range(8):
            src = 42 if j < 4 else 43
            if j % 4 == 0: a(f"v_mov_b32 v{44+j}, v{src}")
            else: a(f"v_add_f32 v{44+j}, v{44+j-1}, v40")
        for j in range(8): a(f"v_cos_f32 v{52+j}, v{44+j}")
        for j in range(8): a(f"v_sin_f32 v{44+j}, v{44+j}")
        for j in range(4): a(f"v_cvt_pk_bf16_f32 v{C+j}, v{52+2*j}, v{53+2*j}")
        for j in range(4): a(f"v_cvt_pk_bf16_f32 v{NS+j}, -v{44+2*j}, -v{45+2*j}")
    def constB():
        a(f"""
v_lshrrev_b32 v44, 1, v4
v_cvt_f32_u32 v44, v44
v_mul_f32 v44, {f32(1/16)}, v44
v_mul_f32 v45, v41, v44
v_add_f32 v46, v45, v44
v_add_f32 v47, v46, v44
v_add_f32 v48, v47, v44
v_and_b32 v49, 1, v4
v_cmp_eq_u32 vcc, 1, v49
""")
        for j in range(4): a(f"v_cos_f32 v{52+j}, v{45+j}")
        for j in range(4): a(f"v_sin_f32 v{56+j}, v{45+j}")
        for j in range(4):
            a(f"v_sub_f32 v{60}, 0, v{56+j}")
            a(f"v_cndmask_b32 v{44+j}, v{52+j}, v60, vcc")
            a(f"v_cndmask_b32 v{48+j}, v{56+j}, v{52+j}, vcc")
        for j in range(4): a(f"v_cvt_pk_bf16_f32 v{A2+j}, v{44+2*j}, v{45+2*j}")
        a(f"""
v_cmp_eq_u32 vcc, 0, v6
v_mov_b32 v44, 0x100
v_cndmask_b32 v44, v6, v44, vcc
v_cvt_f32_u32 v44, v44
v_mul_f32 v44, {f32(1/512)}, v44
v_mul_f32 v45, v41, v44
v_add_f32 v46, v45, v44
v_add_f32 v47, v46, v44
v_add_f32 v48, v47, v44
""")
        for i in range(4): a(f"v_cos_f32 v{TC+i}, v{45+i}")
        for i in range(4): a(f"v_sin_f32 v{TS+i}, v{45+i}")
        a("s_mov_b64 s[60:61], vcc")
        for ip in range(2):
            a(f"""
v_lshlrev_b32 v44, 1, v5
v_add_u32 v44, {ip}, v44
v_lshlrev_b32 v45, 5, v44
v_add_u32 v46, v6, v45
v_sub_u32 v47, 0x100, v45
v_cmp_lt_u32 vcc, 0, v44
s_and_b64 vcc, vcc, s[60:61]
v_cndmask_b32 v46, v46, v47, vcc
v_lshlrev_b32 v{VO+ip}, 5, v46
v_mov_b32 v47, 0x80008000
v_cndmask_b32 v{MK+ip}, 0, v47, vcc
""")
    def addrs():
        a(f"""
s_lshl_b32 s57, s56, 3
s_add_u32 s57, s57, {YS_OFF}
v_add_u32 v{VO}, s57, v{VO}
v_add_u32 v{VO+1}, s57, v{VO+1}
s_lshr_b32 s60, s44, 1
s_lshl_b32 s60, s60, 11
s_and_b32 s61, s44, 1
s_lshl_b32 s61, s61, 9
s_add_u32 s60, s60, s61
s_lshl_b32 s61, s3, 19
s_add_u32 s60, s60, s61
s_add_u32 s60, s60, {WS_H}
s_add_u32 s61, s60, 262144
v_bfe_u32 v44, v1, 2, 2
v_mul_u32_u24 v40, {HS_PITCH}, v44
v_lshrrev_b32 v44, 5, v1
v_lshlrev_b32 v44, 6, v44
v_add_u32 v40, v40, v44
v_and_b32 v44, 1, v1
v_lshlrev_b32 v44, 5, v44
v_add_u32 v40, v40, v44
v_bfe_u32 v44, v1, 4, 1
v_lshlrev_b32 v44, 4, v44
v_add_u32 v40, v40, v44
v_bfe_u32 v44, v1, 1, 1
v_lshlrev_b32 v44, 3, v44
v_add_u32 v40, v40, v44
s_lshl_b32 s57, s3, 8
s_add_u32 s57, s57, {HS_OFF}
v_add_u32 v40, s57, v40
v_lshrrev_b32 v44, 5, v1
v_lshlrev_b32 v44, 10, v44
v_and_b32 v45, 31, v1
v_lshlrev_b32 v45, 4, v45
v_add_u32 v41, v44, v45
s_lshl_b32 s57, s56, 12
s_add_u32 s57, s57, {XN_OFF}
v_lshlrev_b32 v42, 3, v1
v_add_u32 v42, s57, v42
""")
        a(f"""
v_lshrrev_b32 v223, 3, v1
s_lshl_b32 s57, s3, 4
v_add_u32 v223, s57, v223
v_and_b32 v224, 7, v1
v_lshlrev_b32 v224, 4, v224
v_mul_u32_u24 v221, {WP_PITCH}, v223
v_add_u32 v221, v221, v224
v_add_u32 v221, {WP_OFF}, v221
v_lshlrev_b32 v222, 13, v223
v_add_u32 v222, v222, v224
s_lshl_b32 s54, s49, 12
s_lshl_b32 s57, s51, 10
s_add_u32 s54, s54, s57
s_lshl_b32 s57, s50, 5
s_add_u32 s57, s57, s52
s_lshl_b32 s57, s57, 4
s_add_u32 s54, s54, s57
s_add_u32 s54, s54, {WS_WT}
s_lshl_b32 s57, s47, 19
s_add_u32 s54, s54, s57
""")
    a(f"""
s_lshl_b32 s57, s3, 11
s_add_u32 s57, s57, {XN_OFF}
v_add_u32 v2, s57, v3
s_mul_i32 s57, s3, {2*HS_PITCH}
s_add_u32 s57, s57, {HS_OFF}
v_add_u32 v7, s57, v3
v_mov_b32 v63, {f32(1/512)}
v_mul_u32_u24 v220, {WP_PITCH}, v1
s_lshl_b32 s57, s3, 5
s_add_u32 s57, s57, {WP_OFF}
v_add_u32 v220, s57, v220
""")
    if OPT["p1order"] == 0:
        constA(); constB(); addrs()
    elif OPT["p1order"] == 1:
        constA()
    X = [64, 72]
    stamp(a, 1)
    for r in range(2):
        for k in range(4):
            a(f"v_lshlrev_b32 v{X[r]+2*k}, 16, v{8+4*r+k}")
            a(f"v_and_b32 v{X[r]+2*k+1}, 0xffff0000, v{8+4*r+k}")
    SUM = [80, 84]; SQ = [82, 86]
    for r in range(2):
        a(f"v_pk_add_f32 v[{SUM[r]}:{SUM[r]+1}], v[{X[r]}:{X[r]+1}], v[{X[r]+2}:{X[r]+3}]")
        a(f"v_pk_mul_f32 v[{SQ[r]}:{SQ[r]+1}], v[{X[r]}:{X[r]+1}], v[{X[r]}:{X[r]+1}]")
    for k in (1, 2, 3):
        for r in range(2):
            if k > 1: a(f"v_pk_add_f32 v[{SUM[r]}:{SUM[r]+1}], v[{SUM[r]}:{SUM[r]+1}], v[{X[r]+2*k}:{X[r]+2*k+1}]")
            a(f"v_pk_fma_f32 v[{SQ[r]}:{SQ[r]+1}], v[{X[r]+2*k}:{X[r]+2*k+1}], v[{X[r]+2*k}:{X[r]+2*k+1}], v[{SQ[r]}:{SQ[r]+1}]")
    red = []
    for r in range(2):
        a(f"v_add_f32 v{SUM[r]}, v{SUM[r]}, v{SUM[r]+1}")
        a(f"v_add_f32 v{SQ[r]}, v{SQ[r]}, v{SQ[r]+1}")
        red += [SUM[r], SQ[r]]
    for step in ("row_shr:1", "row_shr:2", "row_shr:4", "row_shr:8"):
        for v in red: a(f"v_add_f32_dpp v{v}, v{v}, v{v} {step} row_mask:0xf bank_mask:0xf")
    for v in red: a(f"v_add_f32_dpp v{v}, v{v}, v{v} row_bcast:15 row_mask:0xa bank_mask:0xf")
    for v in red: a(f"v_add_f32_dpp v{v}, v{v}, v{v} row_bcast:31 row_mask:0xc bank_mask:0xf")
    for k, v in enumerate(red): a(f"v_readlane_b32 s{71+k}, v{v}, 63")
    B = lambda r: 88 + 8 * r
    for r in range(2):
        a(f"v_mul_f32 v{B(r)}, s{71+2*r}, v63")
        a(f"v_mul_f32 v{B(r)+1}, s{72+2*r}, v63")
    for r in range(2): a(f"v_fma_f32 v{B(r)+1}, -v{B(r)}, v{B(r)}, v{B(r)+1}")
    for r in range(2): a(f"v_max_f32 v{B(r)+1}, 0, v{B(r)+1}")
    for r in range(2): a(f"v_add_f32 v{B(r)+2}, {f32(1e-5)}, v{B(r)+1}")
    for r in range(2): a(f"v_rsq_f32 v{B(r)+4}, v{B(r)+2}")
    for r in range(2): a(f"v_mul_f32 v{B(r)+2}, v{B(r)+4}, v{B(r)+4}")
    for r in range(2):
        a(f"v_mul_f32 v{B(r)+6}, -v{B(r)}, v{B(r)+4}")
        a(f"v_mul_f32 v{B(r)+2}, v{B(r)+2}, v{B(r)+1}")
    for r in range(2): a(f"v_add_f32 v{B(r)+2}, {f32(1e-5)}, v{B(r)+2}")
    for r in range(2): a(f"v_rsq_f32 v{B(r)+3}, v{B(r)+2}")
    for r in range(2):
        a(f"v_mov_b32 v{B(r)+5}, v{B(r)+4}")
        a(f"v_mov_b32 v{B(r)+7}, v{B(r)+6}")
    for r in range(2):
        b = B(r); XN = 104 + 16 * r
        for k in range(4):
            a(f"v_pk_fma_f32 v[{XN+2*k}:{XN+2*k+1}], v[{X[r]+2*k}:{X[r]+2*k+1}], v[{b+4}:{b+5}], v[{b+6}:{b+7}]")
        for k in range(4): a(f"v_cvt_pk_bf16_f32 v{8+4*r+k}, v{XN+2*k}, v{XN+2*k+1}")
        a(f"ds_write_b128 v2, v[{8+4*r}:{11+4*r}] offset:{1024*r}")
    for r in range(2):
        b = B(r)
        a(f"v_mul_f32 v{152+4*r}, v{b+4}, v{b+3}")
        a(f"v_mul_f32 v{153+4*r}, v{b+4}, v{b+3}")
        a(f"v_mul_f32 v{154+4*r}, v{b+6}, v{b+3}")
        a(f"v_mul_f32 v{155+4*r}, v{b+6}, v{b+3}")
    for r in range(2):
        HH = 112 + 16 * r
        for k in range(4):
            a(f"v_pk_fma_f32 v[{HH+2*k}:{HH+2*k+1}], v[{X[r]+2*k}:{X[r]+2*k+1}], v[{152+4*r}:{153+4*r}], v[{154+4*r}:{155+4*r}]")
        for k in range(4): a(f"v_cvt_pk_bf16_f32 v{136+4*r+k}, v{HH+2*k}, v{HH+2*k+1}")
        a(f"ds_write_b128 v7, v[{136+4*r}:{139+4*r}] offset:{HS_PITCH*r}")
    for nn in range(2):
        for ii in range(4):
            a(f"v_lshl_or_b32 v{196+4*nn+ii}, v{WL+1+8*nn+2*ii}, 16, v{WL+8*nn+2*ii}")
        a(f"ds_write_b128 v220, v[{196+4*nn}:{199+4*nn}] offset:{16*nn}")
    if OPT["p1order"] == 1:
        constB(); addrs()
    elif OPT["p1order"] == 2:
        constA(); constB(); addrs()
    a("s_waitcnt lgkmcnt(0)")
    a("s_barrier")
    stamp(a, 2)
    if OPT["pf2at"] == "bar1": pf1(8, 101)
    for rho in range(4):
        for rd in range(2):
            a(f"ds_read_b64_tr_b16 v[{64+4*rho+2*rd}:{65+4*rho+2*rd}], v42 offset:{1024*rho+512*rd}")
    for ii in range(2):
        for rd in range(2):
            a(f"ds_read_b64_tr_b16 v[{144+4*ii+2*rd}:{145+4*ii+2*rd}], v40 offset:{128*ii+4*HS_PITCH*rd}")
    a(f"ds_read_b128 v[196:199], v221")
    a(f"ds_read_b128 v[200:203], v221 offset:{8*WP_PITCH}")
    TR, TI = 80, 96
    for rho in range(4):
        a(f"v_mfma_f32_16x16x32_bf16 v[{TR+4*rho}:{TR+4*rho+3}], v[{64+4*rho}:{67+4*rho}], v[{C}:{C+3}], 0")
        a(f"v_mfma_f32_16x16x32_bf16 v[{TI+4*rho}:{TI+4*rho+3}], v[{64+4*rho}:{67+4*rho}], v[{NS}:{NS+3}], 0")
    a(f"buffer_store_dwordx4 v[144:147], v41, s[28:31], s60 offen sc1")
    a(f"buffer_store_dwordx4 v[148:151], v41, s[28:31], s61 offen sc1")
    a("s_add_u32 s57, s54, 65536")
    a(f"buffer_store_dwordx4 v[196:199], v222, s[28:31], s54 offen sc1")
    a(f"buffer_store_dwordx4 v[200:203], v222, s[28:31], s57 offen {OPT['ld']}")
    BB = 64; XO = 124
    for rho in range(4):
        tr, ti = TR + 4 * rho, TI + 4 * rho
        PR, PI, TT = (112, 116, 120) if not rho & 1 else (152, 156, 160)
        for p in range(2):
            o = 2 * p
            a(f"v_pk_mul_f32 v[{TT}:{TT+1}], v[{ti+o}:{ti+o+1}], v[{TS+o}:{TS+o+1}]")
            a(f"v_pk_mul_f32 v[{TT+2}:{TT+3}], v[{tr+o}:{tr+o+1}], v[{TS+o}:{TS+o+1}]")
            a(f"v_pk_fma_f32 v[{PR+o}:{PR+o+1}], v[{tr+o}:{tr+o+1}], v[{TC+o}:{TC+o+1}], v[{TT}:{TT+1}]")
            a(f"v_pk_fma_f32 v[{PI+o}:{PI+o+1}], v[{ti+o}:{ti+o+1}], v[{TC+o}:{TC+o+1}], v[{TT+2}:{TT+3}] neg_lo:[0,0,1] neg_hi:[0,0,1]")
        b = BB + 4 * rho
        a(f"v_cvt_pk_bf16_f32 v{b}, v{PR}, v{PR+1}")
        a(f"v_cvt_pk_bf16_f32 v{b+1}, v{PR+2}, v{PR+3}")
        a(f"v_cvt_pk_bf16_f32 v{b+2}, v{PI}, v{PI+1}")
        a(f"v_cvt_pk_bf16_f32 v{b+3}, v{PI+2}, v{PI+3}")
        a(f"v_mfma_f32_16x16x32_bf16 v[{XO+4*rho}:{XO+4*rho+3}], v[{A2}:{A2+3}], v[{b}:{b+3}], 0")
    for i in range(4):
        o = 144 + 2 * i
        a(f"v_cvt_pk_bf16_f32 v{o}, v{XO+i}, v{XO+4+i}")
        a(f"v_cvt_pk_bf16_f32 v{o+1}, v{XO+8+i}, v{XO+12+i}")
        if i & 1:
            a(f"v_xor_b32 v{o}, v{MK+(i>>1)}, v{o}")
            a(f"v_xor_b32 v{o+1}, v{MK+(i>>1)}, v{o+1}")
        a(f"ds_write_b64 v{VO+(i>>1)}, v[{o}:{o+1}] offset:{16*(i&1)}")
    a(f"""
s_lshl_b32 s57, s3, 11
s_add_u32 s57, s57, {YS_OFF}
v_add_u32 v2, s57, v3
s_lshl_b32 s57, s44, 13
s_lshl_b32 s96, s3, 11
s_add_u32 s57, s57, s96
s_add_u32 s57, s57, {WS_YT}
s_waitcnt lgkmcnt(0)
s_barrier
ds_read_b128 v[64:67], v2
ds_read_b128 v[68:71], v2 offset:1024
buffer_store_dwordx4 v[64:67], v3, s[28:31], s57 offen sc1
buffer_store_dwordx4 v[68:71], v3, s[28:31], s57 offen offset:1024 sc1
""")
    a(";;AUTO_END")
    stamp(a, 3)

def phase1_tail(a):
    if OPT["pf2at"] != "end": return 0
    for k in range(8):
        a(f"buffer_load_dwordx4 v[192:195], v189, s[32:35], s101 offen {OPT['pfflag']}")
        a(f"s_add_u32 s101, s101, 3584")
    return 8

def ready_load(a):
    a("""
s_mov_b32 s40, s62
s_and_b32 s41, s63, 0xffff
s_mov_b32 s42, 256
s_mov_b32 s43, 0x20000
v_mov_b32 v250, 0
buffer_load_dword v251, v250, s[40:43], 0 offen sc1
""")

def signal_a(a, P):
    a("s_barrier")
    a(f"""
s_cmp_lg_u32 s3, 0
s_cbranch_scc1 {P}_siga_skip
s_mov_b32 s73, 0
s_mov_b64 exec, 1
{P}_rdy:
v_cmp_ne_u32 vcc, 0, v251
s_cmp_eq_u64 vcc, exec
s_cbranch_scc1 {P}_rdy_done
buffer_load_dword v251, v250, s[40:43], 0 offen sc1
s_add_u32 s73, s73, 1
s_waitcnt vmcnt(0)
s_cmp_lt_u32 s73, {SPIN_LIMIT}
s_cbranch_scc1 {P}_rdy
{P}_rdy_done:
s_and_b32 s72, s2, 31
s_lshl_b32 s72, s72, 7
s_add_u32 s72, s72, {CNT_A}
v_mov_b32 v251, 1
buffer_atomic_add v251, v250, s[28:31], s72 offen sc1
s_mov_b64 exec, -1
{P}_siga_skip:
""")

def advance(a, soff, step, send, n):
    a(f"s_add_u32 s{soff}, s{soff}, {step}")
    if send is not None:
        a(f"s_cmp_eq_u32 s{soff}, s{send}")
        a(f"s_cselect_b32 s101, {n*step}, 0")
        a(f"s_sub_u32 s{soff}, s{soff}, s101")

class Stager:
    def __init__(self, a, nsteps, slots, vsrc, vtr, sbase, soff, pitch, rd_stride, srdn, flags, tag, send=None):
        self.a, self.n, self.slots = a, nsteps, slots
        self.send = send
        self.vsrc, self.vtr, self.sbase, self.soff, self.pitch = vsrc, vtr, sbase, soff, pitch
        self.rd_stride, self.srdn, self.flags, self.tag = rd_stride, srdn, flags, tag
        self.issued = 0
    def issue_lines(self):
        t = self.issued
        sl = t % self.slots
        self.issued += 1
        return [f"s_add_u32 m0, s{self.sbase}, {sl*2048}", "s_nop 0",
                f"buffer_load_dwordx4 v{self.vsrc}, s[{self.srdn}:{self.srdn+3}], s{self.soff} offen {self.flags} lds ; @def={self.tag}{t}",
                f"buffer_load_dwordx4 v{self.vsrc+1}, s[{self.srdn}:{self.srdn+3}], s{self.soff} offen offset:1024 {self.flags} lds ; @def={self.tag}{t}",
                f"s_add_u32 s{self.soff}, s{self.soff}, {16*self.pitch}"]
    def issue(self):
        self.a.ext(self.issue_lines())
    def read(self, t, dst=None):
        a = self.a; sl = t % self.slots
        for b in range(2):
            for rd in range(2):
                d = (8 * t if dst is None else dst) + 4 * b + 2 * rd
                if OPT["stvar"] == "vgpr":
                    a(f"ds_read_b64_tr_b16 v[{128+(d&63)}:{128+(d&63)+1}], v{self.vtr+b} offset:{sl*2048+rd*self.rd_stride}")
                elif OPT["stvar"] == "noread":
                    if b == 0 and rd == 0: a(f"ds_read_b64_tr_b16 a[{d}:{d+1}], v{self.vtr+b} offset:{sl*2048+rd*self.rd_stride}")
                else:
                    a(f"ds_read_b64_tr_b16 a[{d}:{d+1}], v{self.vtr+b} offset:{sl*2048+rd*self.rd_stride}")
    def drain(self, known=0):
        a = self.a
        for t in range(self.n):
            self.read(t)
            nxt = t - 1 + self.slots
            if t >= 1 and self.issued == nxt and nxt < self.n:
                a(f"waitdef {self.tag}r{t-1}")
                self.issue()
        while self.issued < self.n:
            raise AssertionError("ring too small")

def gemm1_setup(a):
    a(f"""
s_sub_u32 s44, s65, 4
s_and_b32 s66, s64, 1
s_lshl_b32 s66, s66, 2
s_and_b32 s45, s44, 3
s_add_u32 s66, s66, s45
s_lshr_b32 s67, s64, 1
s_mul_i32 s67, s67, 7
s_lshr_b32 s45, s44, 2
s_add_u32 s67, s67, s45
""")
    lane_dma_offsets(a, 224, 225, 3584)
    tr_addr(a, 226, 8)
    a(f"""
s_lshr_b32 s45, s3, 1
s_lshl_b32 s45, s45, 6
v_xor_b32 v226, s45, v226
s_mul_i32 s50, s3, {RING1}
v_add_u32 v226, s50, v226
v_xor_b32 v227, 64, v226
s_mul_i32 s51, s3, {512*3584}
s_lshl_b32 s52, s67, 7
s_add_u32 s51, s51, s52
""")
    srd(a, 24, 12, 2048 * 3584)

def reduce_addrs(a):
    a(f"""
v_lshlrev_b32 v8, 4, v1
s_xor_b32 s53, s3, 1
s_mul_i32 s53, s53, 12288
v_add_u32 v9, s53, v8
s_xor_b32 s53, s3, 2
s_mul_i32 s53, s53, 12288
s_add_u32 s53, s53, 4096
v_add_u32 v10, s53, v8
s_xor_b32 s53, s3, 3
s_mul_i32 s53, s53, 12288
s_add_u32 s53, s53, 8192
v_add_u32 v11, s53, v8
s_mul_i32 s53, s3, 12288
v_add_u32 v12, s53, v8
""")

def reduce_exchange(a, between):
    a("s_barrier")
    for b in (1, 2, 3):
        for g in range(4):
            r = ACC + 16 * b + 4 * g
            a(f"ds_write_b128 v{8+b}, v[{r}:{r+3}] offset:{1024*g}")
    a.ext(between)
    a("s_waitcnt lgkmcnt(0)")
    a("s_barrier")
    for b in range(3):
        for g in range(4):
            r = 128 + 16 * b + 4 * g
            a(f"ds_read_b128 v[{r}:{r+3}], v12 offset:{4096*b+1024*g}")
    for b in range(3):
        a(f"s_waitcnt lgkmcnt({8-4*b})")
        for k in range(8):
            r = 128 + 16 * b + 2 * k
            a(f"v_pk_add_f32 v[{ACC+2*k}:{ACC+2*k+1}], v[{ACC+2*k}:{ACC+2*k+1}], v[{r}:{r+1}]")

def w2_prefetch_setup(a):
    srd(a, 36, 16, 1792 * 4096)
    a(f"""
s_sub_u32 s57, s65, 4
s_lshl_b32 s57, s57, 2
s_add_u32 s57, s57, s3
s_lshl_b32 s57, s57, 16
s_lshl_b32 s53, s64, 9
s_add_u32 s57, s57, s53
v_lshrrev_b32 v2, 5, v1
v_lshlrev_b32 v2, 12, v2
v_and_b32 v3, 31, v1
v_lshlrev_b32 v3, 4, v3
v_add_u32 v2, v2, v3
""")
def w2_prefetch_one():
    return [f"buffer_load_dwordx4 v[24:27], v2, s[36:39], s57 offen {OPT['w2flag']}", "s_add_u32 s57, s57, 8192"]

def gemm1(a, P, st2):
    C1, C2 = K2.C1, K2.C2
    HD = OPT["hd"]
    assert HD <= 8
    a(";;AUTO_BEGIN")
    a(f"""
v_lshlrev_b32 v8, 4, v1
s_and_b32 s48, s3, 1
s_lshr_b32 s47, s3, 1
s_lshl_b32 s49, s48, 10
v_add_u32 v4, s49, v8
s_xor_b32 s49, s49, 1024
v_add_u32 v7, s49, v8
s_lshl_b32 s52, s66, 18
s_lshl_b32 s53, s3, 16
s_add_u32 s52, s52, s53
s_add_u32 s52, s52, {WS_H}
""")
    def hload(t):
        sl = t % HD
        for k in range(2):
            a(f"buffer_load_dwordx4 v[{128+8*sl+4*k}:{128+8*sl+4*k+3}], v{4 if k == 0 else 7}, s[28:31], s52 offen {OPT['ld']}")
        a("s_add_u32 s52, s52, 2048")
    for t in range(HD): hload(t)
    a(f"""
v_lshrrev_b32 v13, 5, v1
v_lshlrev_b32 v13, 3, v13
s_lshl_b32 s56, s67, 7
s_lshl_b32 s54, s47, 6
s_add_u32 s56, s56, s54
""")
    srd(a, 32, 14, 1792 * 2)
    for g in range(4):
        a(f"buffer_load_dwordx2 v[{16+2*g}:{17+2*g}], v13, s[32:35], s56 offen offset:{16*g}")
    phase3_ring_setup(a)
    phase3_setup(a)
    reduce_addrs(a)
    tail = []
    if OPT["w2pf"] == "tail":
        w2_prefetch_setup(a)
        tail = [w2_prefetch_one() for _ in range(8)]
    ml = p3_operand_loads()
    per = (len(ml) + 3) // 4
    for t in range(32):
        sl = t % HD
        nl = t + HD < 32
        for n, (bf, bd) in enumerate([(0, 0), (1, 0), (0, 1), (1, 1)]):
            acc = ACC + 16 * (2 * bf + bd)
            A = 8 * t + 4 * bf; B = 128 + 8 * sl + 4 * bd
            a(f"v_mfma_f32_32x32x16_bf16 v[{acc}:{acc+15}], a[{A}:{A+3}], v[{B}:{B+3}], " + ("0" if t == 0 else f"v[{acc}:{acc+15}]"))
            if nl and n in (1, 3):
                k = n >> 1
                a(f"buffer_load_dwordx4 v[{128+8*sl+4*k}:{128+8*sl+4*k+3}], v{4 if k == 0 else 7}, s[28:31], s52 offen {OPT['ld']}")
        if nl: a("s_add_u32 s52, s52, 2048")
        else:
            if t >= OPT["mlat"] and ml:
                a.ext(ml[:per]); ml = ml[per:]
            if t >= OPT["pfat"]:
                for _ in range(2):
                    if tail: a.ext(tail.pop(0))
    a.ext(ml)
    for x in tail: a.ext(x)
    stamp(a, 6)
    e = Asm()
    pre = []
    for g in range(4):
        for k in range(2):
            pre += [f"v_lshlrev_b32 v{32+4*g+2*k}, 16, v{16+2*g+k}", f"v_and_b32 v{33+4*g+2*k}, 0xffff0000, v{16+2*g+k}"]
    pre += [f"v_pk_add_f32 v[{ACC+2*k}:{ACC+2*k+1}], v[{ACC+2*k}:{ACC+2*k+1}], v[{32+2*k}:{33+2*k}]" for k in range(8)]
    pre += [f"v_mov_b32 v14, {f32(C1)}", f"v_mov_b32 v15, {f32(C1)}", f"v_mov_b32 v16, {f32(C2)}", f"v_mov_b32 v17, {f32(C2)}",
            "v_mov_b32 v18, 1.0", "v_mov_b32 v19, 1.0"]
    reduce_exchange(e, pre)
    pr = lambda b, k: f"v[{b+2*k}:{b+2*k+1}]"
    for k in range(8): e(f"v_pk_mul_f32 {pr(128,k)}, {pr(ACC,k)}, {pr(ACC,k)}")
    for k in range(8): e(f"v_pk_fma_f32 {pr(128,k)}, {pr(128,k)}, v[16:17], v[14:15]")
    for k in range(8): e(f"v_pk_mul_f32 {pr(128,k)}, {pr(128,k)}, {pr(ACC,k)}")
    for i in range(16): e(f"v_exp_f32 v{128+i}, v{128+i}")
    for k in range(8): e(f"v_pk_add_f32 {pr(128,k)}, {pr(128,k)}, v[18:19]")
    for i in range(16): e(f"v_rcp_f32 v{128+i}, v{128+i}")
    for k in range(8): e(f"v_pk_mul_f32 {pr(128,k)}, {pr(128,k)}, {pr(ACC,k)}")
    for k in range(8): e(f"v_cvt_pk_bf16_f32 v{144+k}, v{128+2*k}, v{129+2*k}")
    fill = []
    for _ in range(RING2_SLOTS): fill += st2.issue_lines()
    cut = int(len(e.lines) * OPT["sprinkle"]); c0 = int(len(e.lines) * OPT["spr0"])
    late = []
    if OPT["sprinkle"] <= OPT["spr0"]: late, fill = fill, []
    a.ext(e.lines[:c0] + (interleave(e.lines[c0:cut], fill) if fill else e.lines[c0:cut]) + e.lines[max(cut, c0):])
    a(f"""
s_mul_i32 s53, s66, 144
s_lshl_b32 s54, s67, 2
s_add_u32 s53, s53, s54
s_lshl_b32 s54, s47, 1
s_add_u32 s53, s53, s54
s_lshl_b32 s53, s53, 1
s_add_u32 s53, s53, s48
s_lshl_b32 s53, s53, 10
s_add_u32 s53, s53, {WS_G}
v_lshlrev_b32 v8, 4, v1
buffer_store_dwordx4 v[144:147], v8, s[28:31], s53 offen sc1
buffer_store_dwordx4 v[148:151], v8, s[28:31], s53 offen offset:2048 sc1
s_lshl_b32 s100, s66, 2
s_lshr_b32 s53, s64, 1
s_add_u32 s100, s100, s53
s_lshl_b32 s100, s100, 7
s_add_u32 s100, s100, {CNT_G}
s_waitcnt vmcnt(0)
""")
    a(";;AUTO_END")
    return late

def fft_tables(a, P):
    a(f"""
v_and_b32 v24, 31, v1
v_lshrrev_b32 v25, 5, v1
v_bfe_u32 v26, v24, 2, 1
v_lshlrev_b32 v26, 4, v26
v_lshrrev_b32 v27, 3, v24
v_lshlrev_b32 v27, 2, v27
v_add_u32 v26, v26, v27
v_and_b32 v27, 3, v24
v_add_u32 v26, v26, v27
v_lshlrev_b32 v33, 4, v1
""")
    def trio(idx_lane, slot0, step_hi, scale, off, stride):
        a(f"v_cvt_f32_u32 v35, {idx_lane}")
        a(f"v_mul_f32 v35, {f32(scale)}, v35")
        for j in range(8):
            a(f"v_add_u32 v30, {(j&3) + step_hi*(j>>2)}, {slot0}")
            a("v_cvt_f32_u32 v30, v30")
            a("v_mul_f32 v30, v30, v35")
            a("v_fract_f32 v30, v30")
            a(f"v_cos_f32 v{40+j}, v30")
            a(f"v_sin_f32 v{48+j}, v30")
        for j in range(4): a(f"v_cvt_pk_bf16_f32 v{36+j}, v{40+2*j}, v{41+2*j}")
        for j in range(4): a(f"v_cvt_pk_bf16_f32 v{56+j}, v{48+2*j}, v{49+2*j}")
        for j in range(4): a(f"v_cvt_pk_bf16_f32 v{60+j}, -v{48+2*j}, -v{49+2*j}")
        a(f"v_add_u32 v34, {off}, v33")
        a(f"ds_write_b128 v34, v[36:39]")
        a(f"ds_write_b128 v34, v[56:59] offset:{stride}")
        a(f"ds_write_b128 v34, v[60:63] offset:{2*stride}")
    a("s_mov_b32 s44, s3")
    a(f"{P}_t64:")
    a(f"""
s_lshr_b32 s45, s44, 1
s_and_b32 s46, s44, 1
s_lshl_b32 s46, s46, 5
v_add_u32 v28, s46, v24
s_lshl_b32 s46, s45, 4
v_lshlrev_b32 v29, 2, v25
v_add_u32 v29, s46, v29
s_lshl_b32 s47, s44, 10
s_add_u32 s47, s47, {F_TAB+TB_C64}
""")
    trio("v28", "v29", 8, 1 / 64, "s47", 8192)
    a("s_add_u32 s44, s44, 4")
    a("s_cmp_lt_u32 s44, 8")
    a(f"s_cbranch_scc1 {P}_t64")
    a(f"""
s_and_b32 s44, s3, 1
s_lshl_b32 s46, s44, 3
v_lshlrev_b32 v29, 4, v25
v_add_u32 v29, s46, v29
s_lshl_b32 s47, s44, 10
s_add_u32 s47, s47, {F_TAB+TB_C32}
""")
    trio("v26", "v29", 4, 1 / 32, "s47", 2048)
    a("s_mov_b32 s44, s3")
    a(f"{P}_tw:")
    a(f"""
s_lshr_b32 s45, s44, 3
s_and_b32 s46, s44, 7
s_lshl_b32 s47, s45, 5
v_add_u32 v28, s47, v24
v_lshlrev_b32 v29, 4, v25
s_lshl_b32 s48, s46, 1
v_add_u32 v29, s48, v29
v_add_u32 v30, 1, v29
v_mul_u32_u24 v29, v29, v28
v_mul_u32_u24 v30, v30, v28
s_lshr_b32 s48, s46, 1
s_lshl_b32 s48, s48, 3
s_add_u32 s47, s47, s48
s_and_b32 s48, s46, 1
s_lshl_b32 s48, s48, 1
s_add_u32 s47, s47, s48
v_lshlrev_b32 v31, 2, v25
v_add_u32 v31, s47, v31
v_add_u32 v32, 1, v31
v_mul_u32_u24 v31, v31, v26
v_mul_u32_u24 v32, v32, v26
v_cvt_f32_u32 v29, v29
v_cvt_f32_u32 v30, v30
v_cvt_f32_u32 v31, v31
v_cvt_f32_u32 v32, v32
v_mul_f32 v29, {f32(1/2048)}, v29
v_mul_f32 v30, {f32(1/2048)}, v30
v_mul_f32 v31, {f32(1/2048)}, v31
v_mul_f32 v32, {f32(1/2048)}, v32
v_cos_f32 v36, v29
v_cos_f32 v37, v30
v_sin_f32 v38, v29
v_sin_f32 v39, v30
v_cos_f32 v40, v31
v_cos_f32 v41, v32
v_sin_f32 v42, v31
v_sin_f32 v43, v32
v_mul_f32 v40, {f32(2.0**-20)}, v40
v_mul_f32 v41, {f32(2.0**-20)}, v41
v_mul_f32 v42, {f32(2.0**-20)}, v42
v_mul_f32 v43, {f32(2.0**-20)}, v43
s_lshl_b32 s47, s44, 10
v_add_u32 v34, s47, v33
ds_write_b128 v34, v[36:39] offset:{F_TW1}
ds_write_b128 v34, v[40:43] offset:{F_TW2}
s_add_u32 s44, s44, 4
s_cmp_lt_u32 s44, 16
s_cbranch_scc1 {P}_tw
s_waitcnt lgkmcnt(0)
""")

F_TW1, F_TW2, F_ZST = 0, 16384, 32768
F_TAB = 49152
F_COL = 98304
A_C64, A_S64, A_N64 = 0, 32, 64
A_K32 = 96
A_Y = (120, 152)
A_W = 184
F_ACC = 64
F_PK = 192
F_TW = 8
F_WB = 24
F_TMP = 56
COLBASE = F_COL
UNITS = [(0, 0), (1, 0), (0, 1), (1, 1)]

def fft_load_constants(a):
    a("v_lshlrev_b32 v2, 4, v1")
    a(f"v_add_u32 v3, {F_TAB}, v2")
    for u in range(4):
        for T in range(2):
            k = 2 * u + T
            for base, off in ((A_C64, TB_C64), (A_S64, TB_S64), (A_N64, TB_N64)):
                a(f"ds_read_b128 a[{base+4*k}:{base+4*k+3}], v3 offset:{off+1024*k}")
            a("s_waitcnt lgkmcnt(6)")
    for u in range(2):
        for n, off in enumerate((TB_C32, TB_S32, TB_N32)):
            a(f"ds_read_b128 a[{A_K32+12*u+4*n}:{A_K32+12*u+4*n+3}], v3 offset:{off+1024*u}")
    a("s_waitcnt lgkmcnt(0)")

def mfx(d, x, y, first):
    return f"v_mfma_f32_32x32x16_bf16 v[{d}:{d+15}], {x}, {y}, " + ("0" if first else f"v[{d}:{d+15}]")
def ar(b): return f"a[{b}:{b+3}]"
def vr4(b): return f"v[{b}:{b+3}]"

def u_acc(n): return F_ACC + 32 * n, F_ACC + 32 * n + 16
def u_pk(n): return F_PK + 16 * n, F_PK + 16 * n + 8

def m_f1(n):
    c, T = UNITS[n]; re, im = u_acc(n); o = []
    for u in range(4):
        k = 2 * u + T
        yr, yi = ar(A_Y[c] + 4 * u), ar(A_Y[c] + 16 + 4 * u)
        C, S, N = ar(A_C64 + 4 * k), ar(A_S64 + 4 * k), ar(A_N64 + 4 * k)
        o += [mfx(re, yr, C, u == 0), mfx(im, yi, C, u == 0), mfx(re, yi, S, False), mfx(im, yr, N, False)]
    return o
def m_f2(n):
    re, im = u_acc(n); pr, pi = u_pk(n); o = []
    for u in range(2):
        C, S, N = ar(A_K32 + 12 * u), ar(A_K32 + 12 * u + 4), ar(A_K32 + 12 * u + 8)
        o += [mfx(re, C, vr4(pr + 4 * u), u == 0), mfx(im, C, vr4(pi + 4 * u), u == 0),
              mfx(re, S, vr4(pi + 4 * u), False), mfx(im, N, vr4(pr + 4 * u), False)]
    return o
def m_i1(n):
    re, im = u_acc(n); pr, pi = u_pk(n); o = []
    for u in range(2):
        C, S, N = ar(A_K32 + 12 * u), ar(A_K32 + 12 * u + 4), ar(A_K32 + 12 * u + 8)
        o += [mfx(re, vr4(pr + 4 * u), C, u == 0), mfx(im, vr4(pi + 4 * u), C, u == 0),
              mfx(re, vr4(pi + 4 * u), N, False), mfx(im, vr4(pr + 4 * u), S, False)]
    return o
def m_i2(c, T2, us):
    re, im = u_acc(UNITS.index((c, T2))); o = []
    for u in us:
        src = UNITS.index((c, u >> 1)); pr, pi = u_pk(src)
        rr, ri = vr4(pr + 4 * (u & 1)), vr4(pi + 4 * (u & 1))
        k = 2 * u + T2
        C, S, N = ar(A_C64 + 4 * k), ar(A_S64 + 4 * k), ar(A_N64 + 4 * k)
        o += [mfx(re, rr, C, u == 0), mfx(im, ri, C, u == 0), mfx(re, ri, N, False), mfx(im, rr, S, False)]
    return o

def v_tw(T, table, conj):
    o = []
    rd = lambda e: f"ds_read_b128 v[{F_TW+4*(e&3)}:{F_TW+4*(e&3)+3}], v2 offset:{table + (T*8+e)*1024}"
    o += [rd(0), rd(1), rd(2)]
    for e in range(8):
        if e + 3 < 8: o.append(rd(e + 3))
        c0 = F_TW + 4 * (e & 3)
        for c in range(2):
            n = UNITS.index((c, T)); re, im = u_acc(n); pr, pi = u_pk(n)
            t = F_TMP + 4 * c
            o += K2.zip2(K2.cmul(re + 2 * e, im + 2 * e, c0, c0 + 2, t, conj), K2.cmul(re + 2 * e + 1, im + 2 * e + 1, c0 + 1, c0 + 3, t + 2, conj))
            o += [f"v_cvt_pk_bf16_f32 v{pr+e}, v{t}, v{t+2}", f"v_cvt_pk_bf16_f32 v{pi+e}, v{t+1}, v{t+3}"]
    return o

def v_wm(n):
    re, im = u_acc(n); pr, pi = u_pk(n); wb = F_WB + 16 * (n & 1); o = []
    for e in range(8):
        w0, w1 = wb + 2 * e, wb + 2 * e + 1
        t = F_TMP + 4 * (e & 1); u_ = F_TW + 4 * (e & 1)
        if n >= 2:
            w0, w1 = F_TW + 8 + 2 * (e & 1), F_TW + 9 + 2 * (e & 1)
            o += [f"v_accvgpr_read_b32 v{w0}, a{A_W+16*(n-2)+2*e}", f"v_accvgpr_read_b32 v{w1}, a{A_W+16*(n-2)+2*e+1}"]
        o += [f"v_lshlrev_b32 v{u_}, 16, v{w0}", f"v_and_b32 v{u_+1}, 0xffff0000, v{w0}",
              f"v_lshlrev_b32 v{u_+2}, 16, v{w1}", f"v_and_b32 v{u_+3}, 0xffff0000, v{w1}"]
        o += K2.zip2(K2.cmul(re + 2 * e, im + 2 * e, u_, u_ + 1, t, True), K2.cmul(re + 2 * e + 1, im + 2 * e + 1, u_ + 2, u_ + 3, t + 2, True))
        o += [f"v_cvt_pk_bf16_f32 v{pr+e}, v{t}, v{t+2}", f"v_cvt_pk_bf16_f32 v{pi+e}, v{t+1}, v{t+3}"]
    return o

def v_out(c, T2):
    n = UNITS.index((c, T2)); o = []
    for part in range(2):
        src = F_ACC + 32 * n + 16 * part
        t = F_TW + 8 * part
        slot = 2048 * part
        o += [f"v_cvt_pk_bf16_f32 v{t+k}, v{src+2*k}, v{src+2*k+1}" for k in range(8)]
        o += [f"ds_write_b128 v5, v[{t}:{t+3}] offset:{slot} ; @def=zo{n}{part}", f"ds_write_b128 v5, v[{t+4}:{t+7}] offset:{slot+16} ; @def=zo{n}{part}"]
    for part in range(2):
        src = F_ACC + 32 * n + 16 * part
        slot = 2048 * part
        so = 48 + 2 * c + part
        o += [f"ds_read_b128 v[{src}:{src+3}], v6 offset:{slot} ; @use=zo{n}{part}", f"ds_read_b128 v[{src+4}:{src+7}], v6 offset:{slot+1024} ; @use=zo{n}{part}"]
    for part in range(2):
        src = F_ACC + 32 * n + 16 * part
        so = 48 + 2 * c + part
        o += [f"buffer_store_dwordx4 v[{src}:{src+3}], v2, s[28:31], s{so} offen offset:{2048*T2} sc1",
              f"buffer_store_dwordx4 v[{src+4}:{src+7}], v2, s[28:31], s{so} offen offset:{2048*T2+1024} sc1"]
    return o

def fft_columns(a, P, stf):
    a(";;AUTO_BEGIN")
    a(f"""
s_lshl_b32 s43, s64, 2
s_add_u32 s43, s43, s65
s_lshl_b32 s44, s43, 3
s_add_u32 s44, s44, s3
v_lshlrev_b32 v2, 4, v1
s_lshl_b32 s45, s44, 13
s_add_u32 s47, s45, {WS_WT}
s_add_u32 s48, s45, {WS_ZT}
s_add_u32 s49, s48, 4096
s_add_u32 s50, s48, {4*8192}
s_add_u32 s51, s50, 4096
s_lshl_b32 s46, s43, 8
s_lshl_b32 s52, s3, 19
s_add_u32 s46, s46, s52
s_add_u32 s46, s46, {WS_YT}
s_lshl_b32 s52, s3, 14
s_add_u32 s53, s52, {COLBASE}
v_lshrrev_b32 v8, 4, v1
v_and_b32 v9, 15, v1
v_lshlrev_b32 v10, 13, v8
""")
    for m in range(4):
        a(f"v_add_u32 v11, {4*m}, v8")
        a(f"v_xor_b32 v11, v11, v9")
        a(f"v_lshlrev_b32 v11, 4, v11")
        a(f"v_add_u32 v{20+m}, v10, v11")
    for k in range(16):
        a(f"s_add_u32 m0, s53, {1024*k}")
        a(f"s_nop 0")
        a(f"buffer_load_dwordx4 v{20+(k&3)}, s[28:31], s46 offen {OPT['ld']} lds ; @def=col")
        a(f"s_add_u32 s46, s46, {4*8192}")
    def wload(n):
        c, T = UNITS[n]; wb = F_WB + 16 * (n & 1)
        o = [f"s_add_u32 s54, s47, {c*4*8192 + T*4096}"]
        if n < 2: o += [f"buffer_load_dwordx4 v[{wb+4*k}:{wb+4*k+3}], v2, s[28:31], s54 offen offset:{1024*k} {OPT['ld']}" for k in range(4)]
        else: o += [f"buffer_load_dwordx4 a[{A_W+16*(n-2)+4*k}:{A_W+16*(n-2)+4*k+3}], v2, s[28:31], s54 offen offset:{1024*k} {OPT['ld']}" for k in range(4)]
        return o
    a(f"""
v_lshrrev_b32 v8, 5, v1
v_lshlrev_b32 v8, 2, v8
v_bfe_u32 v9, v1, 2, 2
v_add_u32 v8, v8, v9
v_lshlrev_b32 v8, 2, v8
v_and_b32 v10, 1, v1
v_lshlrev_b32 v10, 1, v10
v_bfe_u32 v11, v1, 4, 1
v_add_u32 v10, v10, v11
v_add_u32 v8, v8, v10
v_lshlrev_b32 v8, 8, v8
v_lshlrev_b32 v9, 2, v9
v_add_u32 v9, v9, v10
s_lshl_b32 s52, s3, 1
v_xor_b32 v9, s52, v9
v_lshlrev_b32 v9, 4, v9
v_add_u32 v8, v8, v9
v_bfe_u32 v9, v1, 1, 1
v_lshlrev_b32 v9, 3, v9
v_add_u32 v8, v8, v9
v_add_u32 v3, {COLBASE}, v8
v_xor_b32 v5, 16, v3
v_xor_b32 v6, 128, v3
v_xor_b32 v7, 144, v3
v_and_b32 v8, 31, v1
v_lshlrev_b32 v8, 6, v8
v_lshrrev_b32 v9, 5, v1
v_lshlrev_b32 v9, 5, v9
v_add_u32 v4, v8, v9
""")
    a("waitdef col")
    a("s_barrier")
    stamp(a, 6)
    def yreads(c):
        o = []
        for u in range(4):
            for part in range(2):
                v = (3, 5, 6, 7)[2 * c + part]
                for rd in range(2):
                    d = A_Y[c] + 16 * part + 4 * u + 2 * rd
                    o.append(f"ds_read_b64_tr_b16 a[{d}:{d+1}], v{v} offset:{16384*u+8192*rd}")
        return o
    a.ext(yreads(0))
    a.ext(interleave(m_f1(0), yreads(1) + wload(0)))
    a.ext(interleave(m_f1(1), wload(1) + wload(2) + wload(3)))
    a("s_waitcnt lgkmcnt(0)")
    a("s_barrier")
    a(f"""
s_lshl_b32 s52, s3, 12
s_add_u32 s52, s52, {F_ZST}
v_add_u32 v5, s52, v4
v_add_u32 v6, s52, v2
""")
    if OPT["fst"]: stamp(a, 8)
    a.ext(interleave(m_f1(2) + m_f1(3), v_tw(0, F_TW1, False), start=1))
    a.ext(interleave(m_f2(0) + m_f2(1), v_tw(1, F_TW1, False)))
    a.ext(interleave(m_f2(2) + m_f2(3), v_wm(0) + v_wm(1)))
    if OPT["fst"]: stamp(a, 9)
    a.ext(interleave(m_i1(0) + m_i1(1), v_wm(2) + v_wm(3)))
    a.ext(interleave(m_i1(2) + m_i1(3), v_tw(0, F_TW2, True)))
    a.ext(interleave(m_i2(0, 0, (0, 1)) + m_i2(1, 0, (0, 1)), v_tw(1, F_TW2, True)))
    if OPT["fst"]: stamp(a, 10)
    phase3_ring_setup(a)
    fill = []
    for _ in range(OPT["fdma"]): fill += stf.issue_lines()
    tail_m = m_i2(0, 0, (2, 3)) + m_i2(1, 0, (2, 3))
    a.ext(interleave(tail_m, fill[:len(fill) // 2]))
    a.ext(interleave(interleave(m_i2(0, 1, range(4)), v_out(0, 0) + v_out(1, 0), start=2), fill[len(fill) // 2:]))
    a.ext(interleave(m_i2(1, 1, range(4)), v_out(0, 1), start=2))
    if OPT["fst"]: stamp(a, 11)
    a.ext(v_out(1, 1))
    if OPT["ffilt"]:
        k0 = max(k for k, l in enumerate(a.lines) if "s_barrier" in l)
        keep = []
        for l in a.lines[k0:]:
            t = l.strip()
            if "v" in OPT["ffilt"] and t.startswith("v_") and not t.startswith("v_mfma"): continue
            if "m" in OPT["ffilt"] and t.startswith("v_mfma"): continue
            if "d" in OPT["ffilt"] and t.startswith("ds_read"): continue
            if "s" in OPT["ffilt"] and t.startswith("buffer_store"): continue
            keep.append(l)
        a.lines[k0:] = keep
    a(f"""
s_lshl_b32 s72, s64, 7
s_add_u32 s72, s72, {CNT_Z}
""")
    a(";;AUTO_END")

MREG = 192
XREG = 50
def gring(k): return 128 + 8 * k

def phase3_ring_setup(a):
    a(f"""
s_and_b32 s68, s65, 7
s_lshl_b32 s69, s64, 2
s_lshr_b32 s44, s65, 3
s_add_u32 s69, s69, s44
v_lshrrev_b32 v24, 3, v1
v_and_b32 v25, 7, v1
v_bfe_u32 v26, v1, 4, 1
v_lshlrev_b32 v26, 2, v26
v_xor_b32 v25, v25, v26
v_lshlrev_b32 v25, 4, v25
v_lshlrev_b32 v24, 12, v24
v_add_u32 v28, v24, v25
v_add_u32 v29, {8*4096-1024}, v28
v_lshrrev_b32 v24, 5, v1
v_lshlrev_b32 v24, 9, v24
v_bfe_u32 v25, v1, 2, 2
v_lshlrev_b32 v25, 7, v25
v_add_u32 v24, v24, v25
v_bfe_u32 v25, v1, 4, 1
v_lshlrev_b32 v25, 5, v25
v_add_u32 v24, v24, v25
v_and_b32 v25, 3, v1
v_lshlrev_b32 v25, 3, v25
v_add_u32 v24, v24, v25
v_bfe_u32 v25, v1, 3, 1
v_lshlrev_b32 v25, 6, v25
v_xor_b32 v30, v24, v25
s_and_b32 s45, s3, 1
s_lshl_b32 s44, s45, 6
v_xor_b32 v30, s44, v30
s_mul_i32 s98, s3, {RING2_SLOTS*2048}
s_add_u32 s98, s98, {RING2_BASE}
v_add_u32 v30, s98, v30
v_xor_b32 v31, 64, v30
s_mul_i32 s99, s3, {28*16*4096}
s_lshl_b32 s44, s69, 7
s_add_u32 s99, s99, s44
""")
    srd(a, 24, 16, 1792 * 4096)

def phase3_setup(a):
    a(f"""
s_and_b32 s45, s3, 1
s_lshr_b32 s46, s3, 1
s_lshl_b32 s44, s69, 7
s_lshl_b32 s51, s3, 19
s_add_u32 s51, s51, s44
s_add_u32 s51, s51, {WS_ZT}
v_lshlrev_b32 v8, 4, v1
s_lshl_b32 s44, s46, 10
v_add_u32 v48, s44, v8
s_xor_b32 s44, s44, 1024
v_add_u32 v49, s44, v8
s_mul_i32 s44, s68, 144
s_lshl_b32 s97, s3, 3
s_add_u32 s97, s97, s44
s_add_u32 s97, s97, 112
s_lshl_b32 s97, s97, 11
s_add_u32 s97, s97, {WS_G}
s_mul_i32 s55, s3, 28
s_add_u32 s55, s55, s44
s_lshl_b32 s55, s55, 11
s_add_u32 s55, s55, {WS_G}
v_and_b32 v61, 31, v1
v_lshlrev_b32 v9, 10, v61
v_lshrrev_b32 v10, 5, v1
v_lshlrev_b32 v10, 5, v10
v_add_u32 v60, v9, v10
s_lshl_b32 s58, s69, 1
s_add_u32 s58, s58, s45
s_lshl_b32 s59, s58, 15
s_lshl_b32 s44, s68, 1
s_add_u32 s44, s44, s46
s_lshl_b32 s44, s44, 6
s_add_u32 s59, s59, s44
s_lshl_b32 s58, s58, 6
v_lshlrev_b32 v61, 1, v61
""")
    srd(a, 40, 4, 2048 * 1024)

def p3_operand_loads():
    o = []
    o += [f"buffer_load_dwordx4 v[{XREG}:{XREG+3}], v60, s[40:43], s59 offen",
          f"buffer_load_dwordx4 v[{XREG+4}:{XREG+7}], v60, s[40:43], s59 offen offset:16",
          "s_mov_b32 s32, s18", "s_and_b32 s33, s19, 0xffff", "s_mov_b32 s34, 4096", "s_mov_b32 s35, 0x20000",
          f"buffer_load_ushort v{XREG+8}, v61, s[32:35], s58 offen"]
    return o

MST = 0
def m_gen():
    S, R, T = 8, 24, 36
    o = []
    o += ["v_and_b32 v36, 31, v1", "v_bfe_u32 v37, v36, 2, 1", "v_lshlrev_b32 v37, 4, v37", "v_lshrrev_b32 v38, 3, v36",
          "v_lshlrev_b32 v38, 2, v38", "v_add_u32 v37, v37, v38", "v_and_b32 v38, 3, v36", "v_add_u32 v37, v37, v38",
          "s_lshl_b32 s44, s68, 6", "v_add_u32 v37, s44, v37",
          "s_lshr_b32 s45, s3, 1", "s_lshl_b32 s46, s45, 5", "v_add_u32 v38, s46, v37",
          "s_xor_b32 s46, s46, 32", "v_add_u32 v39, s46, v37",
          "v_lshrrev_b32 v40, 5, v1", "v_lshlrev_b32 v40, 1, v40", "s_lshl_b32 s46, s3, 6", "v_add_u32 v40, s46, v40"]
    for bd in range(2):
        d = 38 + bd
        o += [f"v_and_b32 v41, 63, v{d}", "v_cvt_f32_u32 v41, v41", f"v_mul_f32 v41, {f32(1/64)}, v41",
              f"v_cos_f32 v{R+2*bd}, v41", f"v_sin_f32 v{R+2*bd+1}, v41"]
        for jj, dc in enumerate((0, 1, 4, 5)):
            c, sn = S + 8 * bd + 2 * jj, S + 8 * bd + 2 * jj + 1
            o += [f"v_add_u32 v41, {dc}, v40", f"v_mul_u32_u24 v41, v41, v{d}", "v_and_b32 v41, 0x1ff, v41", "v_cvt_f32_u32 v41, v41",
                  f"v_mul_f32 v41, {f32(1/512)}, v41", f"v_cos_f32 v{c}, v41", f"v_sin_f32 v{sn}, v41",
                  f"v_add_f32 v{c}, v{c}, v{c}", f"v_add_f32 v{sn}, v{sn}, v{sn}"]
    o += ["s_cmp_eq_u32 s3, 0\ns_cselect_b32 s46, -1, 0", "s_mov_b32 s47, 0"]
    for bd in range(2):
        o += [f"v_and_b32 v41, 1, v{38+bd}", f"v_lshlrev_b32 v41, 15, v41", f"v_or_b32 v{42+bd}, 0x3f80, v41"]
    for j in range(8):
        for bd in range(2):
            for jj in range(4):
                c, sn = S + 8 * bd + 2 * jj, S + 8 * bd + 2 * jj + 1
                dst = MREG + 8 * j + 4 * bd + jj
                o.append(f"v_cvt_pk_bf16_f32 v{dst}, v{c}, -v{sn}")
                if j == 0 and jj == 0: o.append(f"v_cndmask_b32 v{dst}, v{dst}, v{42+bd}, s[46:47]")
                if j < 7:
                    t = T + 2 * (jj & 1)
                    rc, rs = R + 2 * bd, R + 2 * bd + 1
                    o += [f"v_mul_f32 v{t}, v{sn}, v{rs}", f"v_mul_f32 v{t+1}, v{c}, v{rs}",
                          f"v_fma_f32 v{c}, v{c}, v{rc}, -v{t}", f"v_fma_f32 v{sn}, v{sn}, v{rc}, v{t+1}"]
    return o

def phase3(a, P, st, role):
    GD = OPT["gd"]
    P = P + role
    assert GD <= 8
    a(";;AUTO_BEGIN")
    a(f"""
s_lshl_b32 s74, s68, 9
s_add_u32 s74, s74, {CNT_G}
v_lshlrev_b32 v32, 7, v1
v_mov_b32 v33, 7
s_mov_b32 exec_lo, 0xf
s_mov_b32 exec_hi, 0
buffer_load_dword v34, v32, s[28:31], s74 offen sc1
s_mov_b64 exec, -1
""")
    n1 = RING2_SLOTS
    def gload(t):
        r = gring(t % GD)
        for k in range(2):
            a(f"buffer_load_dwordx4 v[{r+4*k}:{r+4*k+3}], v{48+k}, s[28:31], s55 offen {OPT['ld']}")
        a("s_add_u32 s55, s55, 2048")
    if role == "g":
        for t in range(n1):
            st.read(t)
            if t >= 1:
                a(f"waitdef {st.tag}r{t-1}"); st.issue()
        a(f"waitdef {st.tag}r{n1-1}"); st.issue()
        assert st.issued == 28
    else:
        while st.issued < n1: st.issue()
    def check(name, nl, vaddr, vtgt, vval, soff):
        a("s_mov_b32 s73, 0")
        a(f"v_mov_b32 v35, v{vval}")
        a(";;AUTO_END")
        a(f"""
s_mov_b32 exec_lo, {hex((1 << nl) - 1)}
s_mov_b32 exec_hi, 0
{name}_l:
v_cmp_ge_u32 vcc, v35, v{vtgt}
s_cmp_eq_u64 vcc, exec
s_cbranch_scc1 {name}_d
buffer_load_dword v35, v{vaddr}, s[28:31], {soff} offen sc1
s_add_u32 s73, s73, 1
s_waitcnt vmcnt(0)
s_cmp_lt_u32 s73, {SPIN_LIMIT}
s_cbranch_scc1 {name}_l
{name}_d:
s_mov_b64 exec, -1
""")
        a(";;AUTO_RESUME")
    stamp(a, 8)
    check(f"{P}_gc", 4, 32, 33, 34, "s74")
    stamp(a, 9)
    for t in range(GD): gload(t)
    if role == "f":
        for t in range(n1): st.read(t)
    def zdma(j):
        a(f"s_add_u32 m0, s98, {j*2048}")
        a("s_nop 0")
        a(f"buffer_load_dwordx4 v28, s[28:31], s51 offen {OPT['ld']} lds ; @def=z{j}")
        a(f"buffer_load_dwordx4 v29, s[28:31], s51 offen offset:1024 {OPT['ld']} lds ; @def=z{j}")
        a(f"s_add_u32 s51, s51, {16*4096}")
    def zread(j):
        for b in range(2):
            for rd in range(2):
                d = 224 + 8 * (j & 3) + 4 * b + 2 * rd
                a(f"ds_read_b64_tr_b16 a[{d}:{d+1}], v{30+b} offset:{j*2048+rd*1024}")
    order = [(0, 0), (0, 1), (1, 0), (1, 1)]
    ml = p3_operand_loads() if role == "f" else []
    mg = m_gen()
    per_m = (len(mg) + 4 * 26 - 1) // (4 * 26)
    LEAD = 3
    nz = 0
    for t in range(28):
        if n1 <= t + LEAD < 28: st.read(t + LEAD)
        r = gring(t % GD)
        nl = t + GD < 28
        for n, (bd, bs) in enumerate(order):
            acc = ACC + 16 * (2 * bd + bs)
            a(f"v_mfma_f32_32x32x16_bf16 v[{acc}:{acc+15}], v[{r+4*bd}:{r+4*bd+3}], a[{8*t+4*bs}:{8*t+4*bs+3}], " + ("0" if t == 0 else f"v[{acc}:{acc+15}]"))
            if nl and n in (1, 3):
                k = n >> 1
                a(f"buffer_load_dwordx4 v[{r+4*k}:{r+4*k+3}], v{48+k}, s[28:31], s55 offen {OPT['ld']}")
            a.ext(mg[:per_m]); del mg[:per_m]
        if nl: a("s_add_u32 s55, s55, 2048")
        if role == "f" and st.issued < 28:
            a(f"waitdef {st.tag}r{st.issued - n1}"); st.issue()
        if t == OPT["zat"] - 7:
            a(f"""
v_mov_b32 v33, 4
s_mov_b32 s72, {CNT_Z}
s_mov_b32 exec_lo, 0xff
s_mov_b32 exec_hi, 0
buffer_load_dword v34, v32, s[28:31], s72 offen sc1
s_mov_b64 exec, -1
""")
        if t == OPT["zat"] - 1: check(f"{P}_zc", 8, 32, 33, 34, "s72")
        if t >= OPT["zat"] and nz < 8 and n1 + nz <= t + LEAD - 1:
            a(f"waitdef {st.tag}r{n1+nz}")
            zdma(nz); nz += 1
        if ml and t >= 20:
            k = (len(ml) + (27 - t)) // (28 - t)
            a.ext(ml[:k]); ml = ml[k:]
        if t >= 24 and t - 24 < nz: zread(t - 24)
    while nz < 8:
        zdma(nz); nz += 1
    a.ext(ml)
    a.ext(mg)
    for j in range(8):
        for (bd, bs) in order:
            acc = ACC + 16 * (2 * bd + bs)
            B = 224 + 8 * (j & 3) + 4 * bs
            a(f"v_mfma_f32_32x32x16_bf16 v[{acc}:{acc+15}], v[{MREG+8*j+4*bd}:{MREG+8*j+4*bd+3}], a[{B}:{B+3}], v[{acc}:{acc+15}]")
        if j + 4 < 8: zread(j + 4)
    stamp(a, 10)
    reduce_addrs(a)
    pre = []
    for k in range(8):
        pre += [f"v_lshlrev_b32 v{32+2*k}, 16, v{XREG+k}", f"v_and_b32 v{33+2*k}, 0xffff0000, v{XREG+k}"]
    pre += [f"v_lshlrev_b32 v{XREG+9}, 16, v{XREG+8}", f"v_lshlrev_b32 v{XREG+8}, 16, v{XREG+8}"]
    pre += [f"v_pk_add_f32 v[{ACC+2*k}:{ACC+2*k+1}], v[{ACC+2*k}:{ACC+2*k+1}], v[{32+2*k}:{33+2*k}]" for k in range(8)]
    pre += [f"v_pk_add_f32 v[{ACC+2*k}:{ACC+2*k+1}], v[{ACC+2*k}:{ACC+2*k+1}], v[{XREG+8}:{XREG+9}]" for k in range(8)]
    srd(a, 40, 22, 2048 * 1024)
    reduce_exchange(a, pre)
    for k in range(8): a(f"v_cvt_pk_bf16_f32 v{16+k}, v{ACC+2*k}, v{ACC+2*k+1}")
    a("buffer_store_dwordx4 v[16:19], v60, s[40:43], s59 offen")
    a("buffer_store_dwordx4 v[20:23], v60, s[40:43], s59 offen offset:16")
    a(";;AUTO_END")

def gen_fused(name="parallel_sum__spectral_gfnet__mixer_token_mlp__prompt_kernel"):
    a = Asm(); P = "fz"
    a(f"{P}_start:")
    stamp(a, 0)
    a(f"""
s_load_dwordx16 s[4:19], s[0:1], 0
s_load_dwordx2 s[20:21], s[0:1], 80
s_load_dwordx2 s[22:23], s[0:1], 64
s_load_dwordx2 s[62:63], s[0:1], 72
s_cmp_ge_u32 s2, 256
s_cbranch_scc1 {P}_done
v_lshrrev_b32 v2, 6, v0
v_and_b32 v1, 63, v0
v_readfirstlane_b32 s3, v2
s_and_b32 s64, s2, 7
s_lshr_b32 s65, s2, 3
""")
    phase1(a, P)
    ready_load(a)
    srd(a, 32, 12, 2048 * 3584)
    npf2 = phase1_tail(a)
    a(f"s_cmp_lt_u32 s65, 4")
    a(f"s_cbranch_scc1 {P}_fft")
    gemm1_setup(a)
    a(";;AUTO_BEGIN")
    st1 = Stager(a, 32, RING1_SLOTS, 224, 226, 50, 51, 3584, 512, 24, "", "w")
    NPRE = OPT['npre']
    for _ in range(NPRE): st1.issue()
    a(f"s_waitcnt vmcnt({2*NPRE + npf2})")
    a(";;AUTO_END")
    signal_a(a, P + "g")
    stamp(a, 4)
    a(";;AUTO_BEGIN")
    for t in range(NPRE):
        a(f";;AUTO_INJECT w{t}"); a(f";;AUTO_INJECT w{t}")
    while st1.issued < RING1_SLOTS: st1.issue()
    stamp(a, 12)
    st1.drain()
    if OPT["w2pf"] == "stage":
        w2_prefetch_setup(a)
        for _ in range(8): a.ext(w2_prefetch_one())
    a("s_waitcnt lgkmcnt(0)")
    a(";;AUTO_END")
    stamp(a, 13)
    poll(a, f"{P}_pa", 32, CNT_A, 8)
    stamp(a, 5)
    if OPT["stop"] == "p1": a(f"s_branch {P}_end")
    st2 = Stager(a, 28, RING2_SLOTS, 28, 30, 98, 99, 4096, 1024, 24, "", "u")
    late = gemm1(a, P, st2)
    a("s_barrier")
    signal(a, f"{P}_sg", "s100", vt=44)
    stamp(a, 7)
    if late:
        a.ext(late)
        a("s_waitcnt vmcnt(0)")
    if OPT["stop"] != "p2": phase3(a, P, st2, "g")
    a(f"s_branch {P}_end")
    a(f"{P}_fft:")
    a(f"s_waitcnt vmcnt({npf2})")
    signal_a(a, P + "f")
    stamp(a, 4)
    fft_tables(a, P)
    a("s_barrier")
    fft_load_constants(a)
    poll(a, f"{P}_pf", 32, CNT_A, 8)
    stamp(a, 5)
    if OPT["stop"] == "p1": a(f"s_branch {P}_end")
    stf = Stager(a, 28, RING2_SLOTS, 28, 30, 98, 99, 4096, 1024, 24, "", "f")
    fft_columns(a, P, stf)
    stamp(a, 12)
    stamp(a, 13)
    a("s_mov_b32 s100, s72")
    a("s_waitcnt vmcnt(0)")
    a("s_barrier")
    signal(a, f"{P}_sz", "s100", vt=44)
    stamp(a, 7)
    phase3_setup(a)
    if OPT["stop"] != "p2": phase3(a, P, stf, "f")
    a(f"{P}_end:")
    if not OPT["fst"]: stamp(a, 11)
    stamp_flush_n(a, 14)
    a(f"{P}_done:")
    a("s_endpgm")
    a(f"{P}_codeend:")
    text = a.finalize()
    errs = []
    for tk in ([], [f"{P}_fft"]):
        errs += check_waits(a.ins, take=tk + [f"{P}_noinit"], trips={f"{P}_t64": 1, f"{P}_tw": 3}, verbose=not OPT["ffilt"])
    assert not errs or OPT["ffilt"]
    return header(name) + text, descriptor(name, 512, 102, 256)

def stamp_flush_n(a, n):
    import common
    if not common.STAMP: return
    a("s_waitcnt vmcnt(0) lgkmcnt(0)")
    a("s_memrealtime s[76:77]")
    a("s_waitcnt lgkmcnt(0)")
    a("s_mov_b32 s74, s76")
    a("s_lshl_b32 s75, s2, 2")
    a("s_add_u32 s75, s75, s3")
    a("s_lshl_b32 s75, s75, 6")
    a(f"s_add_u32 s75, s75, {STAMP_BASE}")
    a("v_mov_b32 v0, 0")
    for k in range(n):
        a(f"v_mov_b32 v1, s{80+k}")
        a(f"buffer_store_dword v1, v0, s[28:31], s75 offen offset:{4*k}")
    a("v_mov_b32 v1, s74")
    a(f"buffer_store_dword v1, v0, s[28:31], s75 offen offset:{4*n}")

if __name__ == "__main__":
    t, d = gen_fused(); print(len(t.splitlines()))
```

```python
from common import *

XN_OFF, HS_OFF, HS_PITCH = 0, 8192, 1088
K1_LDS = HS_OFF + 8 * HS_PITCH
WP_PITCH = 144
OPT = dict(st="", pf_w1=True, pf_code=True, pfflag="", xflag="", wflag="", pf_w2="", split=False, sth="")

def code_prefetch(a, label_start, nbytes, vtmp, stmp):
    here = f"pf_{len(a.lines)}"
    a(f"s_getpc_b64 s[{stmp}:{stmp+1}]")
    a(f"{here}:")
    a(f"s_add_u32 s{stmp}, s{stmp}, {label_start}-{here}")
    a(f"s_addc_u32 s{stmp+1}, s{stmp+1}, 0")
    a(f"v_lshlrev_b32 v{vtmp}, 6, v1")
    for k in range((nbytes + 4095) // 4096):
        a(f"global_load_dword v{vtmp+1}, v{vtmp}, s[{stmp}:{stmp+1}]")
        if (k + 1) * 4096 < nbytes: a(f"v_add_u32 v{vtmp}, 0x1000, v{vtmp}")

def gen_k1(name="k1_kernel"):
    a = Asm()
    P = name
    ST = OPT["st"]; STH = OPT["sth"]
    stamp(a, 0)
    a(f"""
s_load_dwordx16 s[4:19], s[0:1], 0
s_load_dwordx2 s[20:21], s[0:1], 80
s_cmp_ge_u32 s2, 512
s_cbranch_scc1 {P}_done
v_lshrrev_b32 v2, 6, v0
v_and_b32 v1, 63, v0
v_readfirstlane_b32 s3, v2
""")
    if OPT["split"]:
        a(f"""
s_lshr_b32 s63, s2, 4
s_lshl_b32 s63, s63, 3
s_and_b32 s64, s2, 7
s_or_b32 s63, s63, s64
s_bitcmp1_b32 s2, 3
s_mov_b32 s2, s63
s_cbranch_scc0 {P}_main
s_add_u32 s2, s2, 256
s_branch {P}_helper
""")
        a(f"{P}_main:")
    else:
        a(f"""
s_cmp_ge_u32 s2, 256
s_cbranch_scc1 {P}_helper
""")
    C, NS, A2, TC, TS = 16, 20, 24, 28, 32
    VO, MK = 36, 38
    a(";;AUTO_BEGIN")
    a(f"""
s_and_b32 s22, s2, 7
s_lshl_b32 s22, s22, 5
s_lshr_b32 s23, s2, 3
s_add_u32 s22, s22, s23
s_lshl_b32 s23, s22, 3
s_lshl_b32 s44, s3, 1
s_add_u32 s44, s44, s23
s_lshl_b32 s44, s44, 10
v_lshlrev_b32 v3, 4, v1
s_and_b32 s45, s3, 1
s_lshr_b32 s46, s3, 1
v_and_b32 v4, 15, v1
v_lshrrev_b32 v5, 4, v1
s_lshl_b32 s47, s45, 4
v_add_u32 v6, s47, v4
v_cvt_f32_u32 v40, v6
v_mul_f32 v40, {f32(1/32)}, v40
v_lshlrev_b32 v41, 2, v5
v_cvt_f32_u32 v41, v41
v_mul_f32 v42, v41, v40
v_mul_f32 v43, {f32(16.0)}, v40
v_add_f32 v43, v43, v42
""")
    for j in range(8):
        src = 42 if j < 4 else 43
        if j % 4 == 0: a(f"v_mov_b32 v{44+j}, v{src}")
        else: a(f"v_add_f32 v{44+j}, v{44+j-1}, v40")
    a("s_waitcnt lgkmcnt(0)")
    srd(a, 24, 4, 2048 * 1024)
    a(f"buffer_load_dwordx4 v[8:11], v3, s[24:27], s44 offen {OPT['xflag']}")
    a(f"buffer_load_dwordx4 v[12:15], v3, s[24:27], s44 offen offset:1024 {OPT['xflag']}")
    srd(a, 28, 20, WS_BYTES)
    for j in range(8): a(f"v_cos_f32 v{52+j}, v{44+j}")
    for j in range(8): a(f"v_sin_f32 v{44+j}, v{44+j}")
    for j in range(4): a(f"v_cvt_pk_bf16_f32 v{C+j}, v{52+2*j}, v{53+2*j}")
    for j in range(4): a(f"v_cvt_pk_bf16_f32 v{NS+j}, -v{44+2*j}, -v{45+2*j}")
    a(f"""
v_lshrrev_b32 v44, 1, v4
v_cvt_f32_u32 v44, v44
v_mul_f32 v44, {f32(1/16)}, v44
v_mul_f32 v45, v41, v44
v_add_f32 v46, v45, v44
v_add_f32 v47, v46, v44
v_add_f32 v48, v47, v44
v_and_b32 v49, 1, v4
v_cmp_eq_u32 vcc, 1, v49
""")
    for j in range(4): a(f"v_cos_f32 v{52+j}, v{45+j}")
    for j in range(4): a(f"v_sin_f32 v{56+j}, v{45+j}")
    for j in range(4):
        a(f"v_sub_f32 v{60}, 0, v{56+j}")
        a(f"v_cndmask_b32 v{44+j}, v{52+j}, v60, vcc")
        a(f"v_cndmask_b32 v{48+j}, v{56+j}, v{52+j}, vcc")
    for j in range(4): a(f"v_cvt_pk_bf16_f32 v{A2+j}, v{44+2*j}, v{45+2*j}")
    a(f"""
v_cmp_eq_u32 vcc, 0, v6
v_mov_b32 v44, 0x100
v_cndmask_b32 v44, v6, v44, vcc
v_cvt_f32_u32 v44, v44
v_mul_f32 v44, {f32(1/512)}, v44
v_mul_f32 v45, v41, v44
v_add_f32 v46, v45, v44
v_add_f32 v47, v46, v44
v_add_f32 v48, v47, v44
""")
    for i in range(4): a(f"v_cos_f32 v{TC+i}, v{45+i}")
    for i in range(4): a(f"v_sin_f32 v{TS+i}, v{45+i}")
    a("s_mov_b64 s[48:49], vcc")
    for ip in range(2):
        a(f"""
v_lshlrev_b32 v44, 1, v5
v_add_u32 v44, {ip}, v44
v_lshlrev_b32 v45, 5, v44
v_add_u32 v46, v6, v45
v_sub_u32 v47, 0x100, v45
v_cmp_lt_u32 vcc, 0, v44
s_and_b64 vcc, vcc, s[48:49]
v_cndmask_b32 v46, v46, v47, vcc
v_lshlrev_b32 v{VO+ip}, 5, v46
v_mov_b32 v47, 0x80008000
v_cndmask_b32 v{MK+ip}, 0, v47, vcc
""")
    a(f"""
s_lshl_b32 s50, s22, 13
s_lshl_b32 s51, s46, 3
s_add_u32 s50, s50, s51
s_add_u32 s50, s50, {WS_YT}
s_lshr_b32 s52, s22, 1
s_lshl_b32 s52, s52, 11
s_and_b32 s53, s22, 1
s_lshl_b32 s53, s53, 9
s_add_u32 s52, s52, s53
s_lshl_b32 s53, s3, 19
s_add_u32 s52, s52, s53
s_add_u32 s52, s52, {WS_H}
s_add_u32 s53, s52, 262144
s_lshl_b32 s54, s3, 11
v_add_u32 v2, s54, v3
s_mul_i32 s54, s3, {2*HS_PITCH}
s_add_u32 s54, s54, {HS_OFF}
v_add_u32 v7, s54, v3
v_bfe_u32 v44, v1, 2, 2
v_mul_u32_u24 v40, {HS_PITCH}, v44
v_lshrrev_b32 v44, 5, v1
v_lshlrev_b32 v44, 6, v44
v_add_u32 v40, v40, v44
v_and_b32 v44, 1, v1
v_lshlrev_b32 v44, 5, v44
v_add_u32 v40, v40, v44
v_bfe_u32 v44, v1, 4, 1
v_lshlrev_b32 v44, 4, v44
v_add_u32 v40, v40, v44
v_bfe_u32 v44, v1, 1, 1
v_lshlrev_b32 v44, 3, v44
v_add_u32 v40, v40, v44
s_lshl_b32 s54, s3, 8
s_add_u32 s54, s54, {HS_OFF}
v_add_u32 v40, s54, v40
v_lshrrev_b32 v44, 5, v1
v_lshlrev_b32 v44, 10, v44
v_and_b32 v45, 31, v1
v_lshlrev_b32 v45, 4, v45
v_add_u32 v41, v44, v45
s_lshl_b32 s54, s46, 12
v_lshlrev_b32 v42, 3, v1
v_add_u32 v42, s54, v42
v_mov_b32 v43, {f32(1/512)}
""")
    X = [64, 72]
    stamp(a, 1)
    for r in range(2):
        for k in range(4):
            a(f"v_lshlrev_b32 v{X[r]+2*k}, 16, v{8+4*r+k}")
            a(f"v_and_b32 v{X[r]+2*k+1}, 0xffff0000, v{8+4*r+k}")
    stamp(a, 2)
    SUM = [80, 84]; SQ = [82, 86]
    for r in range(2):
        a(f"v_pk_add_f32 v[{SUM[r]}:{SUM[r]+1}], v[{X[r]}:{X[r]+1}], v[{X[r]+2}:{X[r]+3}]")
        a(f"v_pk_mul_f32 v[{SQ[r]}:{SQ[r]+1}], v[{X[r]}:{X[r]+1}], v[{X[r]}:{X[r]+1}]")
    for k in (1, 2, 3):
        for r in range(2):
            if k > 1: a(f"v_pk_add_f32 v[{SUM[r]}:{SUM[r]+1}], v[{SUM[r]}:{SUM[r]+1}], v[{X[r]+2*k}:{X[r]+2*k+1}]")
            a(f"v_pk_fma_f32 v[{SQ[r]}:{SQ[r]+1}], v[{X[r]+2*k}:{X[r]+2*k+1}], v[{X[r]+2*k}:{X[r]+2*k+1}], v[{SQ[r]}:{SQ[r]+1}]")
    red = []
    for r in range(2):
        a(f"v_add_f32 v{SUM[r]}, v{SUM[r]}, v{SUM[r]+1}")
        a(f"v_add_f32 v{SQ[r]}, v{SQ[r]}, v{SQ[r]+1}")
        red += [SUM[r], SQ[r]]
    for step in ("row_shr:1", "row_shr:2", "row_shr:4", "row_shr:8"):
        for v in red: a(f"v_add_f32_dpp v{v}, v{v}, v{v} {step} row_mask:0xf bank_mask:0xf")
    for v in red: a(f"v_add_f32_dpp v{v}, v{v}, v{v} row_bcast:15 row_mask:0xa bank_mask:0xf")
    for v in red: a(f"v_add_f32_dpp v{v}, v{v}, v{v} row_bcast:31 row_mask:0xc bank_mask:0xf")
    for k, v in enumerate(red): a(f"v_readlane_b32 s{56+k}, v{v}, 63")
    for r in range(2):
        b = 88 + 8 * r
        a(f"v_mul_f32 v{b}, s{56+2*r}, v43")
        a(f"v_mul_f32 v{b+1}, s{57+2*r}, v43")
    for r in range(2):
        b = 88 + 8 * r
        a(f"v_fma_f32 v{b+1}, -v{b}, v{b}, v{b+1}")
    for r in range(2):
        b = 88 + 8 * r
        a(f"v_max_f32 v{b+1}, 0, v{b+1}")
    for r in range(2):
        b = 88 + 8 * r
        a(f"v_add_f32 v{b+2}, {f32(1e-5)}, v{b+1}")
    for r in range(2):
        b = 88 + 8 * r
        a(f"v_rsq_f32 v{b+4}, v{b+2}")
    for r in range(2):
        b = 88 + 8 * r
        a(f"v_mul_f32 v{b+2}, v{b+4}, v{b+4}")
    for r in range(2):
        b = 88 + 8 * r
        a(f"v_mul_f32 v{b+6}, -v{b}, v{b+4}")
        a(f"v_mul_f32 v{b+2}, v{b+2}, v{b+1}")
    for r in range(2):
        b = 88 + 8 * r
        a(f"v_add_f32 v{b+2}, {f32(1e-5)}, v{b+2}")
    for r in range(2):
        b = 88 + 8 * r
        a(f"v_rsq_f32 v{b+3}, v{b+2}")
    for r in range(2):
        b = 88 + 8 * r
        a(f"v_mov_b32 v{b+5}, v{b+4}")
        a(f"v_mov_b32 v{b+7}, v{b+6}")
    for r in range(2):
        b = 88 + 8 * r
        XN = 104 + 16 * r
        for k in range(4):
            a(f"v_pk_fma_f32 v[{XN+2*k}:{XN+2*k+1}], v[{X[r]+2*k}:{X[r]+2*k+1}], v[{b+4}:{b+5}], v[{b+6}:{b+7}]")
        for k in range(4): a(f"v_cvt_pk_bf16_f32 v{8+4*r+k}, v{XN+2*k}, v{XN+2*k+1}")
        a(f"ds_write_b128 v2, v[{8+4*r}:{11+4*r}] offset:{XN_OFF+1024*r}")
    for r in range(2):
        b = 88 + 8 * r
        a(f"v_mul_f32 v{152+4*r}, v{b+4}, v{b+3}")
        a(f"v_mul_f32 v{153+4*r}, v{b+4}, v{b+3}")
        a(f"v_mul_f32 v{154+4*r}, v{b+6}, v{b+3}")
        a(f"v_mul_f32 v{155+4*r}, v{b+6}, v{b+3}")
    for r in range(2):
        HH = 112 + 16 * r
        for k in range(4):
            a(f"v_pk_fma_f32 v[{HH+2*k}:{HH+2*k+1}], v[{X[r]+2*k}:{X[r]+2*k+1}], v[{152+4*r}:{153+4*r}], v[{154+4*r}:{155+4*r}]")
        for k in range(4): a(f"v_cvt_pk_bf16_f32 v{136+4*r+k}, v{HH+2*k}, v{HH+2*k+1}")
        a(f"ds_write_b128 v7, v[{136+4*r}:{139+4*r}] offset:{HS_PITCH*r}")
    a("s_waitcnt lgkmcnt(0)")
    a("s_barrier")
    stamp(a, 3)
    for rho in range(4):
        for rd in range(2):
            a(f"ds_read_b64_tr_b16 v[{64+4*rho+2*rd}:{65+4*rho+2*rd}], v42 offset:{XN_OFF+1024*rho+512*rd}")
    for ii in range(2):
        for rd in range(2):
            a(f"ds_read_b64_tr_b16 v[{144+4*ii+2*rd}:{145+4*ii+2*rd}], v40 offset:{128*ii+4*HS_PITCH*rd}")
    TR, TI = 80, 96
    for rho in range(4):
        a(f"v_mfma_f32_16x16x32_bf16 v[{TR+4*rho}:{TR+4*rho+3}], v[{64+4*rho}:{67+4*rho}], v[{C}:{C+3}], 0")
        a(f"v_mfma_f32_16x16x32_bf16 v[{TI+4*rho}:{TI+4*rho+3}], v[{64+4*rho}:{67+4*rho}], v[{NS}:{NS+3}], 0")
    a(f"buffer_store_dwordx4 v[144:147], v41, s[28:31], s52 offen {ST}")
    a(f"buffer_store_dwordx4 v[148:151], v41, s[28:31], s53 offen {ST}")
    BB = 64; XO = 124
    for rho in range(4):
        tr, ti = TR + 4 * rho, TI + 4 * rho
        PR, PI, TT = 112, 116, 120
        if rho & 1: PR, PI, TT = 152, 156, 160
        for p in range(2):
            o = 2 * p
            a(f"v_pk_mul_f32 v[{TT}:{TT+1}], v[{ti+o}:{ti+o+1}], v[{TS+o}:{TS+o+1}]")
            a(f"v_pk_mul_f32 v[{TT+2}:{TT+3}], v[{tr+o}:{tr+o+1}], v[{TS+o}:{TS+o+1}]")
            a(f"v_pk_fma_f32 v[{PR+o}:{PR+o+1}], v[{tr+o}:{tr+o+1}], v[{TC+o}:{TC+o+1}], v[{TT}:{TT+1}]")
            a(f"v_pk_fma_f32 v[{PI+o}:{PI+o+1}], v[{ti+o}:{ti+o+1}], v[{TC+o}:{TC+o+1}], v[{TT+2}:{TT+3}] neg_lo:[0,0,1] neg_hi:[0,0,1]")
        b = BB + 4 * rho
        a(f"v_cvt_pk_bf16_f32 v{b}, v{PR}, v{PR+1}")
        a(f"v_cvt_pk_bf16_f32 v{b+1}, v{PR+2}, v{PR+3}")
        a(f"v_cvt_pk_bf16_f32 v{b+2}, v{PI}, v{PI+1}")
        a(f"v_cvt_pk_bf16_f32 v{b+3}, v{PI+2}, v{PI+3}")
        a(f"v_mfma_f32_16x16x32_bf16 v[{XO+4*rho}:{XO+4*rho+3}], v[{A2}:{A2+3}], v[{b}:{b+3}], 0")
    for i in range(4):
        o = 144 + 2 * i
        a(f"v_cvt_pk_bf16_f32 v{o}, v{XO+i}, v{XO+4+i}")
        a(f"v_cvt_pk_bf16_f32 v{o+1}, v{XO+8+i}, v{XO+12+i}")
        if i & 1:
            a(f"v_xor_b32 v{o}, v{MK+(i>>1)}, v{o}")
            a(f"v_xor_b32 v{o+1}, v{MK+(i>>1)}, v{o+1}")
        a(f"buffer_store_dwordx2 v[{o}:{o+1}], v{VO+(i>>1)}, s[28:31], s50 offen offset:{16*(i&1)} {ST}")
    a(";;AUTO_END")
    stamp(a, 4)
    if OPT["pf_w2"] == "main":
        srd(a, 40, 16, 1792 * 4096)
        a(f"""
s_and_b32 s58, s2, 7
s_lshl_b32 s58, s58, 9
s_lshr_b32 s59, s2, 3
s_lshl_b32 s59, s59, 2
s_add_u32 s59, s59, s3
s_mul_i32 s59, s59, {14*4096}
s_add_u32 s58, s58, s59
v_lshrrev_b32 v40, 5, v1
v_lshlrev_b32 v40, 12, v40
v_and_b32 v41, 31, v1
v_lshlrev_b32 v41, 4, v41
v_add_u32 v40, v40, v41
""")
        for k in range(7):
            a(f"buffer_load_dwordx4 v[44:47], v40, s[40:43], s58 offen")
            if k < 6: a(f"s_add_u32 s58, s58, 8192")
    stamp_flush(a, 0, 5)
    a("s_endpgm")

    a(f"{P}_helper:")
    a(f"""
s_sub_u32 s22, s2, 256
s_and_b32 s23, s22, 7
s_lshr_b32 s44, s22, 3
s_and_b32 s45, s44, 3
s_lshr_b32 s44, s44, 2
s_lshl_b32 s44, s44, 3
s_add_u32 s44, s44, s23
s_and_b32 s46, s44, 1
s_bfe_u32 s47, s44, 0x10001
s_bfe_u32 s48, s44, 0x20002
s_lshr_b32 s49, s44, 4
s_lshl_b32 s49, s49, 3
s_lshl_b32 s50, s46, 5
s_add_u32 s50, s50, s49
s_lshl_b32 s51, s3, 1
s_add_u32 s50, s50, s51
s_lshl_b32 s51, s47, 10
s_add_u32 s50, s50, s51
s_lshl_b32 s51, s48, 8
s_add_u32 s50, s50, s51
s_mul_i32 s50, s50, 514
s_lshl_b32 s57, s45, 6
v_add_u32 v3, s57, v1
v_mov_b32 v4, 0x100
v_cmp_eq_u32 vcc, 0, v3
v_cndmask_b32 v4, v3, v4, vcc
v_lshlrev_b32 v4, 1, v4
s_waitcnt lgkmcnt(0)
""")
    srd(a, 32, 6, 2048 * 514)
    srd(a, 36, 8, 2048 * 514)
    srd(a, 28, 20, WS_BYTES)
    for ii in range(4):
        if ii: a(f"s_add_u32 s50, s50, {64*514}")
        for nn in range(2):
            a(f"buffer_load_ushort v{8+8*nn+2*ii}, v4, s[32:35], s50 offen offset:{514*nn} {OPT['wflag']}")
            a(f"buffer_load_ushort v{9+8*nn+2*ii}, v4, s[36:39], s50 offen offset:{514*nn} {OPT['wflag']}")
    NPF = 16 if OPT["pf_w1"] else 0
    if OPT["pf_w1"]:
        srd(a, 40, 12, 2048 * 3584)
        a(f"""
s_lshr_b32 s58, s23, 1
s_mul_i32 s58, s58, 896
s_lshr_b32 s59, s22, 3
s_lshl_b32 s59, s59, 2
s_add_u32 s59, s59, s3
s_mul_i32 s59, s59, {16*3584}
s_add_u32 s58, s58, s59
v_cmp_gt_u32 vcc, 56, v1
v_lshlrev_b32 v70, 4, v1
v_mov_b32 v71, 0x7fffff00
v_cndmask_b32 v70, v71, v70, vcc
""")
        for k in range(16):
            a(f"buffer_load_dwordx4 v[72:75], v70, s[40:43], s58 offen {OPT['pfflag']}")
            if k < 15: a(f"s_add_u32 s58, s58, 3584")
    def pf_w2(idreg, tmpv):
        srd(a, 40, 16, 1792 * 4096)
        a(f"""
s_and_b32 s58, {idreg}, 7
s_lshl_b32 s58, s58, 9
s_lshr_b32 s59, {idreg}, 3
s_and_b32 s59, s59, 31
s_lshl_b32 s59, s59, 2
s_add_u32 s59, s59, s3
s_mul_i32 s59, s59, {14*4096}
s_add_u32 s58, s58, s59
v_lshrrev_b32 v{tmpv}, 5, v1
v_lshlrev_b32 v{tmpv}, 12, v{tmpv}
v_and_b32 v{tmpv+1}, 31, v1
v_lshlrev_b32 v{tmpv+1}, 4, v{tmpv+1}
v_add_u32 v{tmpv}, v{tmpv}, v{tmpv+1}
""")
        for k in range(7):
            a(f"buffer_load_dwordx4 v[{tmpv+2}:{tmpv+5}], v{tmpv}, s[40:43], s58 offen")
            if k < 6: a(f"s_add_u32 s58, s58, 8192")
    if OPT["pf_w2"] == "helper":
        pf_w2("s2", 90); NPF += 7
    a("s_mov_b32 s62, 0")
    a("s_mov_b32 s54, 0")
    a("s_mov_b32 s56, 0")
    a("v_lshlrev_b32 v33, 4, v1")
    a(f"""
s_lshl_b32 s51, s46, 12
s_lshl_b32 s52, s48, 10
s_add_u32 s51, s51, s52
s_lshl_b32 s52, s47, 5
s_add_u32 s52, s52, s49
s_lshl_b32 s52, s52, 4
s_add_u32 s51, s51, s52
s_add_u32 s51, s51, {WS_WT}
s_lshl_b32 s52, s45, 19
s_add_u32 s51, s51, s52
""")
    a(f"""
s_cmp_ge_u32 s3, 2
s_cbranch_scc1 {P}_tabs
s_lshr_b32 s52, s22, 5
s_and_b32 s53, s22, 31
v_and_b32 v24, 31, v1
v_lshrrev_b32 v25, 5, v1
v_bfe_u32 v26, v24, 2, 1
v_lshlrev_b32 v26, 4, v26
v_lshrrev_b32 v27, 3, v24
v_lshlrev_b32 v27, 2, v27
v_add_u32 v26, v26, v27
v_and_b32 v27, 3, v24
v_add_u32 v26, v26, v27
s_lshl_b32 s54, s52, 6
s_lshl_b32 s55, s3, 5
s_add_u32 s54, s54, s55
v_add_u32 v26, s54, v26
s_lshl_b32 s55, s53, 3
v_lshlrev_b32 v27, 1, v25
v_add_u32 v27, s55, v27
v_mov_b32 v40, 0x100
""")
    for jj, dc in enumerate((0, 1, 4, 5)):
        a(f"""
v_add_u32 v28, {dc}, v27
v_cmp_eq_u32 vcc, 0, v28
v_cndmask_b32 v29, v28, v40, vcc
v_cndmask_b32 v30, 2.0, 1.0, vcc
v_mul_u32_u24 v29, v29, v26
v_and_b32 v29, 0x1ff, v29
v_cvt_f32_u32 v29, v29
v_mul_f32 v29, {f32(1/512)}, v29
v_cos_f32 v31, v29
v_sin_f32 v32, v29
v_mul_f32 v31, v31, v30
v_mul_f32 v32, v32, v30
v_cvt_pk_bf16_f32 v{36+jj}, v31, -v32
""")
    a(f"""
s_mul_i32 s54, s52, 144
s_add_u32 s54, s54, s53
s_add_u32 s54, s54, 112
s_lshl_b32 s54, s54, 1
s_add_u32 s54, s54, s3
s_lshl_b32 s54, s54, 10
s_add_u32 s54, s54, {WS_G}
v_lshlrev_b32 v33, 4, v1
s_mov_b32 s62, 1
s_branch {P}_wfin
""")
    a(f"{P}_tabs:")
    a(f"""
v_and_b32 v24, 31, v1
v_lshrrev_b32 v25, 5, v1
v_bfe_u32 v26, v24, 2, 1
v_lshlrev_b32 v26, 4, v26
v_lshrrev_b32 v27, 3, v24
v_lshlrev_b32 v27, 2, v27
v_add_u32 v26, v26, v27
v_and_b32 v27, 3, v24
v_add_u32 v26, v26, v27
v_lshlrev_b32 v33, 4, v1
s_cmp_ge_u32 s22, 16
s_cbranch_scc1 {P}_tab64
s_lshr_b32 s52, s22, 3
s_and_b32 s53, s22, 7
s_lshl_b32 s54, s22, 10
s_cmp_eq_u32 s3, 3
s_cbranch_scc1 {P}_tw2
s_lshl_b32 s55, s52, 5
v_add_u32 v28, s55, v24
v_lshlrev_b32 v29, 4, v25
s_lshl_b32 s55, s53, 1
v_add_u32 v29, s55, v29
v_add_u32 v30, 1, v29
v_mul_u32_u24 v29, v29, v28
v_mul_u32_u24 v30, v30, v28
v_mov_b32 v31, 1.0
s_add_u32 s54, s54, {WS_TB+TB_TW1}
s_branch {P}_twfin
""")
    a(f"{P}_tw2:")
    a(f"""
s_lshl_b32 s55, s52, 5
s_lshr_b32 s56, s53, 1
s_lshl_b32 s56, s56, 3
s_add_u32 s55, s55, s56
s_and_b32 s56, s53, 1
s_lshl_b32 s56, s56, 1
s_add_u32 s55, s55, s56
v_lshlrev_b32 v29, 2, v25
v_add_u32 v29, s55, v29
v_add_u32 v30, 1, v29
v_mul_u32_u24 v29, v29, v26
v_mul_u32_u24 v30, v30, v26
v_mov_b32 v31, {f32(2.0**-20)}
s_add_u32 s54, s54, {WS_TB+TB_TW2}
""")
    a(f"{P}_twfin:")
    a(f"""
v_cvt_f32_u32 v29, v29
v_cvt_f32_u32 v30, v30
v_mul_f32 v29, {f32(1/2048)}, v29
v_mul_f32 v30, {f32(1/2048)}, v30
v_cos_f32 v36, v29
v_cos_f32 v37, v30
v_sin_f32 v38, v29
v_sin_f32 v39, v30
v_mul_f32 v36, v36, v31
v_mul_f32 v37, v37, v31
v_mul_f32 v38, v38, v31
v_mul_f32 v39, v39, v31
s_mov_b32 s62, 1
s_branch {P}_wfin
""")
    a(f"{P}_tab64:")
    a(f"""
s_cmp_eq_u32 s3, 3
s_cbranch_scc1 {P}_wfin
s_cmp_ge_u32 s22, 26
s_cbranch_scc1 {P}_wfin
s_cmp_ge_u32 s22, 24
s_cbranch_scc1 {P}_tab32
s_sub_u32 s52, s22, 16
s_lshr_b32 s53, s52, 1
s_and_b32 s55, s52, 1
s_lshl_b32 s55, s55, 5
v_add_u32 v28, s55, v24
s_lshl_b32 s55, s53, 4
v_lshlrev_b32 v29, 2, v25
v_add_u32 v29, s55, v29
s_lshl_b32 s54, s52, 10
s_add_u32 s54, s54, {WS_TB+TB_C64}
s_mov_b32 s56, 8192
v_mov_b32 v31, {f32(1/64)}
v_mov_b32 v34, 4
s_branch {P}_tabfin
""")
    a(f"{P}_tab32:")
    a(f"""
s_sub_u32 s52, s22, 24
v_mov_b32 v28, v26
s_lshl_b32 s55, s52, 3
v_lshlrev_b32 v29, 4, v25
v_add_u32 v29, s55, v29
s_lshl_b32 s54, s52, 10
s_add_u32 s54, s54, {WS_TB+TB_C32}
s_mov_b32 s56, 2048
v_mov_b32 v31, {f32(1/32)}
v_mov_b32 v34, 0
""")
    a(f"{P}_tabfin:")
    a("v_cvt_f32_u32 v35, v28")
    a("v_mul_f32 v35, v35, v31")
    for j in range(8):
        a(f"v_add_u32 v30, {(j&3) + 4*(j>>2)}, v29")
        if j >= 4: a("v_add_u32 v30, v30, v34")
        a("v_cvt_f32_u32 v30, v30")
        a("v_mul_f32 v30, v30, v35")
        a("v_fract_f32 v30, v30")
        a(f"v_cos_f32 v{40+j}, v30")
        a(f"v_sin_f32 v{48+j}, v30")
    for j in range(4): a(f"v_cvt_pk_bf16_f32 v{36+j}, v{40+2*j}, v{41+2*j}")
    for j in range(4): a(f"v_cvt_pk_bf16_f32 v{56+j}, v{48+2*j}, v{49+2*j}")
    for j in range(4): a(f"v_cvt_pk_bf16_f32 v{60+j}, -v{48+2*j}, -v{49+2*j}")
    a("s_mov_b32 s62, 3")
    a(f"{P}_wfin:")
    a(f"""
v_mul_u32_u24 v5, {WP_PITCH}, v1
s_lshl_b32 s52, s3, 5
v_add_u32 v5, s52, v5
v_lshrrev_b32 v6, 3, v1
s_lshl_b32 s52, s3, 4
v_add_u32 v6, s52, v6
v_and_b32 v7, 7, v1
v_lshlrev_b32 v7, 4, v7
v_mul_u32_u24 v80, {WP_PITCH}, v6
v_add_u32 v80, v80, v7
v_lshlrev_b32 v81, 13, v6
v_add_u32 v81, v81, v7
s_waitcnt vmcnt({NPF})
""")
    for nn in range(2):
        for ii in range(4):
            a(f"v_lshl_or_b32 v{64+4*nn+ii}, v{9+8*nn+2*ii}, 16, v{8+8*nn+2*ii}")
        a(f"ds_write_b128 v5, v[{64+4*nn}:{67+4*nn}] offset:{16*nn}")
    a("s_waitcnt lgkmcnt(0)")
    a("s_barrier")
    a(f"ds_read_b128 v[64:67], v80")
    a(f"ds_read_b128 v[68:71], v80 offset:{8*WP_PITCH}")
    a("s_add_u32 s52, s51, 65536")
    a("s_waitcnt lgkmcnt(1)")
    a(f"buffer_store_dwordx4 v[64:67], v81, s[28:31], s51 offen {STH}")
    a("s_waitcnt lgkmcnt(0)")
    a(f"buffer_store_dwordx4 v[68:71], v81, s[28:31], s52 offen {STH}")
    a(f"""
s_cmp_eq_u32 s62, 0
s_cbranch_scc1 {P}_tdone
buffer_store_dwordx4 v[36:39], v33, s[28:31], s54 offen {STH}
s_cmp_eq_u32 s62, 1
s_cbranch_scc1 {P}_tdone
s_add_u32 s54, s54, s56
buffer_store_dwordx4 v[56:59], v33, s[28:31], s54 offen {STH}
s_add_u32 s54, s54, s56
buffer_store_dwordx4 v[60:63], v33, s[28:31], s54 offen {STH}
""")
    a(f"{P}_tdone:")
    if OPT["pf_code"]:
        a("s_cmp_ge_u32 s22, 8")
        a(f"s_cbranch_scc1 {P}_nopf")
        a("s_cmp_lg_u32 s3, 3")
        a(f"s_cbranch_scc1 {P}_nopf")
        code_prefetch(a, "k2_kernel", 16384, 76, 60)
        code_prefetch(a, "k3_kernel", 12288, 78, 62)
        a(f"{P}_nopf:")
    stamp(a, 1); stamp(a, 2); stamp(a, 3); stamp(a, 4)
    stamp_flush(a, 0, 5)
    a(f"{P}_done:")
    a("s_endpgm")
    text = a.finalize()
    errs = check_waits(a.ins, take=[f"{P}_main"])
    for tk in ([f"{P}_helper"], [f"{P}_helper", f"{P}_tabs"], [f"{P}_helper", f"{P}_tabs", f"{P}_tw2"],
               [f"{P}_helper", f"{P}_tabs", f"{P}_tab64"], [f"{P}_helper", f"{P}_tabs", f"{P}_tab64", f"{P}_tab32"]):
        errs += check_waits(a.ins, take=tk if not OPT["split"] else tk[1:])
    assert not errs
    return header(name) + text, descriptor(name, 168, 102)

if __name__ == "__main__":
    t, d = gen_k1()
    print(len(t.splitlines()))
```

```python
from common import *
from gemm import *
from asmlib import interleave

K2_LDS = 131072
DEPTH = 8
C1 = -2.0 * 0.7978845608028654 * 1.4426950408889634
C2 = C1 * 0.044715
OPT = dict(st="", pf_w2=False, pf_w2g=False, pf_w2d=True, pfflag="", filt="", prio=0, depth=8, m16=False, nomfma=False)

def reduce_addrs(a):
    a(f"""
v_lshlrev_b32 v8, 4, v1
s_xor_b32 s53, s3, 1
s_mul_i32 s53, s53, 12288
v_add_u32 v9, s53, v8
s_xor_b32 s53, s3, 2
s_mul_i32 s53, s53, 12288
s_add_u32 s53, s53, 4096
v_add_u32 v10, s53, v8
s_xor_b32 s53, s3, 3
s_mul_i32 s53, s53, 12288
s_add_u32 s53, s53, 8192
v_add_u32 v11, s53, v8
s_mul_i32 s53, s3, 12288
v_add_u32 v12, s53, v8
""")

def gemm1(a, P):
    ST = OPT["st"]
    if OPT["pf_w2g"]:
        a(f"""
s_cmp_lt_u32 s3, 4
s_cbranch_scc1 {P}_gmain
s_sub_u32 s44, s23, 4
s_lshl_b32 s44, s44, 2
s_add_u32 s44, s44, s3
s_sub_u32 s44, s44, 4
s_lshl_b32 s44, s44, 16
s_lshl_b32 s45, s22, 9
s_add_u32 s44, s44, s45
v_lshrrev_b32 v6, 5, v1
v_lshlrev_b32 v6, 12, v6
v_and_b32 v7, 31, v1
v_lshlrev_b32 v7, 4, v7
v_add_u32 v6, v6, v7
s_waitcnt lgkmcnt(0)
""")
        srd(a, 24, 16, 1792 * 4096)
        for k in range(8):
            a(f"buffer_load_dwordx4 v[8:11], v6, s[24:27], s44 offen {OPT['pfflag']}")
            if k < 7: a("s_add_u32 s44, s44, 8192")
        a("s_endpgm")
        a(f"{P}_gmain:")
    a(f"""
s_cmp_ge_u32 s3, 4
s_cbranch_scc1 {P}_done
s_sub_u32 s23, s23, 4
s_and_b32 s44, s22, 1
s_lshl_b32 s44, s44, 2
s_and_b32 s45, s23, 3
s_add_u32 s44, s44, s45
s_lshr_b32 s45, s22, 1
s_mul_i32 s45, s45, 7
s_lshr_b32 s46, s23, 2
s_add_u32 s45, s45, s46
""")
    lane_dma_offsets(a, 2, 3, 3584)
    tr_addr(a, 5, 8)
    a(f"""
s_lshr_b32 s47, s3, 1
s_and_b32 s48, s3, 1
s_lshl_b32 s49, s47, 6
v_xor_b32 v5, s49, v5
s_lshl_b32 s50, s3, 14
v_add_u32 v5, s50, v5
v_xor_b32 v6, 64, v5
v_lshlrev_b32 v8, 4, v1
s_lshl_b32 s49, s48, 10
v_add_u32 v4, s49, v8
s_xor_b32 s49, s49, 1024
v_add_u32 v7, s49, v8
s_mul_i32 s51, s3, {512*3584}
s_lshl_b32 s52, s45, 7
s_add_u32 s51, s51, s52
s_lshl_b32 s52, s44, 18
s_lshl_b32 s53, s3, 16
s_add_u32 s52, s52, s53
s_add_u32 s52, s52, {WS_H}
v_lshrrev_b32 v13, 5, v1
v_lshlrev_b32 v13, 3, v13
s_lshl_b32 s56, s45, 7
s_lshl_b32 s54, s47, 6
s_add_u32 s56, s56, s54
s_waitcnt lgkmcnt(0)
""")
    srd(a, 24, 12, 2048 * 3584)
    srd(a, 36, 20, WS_BYTES)
    def dma(slot, k):
        v, off = (2, "") if k == 0 else (3, " offset:1024")
        a(f"buffer_load_dwordx4 v{v}, s[24:27], s51 offen{off} lds ; @def=w{slot}")
    def hload(slot, k):
        a(f"buffer_load_dwordx4 v[{BR+8*slot+4*k}:{BR+8*slot+4*k+3}], v{4 if k == 0 else 7}, s[36:39], s52 offen")
    def advance():
        a(f"s_add_u32 s51, s51, {16*3584}")
        a(f"s_add_u32 s52, s52, 2048")
    def issue(slot):
        a(f"s_add_u32 m0, s50, {slot*2048}")
        dma(slot, 0); dma(slot, 1); hload(slot, 0); hload(slot, 1); advance()
    def trreads(slot, p):
        for bf in range(2):
            for rd in range(2):
                d = AR + 8 * p + 4 * bf + 2 * rd
                a(f"ds_read_b64_tr_b16 v[{d}:{d+1}], v{5+bf} offset:{slot*2048+rd*512} ; @use=w{slot}")
    for s in range(DEPTH): issue(s)
    srd(a, 32, 14, 1792 * 2)
    srd(a, 28, 20, WS_BYTES)
    for g in range(4):
        a(f"buffer_load_dwordx2 v[{16+2*g}:{17+2*g}], v13, s[32:35], s56 offen offset:{16*g}")
    for i in range(64): a(f"v_mov_b32 v{ACC+i}, 0")
    reduce_addrs(a)
    stamp(a, 1)
    a(f"s_waitcnt vmcnt({4*(DEPTH-1)+4})")
    stamp(a, 2)
    cyc(a, 0)
    trreads(0, 0)
    def step(j, wait, load, last=False):
        a(f"s_waitcnt vmcnt({wait})")
        if not last:
            trreads((j + 1) % DEPTH, (j + 1) & 1)
            if load: a(f"s_add_u32 m0, s50, {j*2048}")
            a("s_waitcnt lgkmcnt(4)")
        else:
            a("s_waitcnt lgkmcnt(0)")
        p = j & 1
        order = [(0, 0), (1, 0), (0, 1), (1, 1)]
        for n, (bf, bd) in enumerate(order):
            acc = ACC + 16 * (2 * bf + bd)
            A = AR + 8 * p + 4 * bf; B = BR + 8 * j + 4 * bd
            if OPT["m16"]:
                a(f"v_mfma_f32_16x16x32_bf16 v[{acc}:{acc+3}], v[{A}:{A+3}], v[{B}:{B+3}], v[{acc}:{acc+3}]")
                a(f"v_mfma_f32_16x16x32_bf16 v[{acc+4}:{acc+7}], v[{A}:{A+3}], v[{B}:{B+3}], v[{acc+4}:{acc+7}]")
            elif not OPT["nomfma"]:
                a(f"v_mfma_f32_32x32x16_bf16 v[{acc}:{acc+15}], v[{A}:{A+3}], v[{B}:{B+3}], v[{acc}:{acc+15}]")
            if load:
                if n < 2: dma(j, n)
                else: hload(j, n - 2)
        if load: advance()
    a("s_mov_b32 s55, 0")
    a(f"{P}_gloop:")
    for j in range(DEPTH): step(j, 4 * (DEPTH - 2), True)
    a("s_add_u32 s55, s55, 1")
    a(f"s_cmp_lt_u32 s55, {32 // DEPTH - 1}")
    a(f"s_cbranch_scc1 {P}_gloop")
    NPF = 0
    if OPT["pf_w2d"]:
        NPF = 8
        srd(a, 24, 16, 1792 * 4096)
        a(f"""
s_lshl_b32 s51, s23, 2
s_add_u32 s51, s51, s3
s_lshl_b32 s51, s51, 16
s_lshl_b32 s52, s22, 9
s_add_u32 s51, s51, s52
v_lshrrev_b32 v2, 5, v1
v_lshlrev_b32 v2, 12, v2
v_and_b32 v3, 31, v1
v_lshlrev_b32 v3, 4, v3
v_add_u32 v2, v2, v3
""")
        for k in range(8):
            a(f"buffer_load_dwordx4 v[24:27], v2, s[24:27], s51 offen")
            if k < 7: a("s_add_u32 s51, s51, 8192")
    for j in range(DEPTH): step(j, max(0, 4 * (DEPTH - 2 - j)) + NPF, False, last=(j == DEPTH - 1))
    cyc(a, 1)
    stamp(a, 3)
    a("s_barrier")
    for b in (1, 2, 3):
        for g in range(4):
            r = ACC + 16 * b + 4 * g
            a(f"ds_write_b128 v{8+b}, v[{r}:{r+3}] offset:{1024*g}")
    for g in range(4):
        for k in range(2):
            a(f"v_lshlrev_b32 v{32+4*g+2*k}, 16, v{16+2*g+k}")
            a(f"v_and_b32 v{33+4*g+2*k}, 0xffff0000, v{16+2*g+k}")
    for k in range(8):
        a(f"v_pk_add_f32 v[{ACC+2*k}:{ACC+2*k+1}], v[{ACC+2*k}:{ACC+2*k+1}], v[{32+2*k}:{33+2*k}]")
    a(f"v_mov_b32 v14, {f32(C1)}")
    a(f"v_mov_b32 v15, {f32(C1)}")
    a(f"v_mov_b32 v16, {f32(C2)}")
    a(f"v_mov_b32 v17, {f32(C2)}")
    a(f"v_mov_b32 v18, 1.0")
    a(f"v_mov_b32 v19, 1.0")
    a("s_waitcnt lgkmcnt(0)")
    a("s_barrier")
    for b in range(3):
        for g in range(4):
            r = 128 + 16 * b + 4 * g
            a(f"ds_read_b128 v[{r}:{r+3}], v12 offset:{4096*b+1024*g}")
    for b in range(3):
        a(f"s_waitcnt lgkmcnt({8-4*b})")
        for k in range(8):
            r = 128 + 16 * b + 2 * k
            a(f"v_pk_add_f32 v[{ACC+2*k}:{ACC+2*k+1}], v[{ACC+2*k}:{ACC+2*k+1}], v[{r}:{r+1}]")
    pr = lambda b, k: f"v[{b+2*k}:{b+2*k+1}]"
    for k in range(8): a(f"v_pk_mul_f32 {pr(128,k)}, {pr(ACC,k)}, {pr(ACC,k)}")
    for k in range(8): a(f"v_pk_fma_f32 {pr(128,k)}, {pr(128,k)}, v[16:17], v[14:15]")
    for k in range(8): a(f"v_pk_mul_f32 {pr(128,k)}, {pr(128,k)}, {pr(ACC,k)}")
    for i in range(16): a(f"v_exp_f32 v{128+i}, v{128+i}")
    for k in range(8): a(f"v_pk_add_f32 {pr(128,k)}, {pr(128,k)}, v[18:19]")
    for i in range(16): a(f"v_rcp_f32 v{128+i}, v{128+i}")
    for k in range(8): a(f"v_pk_mul_f32 {pr(128,k)}, {pr(128,k)}, {pr(ACC,k)}")
    for k in range(8): a(f"v_cvt_pk_bf16_f32 v{144+k}, v{128+2*k}, v{129+2*k}")
    a(f"""
s_mul_i32 s53, s44, 144
s_lshl_b32 s54, s45, 2
s_add_u32 s53, s53, s54
s_lshl_b32 s54, s47, 1
s_add_u32 s53, s53, s54
s_lshl_b32 s53, s53, 1
s_add_u32 s53, s53, s48
s_lshl_b32 s53, s53, 10
s_add_u32 s53, s53, {WS_G}
v_lshlrev_b32 v8, 4, v1
buffer_store_dwordx4 v[144:147], v8, s[28:31], s53 offen {ST}
buffer_store_dwordx4 v[148:151], v8, s[28:31], s53 offen offset:2048 {ST}
""")
    stamp(a, 4)
    stamp_flush(a, 1, 5)
    a("s_endpgm")

YR, YI = 32, 48
PKT = (240, 32)
AC = 64
K32 = 8
KB = 128
WR = 152
TW = 184
TMP = 216
COLBASE = 65536
ZT2 = (AC, WR)

def cread(buf, offs, base=KB):
    return [f"ds_read_b128 v[{base+12*buf+4*k}:{base+12*buf+4*k+3}], v2 offset:{o} ; @use=tab" for k, o in enumerate(offs)]

def k64(u, T): return [TB_C64 + (2*u+T)*1024, TB_S64 + (2*u+T)*1024, TB_N64 + (2*u+T)*1024]
def k32(u): return [TB_C32 + u*1024, TB_S32 + u*1024, TB_N32 + u*1024]

def mf(d, x, y, first):
    return f"v_mfma_f32_32x32x16_bf16 v[{d}:{d+15}], v[{x}:{x+3}], v[{y}:{y+3}], " + ("0" if first else f"v[{d}:{d+15}]")

NEG = " neg_lo:[0,0,1] neg_hi:[0,0,1]"

def cmul(r, i, c, s_, t, conj_minus_on_re):
    if conj_minus_on_re:
        return [f"v_mul_f32 v{t}, v{i}, v{s_}", f"v_mul_f32 v{t+1}, v{i}, v{c}",
                f"v_fma_f32 v{t}, v{r}, v{c}, -v{t}", f"v_fmac_f32 v{t+1}, v{r}, v{s_}"]
    return [f"v_mul_f32 v{t}, v{r}, v{c}", f"v_mul_f32 v{t+1}, v{r}, v{s_}",
            f"v_fmac_f32 v{t}, v{i}, v{s_}", f"v_fma_f32 v{t+1}, v{i}, v{c}, -v{t+1}"]

def zip2(x, y):
    o = []
    for p, q in zip(x, y): o += [p, q]
    return o

def twiddle(T, table, conj):
    o = [f"ds_read_b128 v[{TW+4*e}:{TW+4*e+3}], v2 offset:{table + (T*8+e)*1024} ; @use=tab" for e in range(8)]
    re, im = AC + 32 * T, AC + 32 * T + 16
    for e in range(8):
        t = TMP + 4 * (e & 1)
        c0, c1, s0, s1 = TW + 4 * e, TW + 4 * e + 1, TW + 4 * e + 2, TW + 4 * e + 3
        o += zip2(cmul(re + 2 * e, im + 2 * e, c0, s0, t, conj), cmul(re + 2 * e + 1, im + 2 * e + 1, c1, s1, t + 2, conj))
        o += [f"v_cvt_pk_bf16_f32 v{PKT[T]+e}, v{t}, v{t+2}", f"v_cvt_pk_bf16_f32 v{PKT[T]+8+e}, v{t+1}, v{t+3}"]
    return o

def wmult(T):
    re, im = AC + 32 * T, AC + 32 * T + 16
    o = []
    for e in range(8):
        w0, w1 = WR + 16 * T + 2 * e, WR + 16 * T + 2 * e + 1
        t = TMP + 8 * (e & 1)
        o += [f"v_lshlrev_b32 v{t+4}, 16, v{w0}", f"v_and_b32 v{t+5}, 0xffff0000, v{w0}",
              f"v_lshlrev_b32 v{t+6}, 16, v{w1}", f"v_and_b32 v{t+7}, 0xffff0000, v{w1}"]
        o += zip2(cmul(re + 2 * e, im + 2 * e, t + 4, t + 5, t, True), cmul(re + 2 * e + 1, im + 2 * e + 1, t + 6, t + 7, t + 2, True))
        o += [f"v_cvt_pk_bf16_f32 v{PKT[T]+e}, v{t}, v{t+2}", f"v_cvt_pk_bf16_f32 v{PKT[T]+8+e}, v{t+1}, v{t+3}"]
    return o

def stage64(seq, data, dst, sign, n0=0):
    o = []
    for n, (T, u, first) in enumerate(seq):
        if n + 1 < len(seq):
            o += cread((n0 + n + 1) & 1, k64(seq[n + 1][1], seq[n + 1][0]))
        K = KB + 12 * ((n0 + n) & 1); Cc, Ss, Nn = K, K + 4, K + 8
        re, im = dst(T); dr, di = data(u)
        if sign == "fwd": o += [mf(re, dr, Cc, first), mf(im, di, Cc, first), mf(re, di, Ss, False), mf(im, dr, Nn, False)]
        else: o += [mf(re, dr, Cc, first), mf(im, di, Cc, first), mf(re, di, Nn, False), mf(im, dr, Ss, False)]
    return o

def f2(T):
    re, im = AC + 32 * T, AC + 32 * T + 16
    o = []
    for u in range(2):
        K = K32 + 12 * u; Cc, Ss, Nn = K, K + 4, K + 8
        pr, pi = PKT[T] + 4 * u, PKT[T] + 8 + 4 * u
        o += [mf(re, Cc, pr, u == 0), mf(im, Cc, pi, u == 0), mf(re, Ss, pi, False), mf(im, Nn, pr, False)]
    return o

def i1(T):
    re, im = AC + 32 * T, AC + 32 * T + 16
    o = []
    for u in range(2):
        K = K32 + 12 * u; Cc, Ss, Nn = K, K + 4, K + 8
        gr, gi = PKT[T] + 4 * u, PKT[T] + 8 + 4 * u
        o += [mf(re, gr, Cc, u == 0), mf(im, gi, Cc, u == 0), mf(re, gi, Nn, False), mf(im, gr, Ss, False)]
    return o

def outp(T2, ST):
    o = []
    for part in range(2):
        src = ZT2[T2] + 16 * part
        t = TMP + 8 * part
        o += [f"v_cvt_pk_bf16_f32 v{t+k}, v{src+2*k}, v{src+2*k+1}" for k in range(8)]
        o += [f"buffer_store_dwordx4 v[{t}:{t+3}], v4, s[28:31], s{48+part} offen offset:{2048*T2} {ST}",
              f"buffer_store_dwordx4 v[{t+4}:{t+7}], v4, s[28:31], s{48+part} offen offset:{2048*T2+16} {ST}"]
    return o

def fft(a, P):
    ST = OPT["st"]
    a(";;AUTO_BEGIN")
    a(f"""
s_lshl_b32 s43, s22, 2
s_add_u32 s43, s43, s23
s_lshl_b32 s44, s43, 3
s_add_u32 s44, s44, s3
v_lshlrev_b32 v2, 4, v1
s_lshl_b32 s45, s44, 13
s_add_u32 s47, s45, {WS_WT}
s_add_u32 s48, s45, {WS_ZT}
s_add_u32 s49, s48, 4096
s_lshl_b32 s46, s43, 8
s_lshl_b32 s50, s3, 18
s_add_u32 s46, s46, s50
s_add_u32 s46, s46, {WS_YT}
s_lshl_b32 s52, s3, 13
s_add_u32 s51, s52, {COLBASE}
v_lshrrev_b32 v8, 4, v1
v_and_b32 v9, 15, v1
v_lshlrev_b32 v10, 13, v8
""")
    for m in range(4):
        a(f"v_add_u32 v11, {4*m}, v8")
        a(f"v_xor_b32 v11, v11, v9")
        a(f"v_lshlrev_b32 v11, 4, v11")
        a(f"v_add_u32 v{20+m}, v10, v11")
    a("s_waitcnt lgkmcnt(0)")
    srd(a, 28, 20, WS_BYTES)
    for k in range(8):
        a(f"s_add_u32 m0, s51, {1024*k}")
        a(f"buffer_load_dwordx4 v{20+(k&3)}, s[28:31], s46 offen lds ; @def=col")
        a(f"s_add_u32 s46, s46, {4*8192}")
    a(f"s_mul_i32 s52, s3, 3072")
    a(f"s_add_u32 s50, s52, {WS_TB}")
    a("s_mov_b32 m0, s52")
    for k in range(3): a(f"buffer_load_dwordx4 v2, s[28:31], s50 offen offset:{1024*k} lds ; @def=tabA")
    late = [f"s_mul_i32 s52, s3, 5120", f"s_add_u32 s52, s52, 24576", f"s_add_u32 s50, s52, {WS_TB}", "s_mov_b32 m0, s52", "s_nop 0"]
    late += [f"buffer_load_dwordx4 v2, s[28:31], s50 offen offset:{1024*k} lds ; @def=tabB" for k in range(4)]
    late += ["s_add_u32 m0, s52, 4096", "s_add_u32 s50, s50, 4096", f"buffer_load_dwordx4 v2, s[28:31], s50 offen lds ; @def=tabB"]
    for k in range(8):
        if k == 4: late.append("s_add_u32 s47, s47, 4096")
        late.append(f"buffer_load_dwordx4 v[{WR+4*k}:{WR+4*k+3}], v2, s[28:31], s47 offen offset:{1024*(k&3)}")
    a(f"""
v_lshrrev_b32 v8, 5, v1
v_lshlrev_b32 v8, 2, v8
v_bfe_u32 v9, v1, 2, 2
v_add_u32 v8, v8, v9
v_lshlrev_b32 v8, 2, v8
v_and_b32 v10, 1, v1
v_lshlrev_b32 v10, 1, v10
v_bfe_u32 v11, v1, 4, 1
v_add_u32 v10, v10, v11
v_add_u32 v8, v8, v10
v_lshlrev_b32 v8, 8, v8
v_lshlrev_b32 v9, 2, v9
v_add_u32 v9, v9, v10
s_lshl_b32 s52, s3, 1
v_xor_b32 v9, s52, v9
v_lshlrev_b32 v9, 4, v9
v_add_u32 v8, v8, v9
v_bfe_u32 v9, v1, 1, 1
v_lshlrev_b32 v9, 3, v9
v_add_u32 v8, v8, v9
v_add_u32 v3, {COLBASE}, v8
v_xor_b32 v5, 16, v3
v_and_b32 v8, 31, v1
v_lshlrev_b32 v8, 6, v8
v_lshrrev_b32 v9, 5, v1
v_lshlrev_b32 v9, 5, v9
v_add_u32 v4, v8, v9
""")
    if OPT["prio"]:
        a(";;AUTO_END")
        a("s_cmp_ge_u32 s3, 4")
        a(f"s_cbranch_scc{1 if OPT['prio'] > 0 else 0} {P}_noprio")
        a(f"s_setprio {abs(OPT['prio'])}")
        a(f"{P}_noprio:")
        a(";;AUTO_RESUME")
    stamp(a, 1)
    a("waitdef col,tabA")
    a("s_barrier")
    stamp(a, 2)
    ydat = lambda u: (YR + 4 * u, YI + 4 * u)
    adst = lambda T: (AC + 32 * T, AC + 32 * T + 16)
    pre = []
    for u in range(4):
        for part, base, v in ((0, YR, 3), (1, YI, 5)):
            for rd in range(2):
                d = base + 4 * u + 2 * rd
                pre.append(f"ds_read_b64_tr_b16 v[{d}:{d+1}], v{v} offset:{16384*u+8192*rd}")
    a.ext(pre[:4]); a.ext(cread(0, k64(0, 0))); a.ext(pre[4:])
    seq = [(T, u, u == 0) for T in range(2) for u in range(4)]
    f1 = stage64(seq, ydat, adst, "fwd")
    half = len(stage64(seq[:4], ydat, adst, "fwd")) + 3
    a.ext(late[:11])
    a.ext(interleave(f1[:half], late[11:]))
    a("waitdef tabB")
    a("s_barrier")
    stamp(a, 3)
    cyc(a, 0)
    a.ext(cread(0, k32(0), K32)); a.ext(cread(1, k32(1), K32))
    pf = []
    if OPT["pf_w2"]:
        srd(a, 24, 16, 1792 * 4096)
        a(f"""
s_lshl_b32 s53, s23, 3
s_add_u32 s53, s53, s3
s_mul_i32 s53, s53, {56*4096}
s_lshl_b32 s54, s22, 9
s_add_u32 s53, s53, s54
s_mov_b32 m0, s51
v_lshrrev_b32 v6, 5, v1
v_lshlrev_b32 v6, 12, v6
v_and_b32 v7, 31, v1
v_lshlrev_b32 v7, 4, v7
v_add_u32 v6, v6, v7
""")
        for k in range(28):
            pf.append([f"buffer_load_dwordx4 v6, s[24:27], s53 offen lds", "s_add_u32 s53, s53, 8192"])
    def with_pf(lst, n):
        ex = []
        for _ in range(min(n, len(pf))): ex += pf.pop(0)
        return interleave(lst, ex)
    a.ext(with_pf(interleave(f1[half:], twiddle(0, TB_TW1, False), start=3), 6))
    a.ext(with_pf(interleave(f2(0), twiddle(1, TB_TW1, False)), 4))
    a.ext(with_pf(interleave(f2(1), wmult(0)), 4))
    a.ext(with_pf(interleave(i1(0), wmult(1)), 4))
    a.ext(with_pf(interleave(i1(1), twiddle(0, TB_TW2, True)), 4))
    rdat = lambda u: (PKT[u >> 1] + 4 * (u & 1), PKT[u >> 1] + 8 + 4 * (u & 1))
    zdst = lambda T2: (ZT2[T2], ZT2[T2] + 16)
    seq = [(0, 0, True), (0, 1, False), (1, 0, True), (1, 1, False), (0, 2, False), (0, 3, False), (1, 2, False), (1, 3, False)]
    a.ext(cread(0, k64(0, 0)))
    i2 = stage64(seq, rdat, zdst, "inv")
    n1 = len(stage64(seq[:4], rdat, zdst, "inv")) + 3
    n2 = len(stage64(seq[:6], rdat, zdst, "inv")) + 3
    a.ext(with_pf(interleave(i2[:n1], twiddle(1, TB_TW2, True)), 6))
    a.ext(i2[n1:n2])
    a.ext(interleave(i2[n2:], outp(0, ST)))
    a.ext(outp(1, ST))
    if OPT["filt"]:
        k0 = max(k for k, l in enumerate(a.lines) if "s_barrier" in l)
        keep = []
        for l in a.lines[k0:]:
            t = l.strip()
            if "v" in OPT["filt"] and t.startswith("v_") and not t.startswith("v_mfma"): continue
            if "m" in OPT["filt"] and t.startswith("v_mfma"): continue
            if "d" in OPT["filt"] and t.startswith("ds_read"): continue
            keep.append(l)
        a.lines[k0:] = keep
    a(";;AUTO_END")
    cyc(a, 1)
    stamp(a, 4)
    stamp_flush(a, 1, 5)
    a("s_endpgm")

def gen_k2(name="k2_kernel"):
    a = Asm(); P = name
    stamp(a, 0)
    a(f"""
s_load_dwordx16 s[4:19], s[0:1], 0
s_load_dwordx2 s[20:21], s[0:1], 80
s_cmp_ge_u32 s2, 256
s_cbranch_scc1 {P}_done
v_lshrrev_b32 v2, 6, v0
v_and_b32 v1, 63, v0
v_readfirstlane_b32 s3, v2
s_and_b32 s22, s2, 7
s_lshr_b32 s23, s2, 3
s_cmp_lt_u32 s23, 4
s_cbranch_scc1 {P}_fft
""")
    gemm1(a, P)
    a(f"{P}_fft:")
    fft(a, P)
    a(f"{P}_done:")
    a("s_endpgm")
    text = a.finalize()
    errs = check_waits(a.ins, trips={f"{P}_gloop": 2})
    errs += check_waits(a.ins, take=[f"{P}_fft"], verbose=not OPT["filt"])
    assert not errs or OPT["filt"]
    return header(name) + text, descriptor(name, 256, 102)

if __name__ == "__main__":
    t, d = gen_k2(); print(len(t.splitlines()))
```

```python
from common import *
from gemm import lane_dma_offsets, tr_addr
from asmlib import interleave
import re
import k2 as K2

LDS_BYTES = 163840
RING1_SLOTS = 15
RING1 = RING1_SLOTS * 2048
P1 = 4 * RING1
XN_OFF, HS_OFF, HS_PITCH = P1, P1 + 8192, 1088
WP_OFF, WP_PITCH = HS_OFF + 8 * HS_PITCH, 144
YS_OFF = WP_OFF + 64 * WP_PITCH
assert YS_OFF + 8192 <= LDS_BYTES
RED = 0
RING2_SLOTS = 14
RING2_BASE = 49152
WS_CNT = 0xC00000
CNT_A, CNT_G, CNT_Z = WS_CNT, WS_CNT + 32 * 128, WS_CNT + 64 * 128
ACC = 64
SPIN_LIMIT = 1 << 17
OPT = dict(stop="", pfflag="", xflag="", wflag="", pf1a=8, w2flag="", stvar="", rot1=False, rot3=False, early2=True, ld="sc1", inv=False, hd=8, gd=8, zat=20, zlate=True, ffilt="", sprinkle=0.0, nef=4, w2pf="tail", mlat=24, pfat=28, fst=False, spr0=0.0, cpf=1, fdma=0, pf2at="end", npre=2, p1order=1)

def stamp(a, k):
    import common
    if common.STAMP:
        a("s_memrealtime s[76:77]")
        a("s_waitcnt lgkmcnt(0)")
        a(f"s_mov_b32 s{80+k}, s76")

def poll(a, name, nlanes, soff, target, vt=250):
    a(f"""
s_cmp_lg_u32 s3, 0
s_cbranch_scc1 {name}_skip
v_lshlrev_b32 v{vt}, 7, v1
v_mov_b32 v{vt+1}, {target}
s_mov_b32 s72, {soff}
s_mov_b32 s73, 0
s_mov_b32 exec_lo, {hex((1 << nlanes) - 1)}
s_mov_b32 exec_hi, 0
{name}_loop:
buffer_load_dword v{vt+2}, v{vt}, s[28:31], s72 offen sc1
s_add_u32 s73, s73, 1
s_waitcnt vmcnt(0)
v_cmp_ge_u32 vcc, v{vt+2}, v{vt+1}
s_cmp_eq_u64 vcc, exec
s_cbranch_scc1 {name}_done
s_cmp_lt_u32 s73, {SPIN_LIMIT}
s_cbranch_scc1 {name}_loop
{name}_done:
s_mov_b64 exec, -1
{name}_skip:
s_barrier
""")
    if OPT["inv"]: a("buffer_inv sc1")

def signal(a, name, soff_sreg, vt=250):
    a(f"""
s_cmp_lg_u32 s3, 0
s_cbranch_scc1 {name}_skip
v_mov_b32 v{vt}, 0
v_mov_b32 v{vt+1}, 1
s_mov_b64 exec, 1
buffer_atomic_add v{vt+1}, v{vt}, s[28:31], {soff_sreg} offen sc1
s_mov_b64 exec, -1
{name}_skip:
""")

def phase1(a, P):
    C, NS, A2, TC, TS, VO, MK = 16, 20, 24, 28, 32, 36, 38
    WL = 172
    MC = 216
    a(";;AUTO_BEGIN")
    a(f"""
s_lshl_b32 s44, s64, 5
s_add_u32 s44, s44, s65
s_lshl_b32 s45, s44, 3
s_lshl_b32 s46, s3, 1
s_add_u32 s46, s46, s45
s_lshl_b32 s46, s46, 10
v_lshlrev_b32 v3, 4, v1
s_and_b32 s47, s65, 3
s_lshr_b32 s48, s65, 2
s_lshl_b32 s48, s48, 3
s_add_u32 s48, s48, s64
s_and_b32 s49, s48, 1
s_bfe_u32 s50, s48, 0x10001
s_bfe_u32 s51, s48, 0x20002
s_lshr_b32 s52, s48, 4
s_lshl_b32 s52, s52, 3
s_lshl_b32 s53, s49, 5
s_add_u32 s53, s53, s52
s_lshl_b32 s54, s3, 1
s_add_u32 s53, s53, s54
s_lshl_b32 s54, s50, 10
s_add_u32 s53, s53, s54
s_lshl_b32 s54, s51, 8
s_add_u32 s53, s53, s54
s_mul_i32 s53, s53, 514
s_lshl_b32 s54, s47, 6
v_add_u32 v4, s54, v1
v_mov_b32 v5, 0x100
v_cmp_eq_u32 vcc, 0, v4
v_cndmask_b32 v188, v4, v5, vcc
v_lshlrev_b32 v188, 1, v188
s_waitcnt lgkmcnt(0)
""")
    srd(a, 24, 4, 2048 * 1024)
    a(f"buffer_load_dwordx4 v[8:11], v3, s[24:27], s46 offen {OPT['xflag']}")
    a(f"buffer_load_dwordx4 v[12:15], v3, s[24:27], s46 offen offset:1024 {OPT['xflag']}")
    srd(a, 32, 6, 2048 * 514)
    srd(a, 36, 8, 2048 * 514)
    for ii in range(4):
        if ii: a(f"s_add_u32 s53, s53, {64*514}")
        for nn in range(2):
            a(f"buffer_load_ushort v{WL+8*nn+2*ii}, v188, s[32:35], s53 offen offset:{514*nn} {OPT['wflag']}")
            a(f"buffer_load_ushort v{WL+1+8*nn+2*ii}, v188, s[36:39], s53 offen offset:{514*nn} {OPT['wflag']}")
    srd(a, 28, 20, WS_BYTES)
    if OPT["cpf"]:
        a(f"""
s_getpc_b64 s[40:41]
""")
        a(";;AUTO_END")
        a(f"{P}_pc:")
        a(";;AUTO_RESUME")
        a(f"""
s_sub_u32 s40, s40, {P}_pc-{P}_start
s_subb_u32 s41, s41, 0
s_lshl_b32 s72, s65, 11
s_lshl_b32 s73, s3, 9
s_add_u32 s72, s72, s73
v_and_b32 v190, 7, v1
v_lshlrev_b32 v190, 6, v190
v_add_u32 v190, s72, v190
v_min_u32 v190, {P}_codeend-{P}_start-4, v190
s_mov_b64 exec, 0xff
global_load_dword v191, v190, s[40:41]
s_mov_b64 exec, -1
""")
    a(";;AUTO_END")
    a(f"""
s_cmp_lg_u32 s2, 0
s_cbranch_scc1 {P}_noinit
s_cmp_lg_u32 s3, 3
s_cbranch_scc1 {P}_noinit
v_lshlrev_b32 v190, 7, v1
v_mov_b32 v191, 0
s_mov_b32 s72, {WS_CNT}
buffer_store_dword v191, v190, s[28:31], s72 offen sc1
s_add_u32 s72, s72, 8192
buffer_store_dword v191, v190, s[28:31], s72 offen sc1
s_waitcnt vmcnt(0)
s_mov_b32 s40, s62
s_and_b32 s41, s63, 0xffff
s_mov_b32 s42, 256
s_mov_b32 s43, 0x20000
v_mov_b32 v190, 0
v_mov_b32 v191, 1
s_mov_b64 exec, 1
buffer_store_dword v191, v190, s[40:43], 0 offen sc1
s_mov_b64 exec, -1
{P}_noinit:
""")
    a(";;AUTO_RESUME")
    srd(a, 40, 12, 2048 * 3584)
    a(f"""
s_lshr_b32 s58, s64, 1
s_mul_i32 s58, s58, 896
s_lshl_b32 s59, s65, 2
s_add_u32 s59, s59, s3
s_lshl_b32 s59, s59, 4
s_and_b32 s57, s64, 1
s_lshl_b32 s57, s57, 3
s_add_u32 s101, s59, 8
s_sub_u32 s101, s101, s57
s_add_u32 s59, s59, s57
s_mul_i32 s59, s59, 3584
s_mul_i32 s101, s101, 3584
s_add_u32 s101, s101, s58
s_add_u32 s58, s58, s59
v_cmp_gt_u32 vcc, 56, v1
v_mov_b32 v190, 0x7fffff00
v_cndmask_b32 v189, v190, v3, vcc
""")
    def pf1(n, sreg=58):
        for k in range(n):
            a(f"buffer_load_dwordx4 v[192:195], v189, s[40:43], s{sreg} offen {OPT['pfflag']}")
            a(f"s_add_u32 s{sreg}, s{sreg}, 3584")
    pf1(8)
    def constA():
        a(f"""
s_and_b32 s55, s3, 1
s_lshr_b32 s56, s3, 1
v_and_b32 v4, 15, v1
v_lshrrev_b32 v5, 4, v1
s_lshl_b32 s57, s55, 4
v_add_u32 v6, s57, v4
v_cvt_f32_u32 v40, v6
v_mul_f32 v40, {f32(1/32)}, v40
v_lshlrev_b32 v41, 2, v5
v_cvt_f32_u32 v41, v41
v_mul_f32 v42, v41, v40
v_mul_f32 v43, {f32(16.0)}, v40
v_add_f32 v43, v43, v42
""")
        for j in range(8):
            src = 42 if j < 4 else 43
            if j % 4 == 0: a(f"v_mov_b32 v{44+j}, v{src}")
            else: a(f"v_add_f32 v{44+j}, v{44+j-1}, v40")
        for j in range(8): a(f"v_cos_f32 v{52+j}, v{44+j}")
        for j in range(8): a(f"v_sin_f32 v{44+j}, v{44+j}")
        for j in range(4): a(f"v_cvt_pk_bf16_f32 v{C+j}, v{52+2*j}, v{53+2*j}")
        for j in range(4): a(f"v_cvt_pk_bf16_f32 v{NS+j}, -v{44+2*j}, -v{45+2*j}")
    def constB():
        a(f"""
v_lshrrev_b32 v44, 1, v4
v_cvt_f32_u32 v44, v44
v_mul_f32 v44, {f32(1/16)}, v44
v_mul_f32 v45, v41, v44
v_add_f32 v46, v45, v44
v_add_f32 v47, v46, v44
v_add_f32 v48, v47, v44
v_and_b32 v49, 1, v4
v_cmp_eq_u32 vcc, 1, v49
""")
        for j in range(4): a(f"v_cos_f32 v{52+j}, v{45+j}")
        for j in range(4): a(f"v_sin_f32 v{56+j}, v{45+j}")
        for j in range(4):
            a(f"v_sub_f32 v{60}, 0, v{56+j}")
            a(f"v_cndmask_b32 v{44+j}, v{52+j}, v60, vcc")
            a(f"v_cndmask_b32 v{48+j}, v{56+j}, v{52+j}, vcc")
        for j in range(4): a(f"v_cvt_pk_bf16_f32 v{A2+j}, v{44+2*j}, v{45+2*j}")
        a(f"""
v_cmp_eq_u32 vcc, 0, v6
v_mov_b32 v44, 0x100
v_cndmask_b32 v44, v6, v44, vcc
v_cvt_f32_u32 v44, v44
v_mul_f32 v44, {f32(1/512)}, v44
v_mul_f32 v45, v41, v44
v_add_f32 v46, v45, v44
v_add_f32 v47, v46, v44
v_add_f32 v48, v47, v44
""")
        for i in range(4): a(f"v_cos_f32 v{TC+i}, v{45+i}")
        for i in range(4): a(f"v_sin_f32 v{TS+i}, v{45+i}")
        a("s_mov_b64 s[60:61], vcc")
        for ip in range(2):
            a(f"""
v_lshlrev_b32 v44, 1, v5
v_add_u32 v44, {ip}, v44
v_lshlrev_b32 v45, 5, v44
v_add_u32 v46, v6, v45
v_sub_u32 v47, 0x100, v45
v_cmp_lt_u32 vcc, 0, v44
s_and_b64 vcc, vcc, s[60:61]
v_cndmask_b32 v46, v46, v47, vcc
v_lshlrev_b32 v{VO+ip}, 5, v46
v_mov_b32 v47, 0x80008000
v_cndmask_b32 v{MK+ip}, 0, v47, vcc
""")
    def addrs():
        a(f"""
s_lshl_b32 s57, s56, 3
s_add_u32 s57, s57, {YS_OFF}
v_add_u32 v{VO}, s57, v{VO}
v_add_u32 v{VO+1}, s57, v{VO+1}
s_lshr_b32 s60, s44, 1
s_lshl_b32 s60, s60, 11
s_and_b32 s61, s44, 1
s_lshl_b32 s61, s61, 9
s_add_u32 s60, s60, s61
s_lshl_b32 s61, s3, 19
s_add_u32 s60, s60, s61
s_add_u32 s60, s60, {WS_H}
s_add_u32 s61, s60, 262144
v_bfe_u32 v44, v1, 2, 2
v_mul_u32_u24 v40, {HS_PITCH}, v44
v_lshrrev_b32 v44, 5, v1
v_lshlrev_b32 v44, 6, v44
v_add_u32 v40, v40, v44
v_and_b32 v44, 1, v1
v_lshlrev_b32 v44, 5, v44
v_add_u32 v40, v40, v44
v_bfe_u32 v44, v1, 4, 1
v_lshlrev_b32 v44, 4, v44
v_add_u32 v40, v40, v44
v_bfe_u32 v44, v1, 1, 1
v_lshlrev_b32 v44, 3, v44
v_add_u32 v40, v40, v44
s_lshl_b32 s57, s3, 8
s_add_u32 s57, s57, {HS_OFF}
v_add_u32 v40, s57, v40
v_lshrrev_b32 v44, 5, v1
v_lshlrev_b32 v44, 10, v44
v_and_b32 v45, 31, v1
v_lshlrev_b32 v45, 4, v45
v_add_u32 v41, v44, v45
s_lshl_b32 s57, s56, 12
s_add_u32 s57, s57, {XN_OFF}
v_lshlrev_b32 v42, 3, v1
v_add_u32 v42, s57, v42
""")
        a(f"""
v_lshrrev_b32 v223, 3, v1
s_lshl_b32 s57, s3, 4
v_add_u32 v223, s57, v223
v_and_b32 v224, 7, v1
v_lshlrev_b32 v224, 4, v224
v_mul_u32_u24 v221, {WP_PITCH}, v223
v_add_u32 v221, v221, v224
v_add_u32 v221, {WP_OFF}, v221
v_lshlrev_b32 v222, 13, v223
v_add_u32 v222, v222, v224
s_lshl_b32 s54, s49, 12
s_lshl_b32 s57, s51, 10
s_add_u32 s54, s54, s57
s_lshl_b32 s57, s50, 5
s_add_u32 s57, s57, s52
s_lshl_b32 s57, s57, 4
s_add_u32 s54, s54, s57
s_add_u32 s54, s54, {WS_WT}
s_lshl_b32 s57, s47, 19
s_add_u32 s54, s54, s57
""")
    a(f"""
s_lshl_b32 s57, s3, 11
s_add_u32 s57, s57, {XN_OFF}
v_add_u32 v2, s57, v3
s_mul_i32 s57, s3, {2*HS_PITCH}
s_add_u32 s57, s57, {HS_OFF}
v_add_u32 v7, s57, v3
v_mov_b32 v63, {f32(1/512)}
v_mul_u32_u24 v220, {WP_PITCH}, v1
s_lshl_b32 s57, s3, 5
s_add_u32 s57, s57, {WP_OFF}
v_add_u32 v220, s57, v220
""")
    if OPT["p1order"] == 0:
        constA(); constB(); addrs()
    elif OPT["p1order"] == 1:
        constA()
    X = [64, 72]
    stamp(a, 1)
    for r in range(2):
        for k in range(4):
            a(f"v_lshlrev_b32 v{X[r]+2*k}, 16, v{8+4*r+k}")
            a(f"v_and_b32 v{X[r]+2*k+1}, 0xffff0000, v{8+4*r+k}")
    SUM = [80, 84]; SQ = [82, 86]
    for r in range(2):
        a(f"v_pk_add_f32 v[{SUM[r]}:{SUM[r]+1}], v[{X[r]}:{X[r]+1}], v[{X[r]+2}:{X[r]+3}]")
        a(f"v_pk_mul_f32 v[{SQ[r]}:{SQ[r]+1}], v[{X[r]}:{X[r]+1}], v[{X[r]}:{X[r]+1}]")
    for k in (1, 2, 3):
        for r in range(2):
            if k > 1: a(f"v_pk_add_f32 v[{SUM[r]}:{SUM[r]+1}], v[{SUM[r]}:{SUM[r]+1}], v[{X[r]+2*k}:{X[r]+2*k+1}]")
            a(f"v_pk_fma_f32 v[{SQ[r]}:{SQ[r]+1}], v[{X[r]+2*k}:{X[r]+2*k+1}], v[{X[r]+2*k}:{X[r]+2*k+1}], v[{SQ[r]}:{SQ[r]+1}]")
    red = []
    for r in range(2):
        a(f"v_add_f32 v{SUM[r]}, v{SUM[r]}, v{SUM[r]+1}")
        a(f"v_add_f32 v{SQ[r]}, v{SQ[r]}, v{SQ[r]+1}")
        red += [SUM[r], SQ[r]]
    for step in ("row_shr:1", "row_shr:2", "row_shr:4", "row_shr:8"):
        for v in red: a(f"v_add_f32_dpp v{v}, v{v}, v{v} {step} row_mask:0xf bank_mask:0xf")
    for v in red: a(f"v_add_f32_dpp v{v}, v{v}, v{v} row_bcast:15 row_mask:0xa bank_mask:0xf")
    for v in red: a(f"v_add_f32_dpp v{v}, v{v}, v{v} row_bcast:31 row_mask:0xc bank_mask:0xf")
    for k, v in enumerate(red): a(f"v_readlane_b32 s{71+k}, v{v}, 63")
    B = lambda r: 88 + 8 * r
    for r in range(2):
        a(f"v_mul_f32 v{B(r)}, s{71+2*r}, v63")
        a(f"v_mul_f32 v{B(r)+1}, s{72+2*r}, v63")
    for r in range(2): a(f"v_fma_f32 v{B(r)+1}, -v{B(r)}, v{B(r)}, v{B(r)+1}")
    for r in range(2): a(f"v_max_f32 v{B(r)+1}, 0, v{B(r)+1}")
    for r in range(2): a(f"v_add_f32 v{B(r)+2}, {f32(1e-5)}, v{B(r)+1}")
    for r in range(2): a(f"v_rsq_f32 v{B(r)+4}, v{B(r)+2}")
    for r in range(2): a(f"v_mul_f32 v{B(r)+2}, v{B(r)+4}, v{B(r)+4}")
    for r in range(2):
        a(f"v_mul_f32 v{B(r)+6}, -v{B(r)}, v{B(r)+4}")
        a(f"v_mul_f32 v{B(r)+2}, v{B(r)+2}, v{B(r)+1}")
    for r in range(2): a(f"v_add_f32 v{B(r)+2}, {f32(1e-5)}, v{B(r)+2}")
    for r in range(2): a(f"v_rsq_f32 v{B(r)+3}, v{B(r)+2}")
    for r in range(2):
        a(f"v_mov_b32 v{B(r)+5}, v{B(r)+4}")
        a(f"v_mov_b32 v{B(r)+7}, v{B(r)+6}")
    for r in range(2):
        b = B(r); XN = 104 + 16 * r
        for k in range(4):
            a(f"v_pk_fma_f32 v[{XN+2*k}:{XN+2*k+1}], v[{X[r]+2*k}:{X[r]+2*k+1}], v[{b+4}:{b+5}], v[{b+6}:{b+7}]")
        for k in range(4): a(f"v_cvt_pk_bf16_f32 v{8+4*r+k}, v{XN+2*k}, v{XN+2*k+1}")
        a(f"ds_write_b128 v2, v[{8+4*r}:{11+4*r}] offset:{1024*r}")
    for r in range(2):
        b = B(r)
        a(f"v_mul_f32 v{152+4*r}, v{b+4}, v{b+3}")
        a(f"v_mul_f32 v{153+4*r}, v{b+4}, v{b+3}")
        a(f"v_mul_f32 v{154+4*r}, v{b+6}, v{b+3}")
        a(f"v_mul_f32 v{155+4*r}, v{b+6}, v{b+3}")
    for r in range(2):
        HH = 112 + 16 * r
        for k in range(4):
            a(f"v_pk_fma_f32 v[{HH+2*k}:{HH+2*k+1}], v[{X[r]+2*k}:{X[r]+2*k+1}], v[{152+4*r}:{153+4*r}], v[{154+4*r}:{155+4*r}]")
        for k in range(4): a(f"v_cvt_pk_bf16_f32 v{136+4*r+k}, v{HH+2*k}, v{HH+2*k+1}")
        a(f"ds_write_b128 v7, v[{136+4*r}:{139+4*r}] offset:{HS_PITCH*r}")
    for nn in range(2):
        for ii in range(4):
            a(f"v_lshl_or_b32 v{196+4*nn+ii}, v{WL+1+8*nn+2*ii}, 16, v{WL+8*nn+2*ii}")
        a(f"ds_write_b128 v220, v[{196+4*nn}:{199+4*nn}] offset:{16*nn}")
    if OPT["p1order"] == 1:
        constB(); addrs()
    elif OPT["p1order"] == 2:
        constA(); constB(); addrs()
    a("s_waitcnt lgkmcnt(0)")
    a("s_barrier")
    stamp(a, 2)
    if OPT["pf2at"] == "bar1": pf1(8, 101)
    for rho in range(4):
        for rd in range(2):
            a(f"ds_read_b64_tr_b16 v[{64+4*rho+2*rd}:{65+4*rho+2*rd}], v42 offset:{1024*rho+512*rd}")
    for ii in range(2):
        for rd in range(2):
            a(f"ds_read_b64_tr_b16 v[{144+4*ii+2*rd}:{145+4*ii+2*rd}], v40 offset:{128*ii+4*HS_PITCH*rd}")
    a(f"ds_read_b128 v[196:199], v221")
    a(f"ds_read_b128 v[200:203], v221 offset:{8*WP_PITCH}")
    TR, TI = 80, 96
    for rho in range(4):
        a(f"v_mfma_f32_16x16x32_bf16 v[{TR+4*rho}:{TR+4*rho+3}], v[{64+4*rho}:{67+4*rho}], v[{C}:{C+3}], 0")
        a(f"v_mfma_f32_16x16x32_bf16 v[{TI+4*rho}:{TI+4*rho+3}], v[{64+4*rho}:{67+4*rho}], v[{NS}:{NS+3}], 0")
    a(f"buffer_store_dwordx4 v[144:147], v41, s[28:31], s60 offen sc1")
    a(f"buffer_store_dwordx4 v[148:151], v41, s[28:31], s61 offen sc1")
    a("s_add_u32 s57, s54, 65536")
    a(f"buffer_store_dwordx4 v[196:199], v222, s[28:31], s54 offen sc1")
    a(f"buffer_store_dwordx4 v[200:203], v222, s[28:31], s57 offen {OPT['ld']}")
    BB = 64; XO = 124
    for rho in range(4):
        tr, ti = TR + 4 * rho, TI + 4 * rho
        PR, PI, TT = (112, 116, 120) if not rho & 1 else (152, 156, 160)
        for p in range(2):
            o = 2 * p
            a(f"v_pk_mul_f32 v[{TT}:{TT+1}], v[{ti+o}:{ti+o+1}], v[{TS+o}:{TS+o+1}]")
            a(f"v_pk_mul_f32 v[{TT+2}:{TT+3}], v[{tr+o}:{tr+o+1}], v[{TS+o}:{TS+o+1}]")
            a(f"v_pk_fma_f32 v[{PR+o}:{PR+o+1}], v[{tr+o}:{tr+o+1}], v[{TC+o}:{TC+o+1}], v[{TT}:{TT+1}]")
            a(f"v_pk_fma_f32 v[{PI+o}:{PI+o+1}], v[{ti+o}:{ti+o+1}], v[{TC+o}:{TC+o+1}], v[{TT+2}:{TT+3}] neg_lo:[0,0,1] neg_hi:[0,0,1]")
        b = BB + 4 * rho
        a(f"v_cvt_pk_bf16_f32 v{b}, v{PR}, v{PR+1}")
        a(f"v_cvt_pk_bf16_f32 v{b+1}, v{PR+2}, v{PR+3}")
        a(f"v_cvt_pk_bf16_f32 v{b+2}, v{PI}, v{PI+1}")
        a(f"v_cvt_pk_bf16_f32 v{b+3}, v{PI+2}, v{PI+3}")
        a(f"v_mfma_f32_16x16x32_bf16 v[{XO+4*rho}:{XO+4*rho+3}], v[{A2}:{A2+3}], v[{b}:{b+3}], 0")
    for i in range(4):
        o = 144 + 2 * i
        a(f"v_cvt_pk_bf16_f32 v{o}, v{XO+i}, v{XO+4+i}")
        a(f"v_cvt_pk_bf16_f32 v{o+1}, v{XO+8+i}, v{XO+12+i}")
        if i & 1:
            a(f"v_xor_b32 v{o}, v{MK+(i>>1)}, v{o}")
            a(f"v_xor_b32 v{o+1}, v{MK+(i>>1)}, v{o+1}")
        a(f"ds_write_b64 v{VO+(i>>1)}, v[{o}:{o+1}] offset:{16*(i&1)}")
    a(f"""
s_lshl_b32 s57, s3, 11
s_add_u32 s57, s57, {YS_OFF}
v_add_u32 v2, s57, v3
s_lshl_b32 s57, s44, 13
s_lshl_b32 s96, s3, 11
s_add_u32 s57, s57, s96
s_add_u32 s57, s57, {WS_YT}
s_waitcnt lgkmcnt(0)
s_barrier
ds_read_b128 v[64:67], v2
ds_read_b128 v[68:71], v2 offset:1024
buffer_store_dwordx4 v[64:67], v3, s[28:31], s57 offen sc1
buffer_store_dwordx4 v[68:71], v3, s[28:31], s57 offen offset:1024 sc1
""")
    a(";;AUTO_END")
    stamp(a, 3)

def phase1_tail(a):
    if OPT["pf2at"] != "end": return 0
    for k in range(8):
        a(f"buffer_load_dwordx4 v[192:195], v189, s[32:35], s101 offen {OPT['pfflag']}")
        a(f"s_add_u32 s101, s101, 3584")
    return 8

def ready_load(a):
    a("""
s_mov_b32 s40, s62
s_and_b32 s41, s63, 0xffff
s_mov_b32 s42, 256
s_mov_b32 s43, 0x20000
v_mov_b32 v250, 0
buffer_load_dword v251, v250, s[40:43], 0 offen sc1
""")

def signal_a(a, P):
    a("s_barrier")
    a(f"""
s_cmp_lg_u32 s3, 0
s_cbranch_scc1 {P}_siga_skip
s_mov_b32 s73, 0
s_mov_b64 exec, 1
{P}_rdy:
v_cmp_ne_u32 vcc, 0, v251
s_cmp_eq_u64 vcc, exec
s_cbranch_scc1 {P}_rdy_done
buffer_load_dword v251, v250, s[40:43], 0 offen sc1
s_add_u32 s73, s73, 1
s_waitcnt vmcnt(0)
s_cmp_lt_u32 s73, {SPIN_LIMIT}
s_cbranch_scc1 {P}_rdy
{P}_rdy_done:
s_and_b32 s72, s2, 31
s_lshl_b32 s72, s72, 7
s_add_u32 s72, s72, {CNT_A}
v_mov_b32 v251, 1
buffer_atomic_add v251, v250, s[28:31], s72 offen sc1
s_mov_b64 exec, -1
{P}_siga_skip:
""")

def advance(a, soff, step, send, n):
    a(f"s_add_u32 s{soff}, s{soff}, {step}")
    if send is not None:
        a(f"s_cmp_eq_u32 s{soff}, s{send}")
        a(f"s_cselect_b32 s101, {n*step}, 0")
        a(f"s_sub_u32 s{soff}, s{soff}, s101")

class Stager:
    def __init__(self, a, nsteps, slots, vsrc, vtr, sbase, soff, pitch, rd_stride, srdn, flags, tag, send=None):
        self.a, self.n, self.slots = a, nsteps, slots
        self.send = send
        self.vsrc, self.vtr, self.sbase, self.soff, self.pitch = vsrc, vtr, sbase, soff, pitch
        self.rd_stride, self.srdn, self.flags, self.tag = rd_stride, srdn, flags, tag
        self.issued = 0
    def issue_lines(self):
        t = self.issued
        sl = t % self.slots
        self.issued += 1
        return [f"s_add_u32 m0, s{self.sbase}, {sl*2048}", "s_nop 0",
                f"buffer_load_dwordx4 v{self.vsrc}, s[{self.srdn}:{self.srdn+3}], s{self.soff} offen {self.flags} lds ; @def={self.tag}{t}",
                f"buffer_load_dwordx4 v{self.vsrc+1}, s[{self.srdn}:{self.srdn+3}], s{self.soff} offen offset:1024 {self.flags} lds ; @def={self.tag}{t}",
                f"s_add_u32 s{self.soff}, s{self.soff}, {16*self.pitch}"]
    def issue(self):
        self.a.ext(self.issue_lines())
    def read(self, t, dst=None):
        a = self.a; sl = t % self.slots
        for b in range(2):
            for rd in range(2):
                d = (8 * t if dst is None else dst) + 4 * b + 2 * rd
                if OPT["stvar"] == "vgpr":
                    a(f"ds_read_b64_tr_b16 v[{128+(d&63)}:{128+(d&63)+1}], v{self.vtr+b} offset:{sl*2048+rd*self.rd_stride}")
                elif OPT["stvar"] == "noread":
                    if b == 0 and rd == 0: a(f"ds_read_b64_tr_b16 a[{d}:{d+1}], v{self.vtr+b} offset:{sl*2048+rd*self.rd_stride}")
                else:
                    a(f"ds_read_b64_tr_b16 a[{d}:{d+1}], v{self.vtr+b} offset:{sl*2048+rd*self.rd_stride}")
    def drain(self, known=0):
        a = self.a
        for t in range(self.n):
            self.read(t)
            nxt = t - 1 + self.slots
            if t >= 1 and self.issued == nxt and nxt < self.n:
                a(f"waitdef {self.tag}r{t-1}")
                self.issue()
        while self.issued < self.n:
            raise AssertionError("ring too small")

def gemm1_setup(a):
    a(f"""
s_sub_u32 s44, s65, 4
s_and_b32 s66, s64, 1
s_lshl_b32 s66, s66, 2
s_and_b32 s45, s44, 3
s_add_u32 s66, s66, s45
s_lshr_b32 s67, s64, 1
s_mul_i32 s67, s67, 7
s_lshr_b32 s45, s44, 2
s_add_u32 s67, s67, s45
""")
    lane_dma_offsets(a, 224, 225, 3584)
    tr_addr(a, 226, 8)
    a(f"""
s_lshr_b32 s45, s3, 1
s_lshl_b32 s45, s45, 6
v_xor_b32 v226, s45, v226
s_mul_i32 s50, s3, {RING1}
v_add_u32 v226, s50, v226
v_xor_b32 v227, 64, v226
s_mul_i32 s51, s3, {512*3584}
s_lshl_b32 s52, s67, 7
s_add_u32 s51, s51, s52
""")
    srd(a, 24, 12, 2048 * 3584)

def reduce_addrs(a):
    a(f"""
v_lshlrev_b32 v8, 4, v1
s_xor_b32 s53, s3, 1
s_mul_i32 s53, s53, 12288
v_add_u32 v9, s53, v8
s_xor_b32 s53, s3, 2
s_mul_i32 s53, s53, 12288
s_add_u32 s53, s53, 4096
v_add_u32 v10, s53, v8
s_xor_b32 s53, s3, 3
s_mul_i32 s53, s53, 12288
s_add_u32 s53, s53, 8192
v_add_u32 v11, s53, v8
s_mul_i32 s53, s3, 12288
v_add_u32 v12, s53, v8
""")

def reduce_exchange(a, between):
    a("s_barrier")
    for b in (1, 2, 3):
        for g in range(4):
            r = ACC + 16 * b + 4 * g
            a(f"ds_write_b128 v{8+b}, v[{r}:{r+3}] offset:{1024*g}")
    a.ext(between)
    a("s_waitcnt lgkmcnt(0)")
    a("s_barrier")
    for b in range(3):
        for g in range(4):
            r = 128 + 16 * b + 4 * g
            a(f"ds_read_b128 v[{r}:{r+3}], v12 offset:{4096*b+1024*g}")
    for b in range(3):
        a(f"s_waitcnt lgkmcnt({8-4*b})")
        for k in range(8):
            r = 128 + 16 * b + 2 * k
            a(f"v_pk_add_f32 v[{ACC+2*k}:{ACC+2*k+1}], v[{ACC+2*k}:{ACC+2*k+1}], v[{r}:{r+1}]")

def w2_prefetch_setup(a):
    srd(a, 36, 16, 1792 * 4096)
    a(f"""
s_sub_u32 s57, s65, 4
s_lshl_b32 s57, s57, 2
s_add_u32 s57, s57, s3
s_lshl_b32 s57, s57, 16
s_lshl_b32 s53, s64, 9
s_add_u32 s57, s57, s53
v_lshrrev_b32 v2, 5, v1
v_lshlrev_b32 v2, 12, v2
v_and_b32 v3, 31, v1
v_lshlrev_b32 v3, 4, v3
v_add_u32 v2, v2, v3
""")
def w2_prefetch_one():
    return [f"buffer_load_dwordx4 v[24:27], v2, s[36:39], s57 offen {OPT['w2flag']}", "s_add_u32 s57, s57, 8192"]

def gemm1(a, P, st2):
    C1, C2 = K2.C1, K2.C2
    HD = OPT["hd"]
    assert HD <= 8
    a(";;AUTO_BEGIN")
    a(f"""
v_lshlrev_b32 v8, 4, v1
s_and_b32 s48, s3, 1
s_lshr_b32 s47, s3, 1
s_lshl_b32 s49, s48, 10
v_add_u32 v4, s49, v8
s_xor_b32 s49, s49, 1024
v_add_u32 v7, s49, v8
s_lshl_b32 s52, s66, 18
s_lshl_b32 s53, s3, 16
s_add_u32 s52, s52, s53
s_add_u32 s52, s52, {WS_H}
""")
    def hload(t):
        sl = t % HD
        for k in range(2):
            a(f"buffer_load_dwordx4 v[{128+8*sl+4*k}:{128+8*sl+4*k+3}], v{4 if k == 0 else 7}, s[28:31], s52 offen {OPT['ld']}")
        a("s_add_u32 s52, s52, 2048")
    for t in range(HD): hload(t)
    a(f"""
v_lshrrev_b32 v13, 5, v1
v_lshlrev_b32 v13, 3, v13
s_lshl_b32 s56, s67, 7
s_lshl_b32 s54, s47, 6
s_add_u32 s56, s56, s54
""")
    srd(a, 32, 14, 1792 * 2)
    for g in range(4):
        a(f"buffer_load_dwordx2 v[{16+2*g}:{17+2*g}], v13, s[32:35], s56 offen offset:{16*g}")
    phase3_ring_setup(a)
    phase3_setup(a)
    reduce_addrs(a)
    tail = []
    if OPT["w2pf"] == "tail":
        w2_prefetch_setup(a)
        tail = [w2_prefetch_one() for _ in range(8)]
    ml = p3_operand_loads()
    per = (len(ml) + 3) // 4
    for t in range(32):
        sl = t % HD
        nl = t + HD < 32
        for n, (bf, bd) in enumerate([(0, 0), (1, 0), (0, 1), (1, 1)]):
            acc = ACC + 16 * (2 * bf + bd)
            A = 8 * t + 4 * bf; B = 128 + 8 * sl + 4 * bd
            a(f"v_mfma_f32_32x32x16_bf16 v[{acc}:{acc+15}], a[{A}:{A+3}], v[{B}:{B+3}], " + ("0" if t == 0 else f"v[{acc}:{acc+15}]"))
            if nl and n in (1, 3):
                k = n >> 1
                a(f"buffer_load_dwordx4 v[{128+8*sl+4*k}:{128+8*sl+4*k+3}], v{4 if k == 0 else 7}, s[28:31], s52 offen {OPT['ld']}")
        if nl: a("s_add_u32 s52, s52, 2048")
        else:
            if t >= OPT["mlat"] and ml:
                a.ext(ml[:per]); ml = ml[per:]
            if t >= OPT["pfat"]:
                for _ in range(2):
                    if tail: a.ext(tail.pop(0))
    a.ext(ml)
    for x in tail: a.ext(x)
    stamp(a, 6)
    e = Asm()
    pre = []
    for g in range(4):
        for k in range(2):
            pre += [f"v_lshlrev_b32 v{32+4*g+2*k}, 16, v{16+2*g+k}", f"v_and_b32 v{33+4*g+2*k}, 0xffff0000, v{16+2*g+k}"]
    pre += [f"v_pk_add_f32 v[{ACC+2*k}:{ACC+2*k+1}], v[{ACC+2*k}:{ACC+2*k+1}], v[{32+2*k}:{33+2*k}]" for k in range(8)]
    pre += [f"v_mov_b32 v14, {f32(C1)}", f"v_mov_b32 v15, {f32(C1)}", f"v_mov_b32 v16, {f32(C2)}", f"v_mov_b32 v17, {f32(C2)}",
            "v_mov_b32 v18, 1.0", "v_mov_b32 v19, 1.0"]
    reduce_exchange(e, pre)
    pr = lambda b, k: f"v[{b+2*k}:{b+2*k+1}]"
    for k in range(8): e(f"v_pk_mul_f32 {pr(128,k)}, {pr(ACC,k)}, {pr(ACC,k)}")
    for k in range(8): e(f"v_pk_fma_f32 {pr(128,k)}, {pr(128,k)}, v[16:17], v[14:15]")
    for k in range(8): e(f"v_pk_mul_f32 {pr(128,k)}, {pr(128,k)}, {pr(ACC,k)}")
    for i in range(16): e(f"v_exp_f32 v{128+i}, v{128+i}")
    for k in range(8): e(f"v_pk_add_f32 {pr(128,k)}, {pr(128,k)}, v[18:19]")
    for i in range(16): e(f"v_rcp_f32 v{128+i}, v{128+i}")
    for k in range(8): e(f"v_pk_mul_f32 {pr(128,k)}, {pr(128,k)}, {pr(ACC,k)}")
    for k in range(8): e(f"v_cvt_pk_bf16_f32 v{144+k}, v{128+2*k}, v{129+2*k}")
    fill = []
    for _ in range(RING2_SLOTS): fill += st2.issue_lines()
    cut = int(len(e.lines) * OPT["sprinkle"]); c0 = int(len(e.lines) * OPT["spr0"])
    late = []
    if OPT["sprinkle"] <= OPT["spr0"]: late, fill = fill, []
    a.ext(e.lines[:c0] + (interleave(e.lines[c0:cut], fill) if fill else e.lines[c0:cut]) + e.lines[max(cut, c0):])
    a(f"""
s_mul_i32 s53, s66, 144
s_lshl_b32 s54, s67, 2
s_add_u32 s53, s53, s54
s_lshl_b32 s54, s47, 1
s_add_u32 s53, s53, s54
s_lshl_b32 s53, s53, 1
s_add_u32 s53, s53, s48
s_lshl_b32 s53, s53, 10
s_add_u32 s53, s53, {WS_G}
v_lshlrev_b32 v8, 4, v1
buffer_store_dwordx4 v[144:147], v8, s[28:31], s53 offen sc1
buffer_store_dwordx4 v[148:151], v8, s[28:31], s53 offen offset:2048 sc1
s_lshl_b32 s100, s66, 2
s_lshr_b32 s53, s64, 1
s_add_u32 s100, s100, s53
s_lshl_b32 s100, s100, 7
s_add_u32 s100, s100, {CNT_G}
s_waitcnt vmcnt(0)
""")
    a(";;AUTO_END")
    return late

def fft_tables(a, P):
    a(f"""
v_and_b32 v24, 31, v1
v_lshrrev_b32 v25, 5, v1
v_bfe_u32 v26, v24, 2, 1
v_lshlrev_b32 v26, 4, v26
v_lshrrev_b32 v27, 3, v24
v_lshlrev_b32 v27, 2, v27
v_add_u32 v26, v26, v27
v_and_b32 v27, 3, v24
v_add_u32 v26, v26, v27
v_lshlrev_b32 v33, 4, v1
""")
    def trio(idx_lane, slot0, step_hi, scale, off, stride):
        a(f"v_cvt_f32_u32 v35, {idx_lane}")
        a(f"v_mul_f32 v35, {f32(scale)}, v35")
        for j in range(8):
            a(f"v_add_u32 v30, {(j&3) + step_hi*(j>>2)}, {slot0}")
            a("v_cvt_f32_u32 v30, v30")
            a("v_mul_f32 v30, v30, v35")
            a("v_fract_f32 v30, v30")
            a(f"v_cos_f32 v{40+j}, v30")
            a(f"v_sin_f32 v{48+j}, v30")
        for j in range(4): a(f"v_cvt_pk_bf16_f32 v{36+j}, v{40+2*j}, v{41+2*j}")
        for j in range(4): a(f"v_cvt_pk_bf16_f32 v{56+j}, v{48+2*j}, v{49+2*j}")
        for j in range(4): a(f"v_cvt_pk_bf16_f32 v{60+j}, -v{48+2*j}, -v{49+2*j}")
        a(f"v_add_u32 v34, {off}, v33")
        a(f"ds_write_b128 v34, v[36:39]")
        a(f"ds_write_b128 v34, v[56:59] offset:{stride}")
        a(f"ds_write_b128 v34, v[60:63] offset:{2*stride}")
    a("s_mov_b32 s44, s3")
    a(f"{P}_t64:")
    a(f"""
s_lshr_b32 s45, s44, 1
s_and_b32 s46, s44, 1
s_lshl_b32 s46, s46, 5
v_add_u32 v28, s46, v24
s_lshl_b32 s46, s45, 4
v_lshlrev_b32 v29, 2, v25
v_add_u32 v29, s46, v29
s_lshl_b32 s47, s44, 10
s_add_u32 s47, s47, {F_TAB+TB_C64}
""")
    trio("v28", "v29", 8, 1 / 64, "s47", 8192)
    a("s_add_u32 s44, s44, 4")
    a("s_cmp_lt_u32 s44, 8")
    a(f"s_cbranch_scc1 {P}_t64")
    a(f"""
s_and_b32 s44, s3, 1
s_lshl_b32 s46, s44, 3
v_lshlrev_b32 v29, 4, v25
v_add_u32 v29, s46, v29
s_lshl_b32 s47, s44, 10
s_add_u32 s47, s47, {F_TAB+TB_C32}
""")
    trio("v26", "v29", 4, 1 / 32, "s47", 2048)
    a("s_mov_b32 s44, s3")
    a(f"{P}_tw:")
    a(f"""
s_lshr_b32 s45, s44, 3
s_and_b32 s46, s44, 7
s_lshl_b32 s47, s45, 5
v_add_u32 v28, s47, v24
v_lshlrev_b32 v29, 4, v25
s_lshl_b32 s48, s46, 1
v_add_u32 v29, s48, v29
v_add_u32 v30, 1, v29
v_mul_u32_u24 v29, v29, v28
v_mul_u32_u24 v30, v30, v28
s_lshr_b32 s48, s46, 1
s_lshl_b32 s48, s48, 3
s_add_u32 s47, s47, s48
s_and_b32 s48, s46, 1
s_lshl_b32 s48, s48, 1
s_add_u32 s47, s47, s48
v_lshlrev_b32 v31, 2, v25
v_add_u32 v31, s47, v31
v_add_u32 v32, 1, v31
v_mul_u32_u24 v31, v31, v26
v_mul_u32_u24 v32, v32, v26
v_cvt_f32_u32 v29, v29
v_cvt_f32_u32 v30, v30
v_cvt_f32_u32 v31, v31
v_cvt_f32_u32 v32, v32
v_mul_f32 v29, {f32(1/2048)}, v29
v_mul_f32 v30, {f32(1/2048)}, v30
v_mul_f32 v31, {f32(1/2048)}, v31
v_mul_f32 v32, {f32(1/2048)}, v32
v_cos_f32 v36, v29
v_cos_f32 v37, v30
v_sin_f32 v38, v29
v_sin_f32 v39, v30
v_cos_f32 v40, v31
v_cos_f32 v41, v32
v_sin_f32 v42, v31
v_sin_f32 v43, v32
v_mul_f32 v40, {f32(2.0**-20)}, v40
v_mul_f32 v41, {f32(2.0**-20)}, v41
v_mul_f32 v42, {f32(2.0**-20)}, v42
v_mul_f32 v43, {f32(2.0**-20)}, v43
s_lshl_b32 s47, s44, 10
v_add_u32 v34, s47, v33
ds_write_b128 v34, v[36:39] offset:{F_TW1}
ds_write_b128 v34, v[40:43] offset:{F_TW2}
s_add_u32 s44, s44, 4
s_cmp_lt_u32 s44, 16
s_cbranch_scc1 {P}_tw
s_waitcnt lgkmcnt(0)
""")

F_TW1, F_TW2, F_ZST = 0, 16384, 32768
F_TAB = 49152
F_COL = 98304
A_C64, A_S64, A_N64 = 0, 32, 64
A_K32 = 96
A_Y = (120, 152)
A_W = 184
F_ACC = 64
F_PK = 192
F_TW = 8
F_WB = 24
F_TMP = 56
COLBASE = F_COL
UNITS = [(0, 0), (1, 0), (0, 1), (1, 1)]

def fft_load_constants(a):
    a("v_lshlrev_b32 v2, 4, v1")
    a(f"v_add_u32 v3, {F_TAB}, v2")
    for u in range(4):
        for T in range(2):
            k = 2 * u + T
            for base, off in ((A_C64, TB_C64), (A_S64, TB_S64), (A_N64, TB_N64)):
                a(f"ds_read_b128 a[{base+4*k}:{base+4*k+3}], v3 offset:{off+1024*k}")
            a("s_waitcnt lgkmcnt(6)")
    for u in range(2):
        for n, off in enumerate((TB_C32, TB_S32, TB_N32)):
            a(f"ds_read_b128 a[{A_K32+12*u+4*n}:{A_K32+12*u+4*n+3}], v3 offset:{off+1024*u}")
    a("s_waitcnt lgkmcnt(0)")

def mfx(d, x, y, first):
    return f"v_mfma_f32_32x32x16_bf16 v[{d}:{d+15}], {x}, {y}, " + ("0" if first else f"v[{d}:{d+15}]")
def ar(b): return f"a[{b}:{b+3}]"
def vr4(b): return f"v[{b}:{b+3}]"

def u_acc(n): return F_ACC + 32 * n, F_ACC + 32 * n + 16
def u_pk(n): return F_PK + 16 * n, F_PK + 16 * n + 8

def m_f1(n):
    c, T = UNITS[n]; re, im = u_acc(n); o = []
    for u in range(4):
        k = 2 * u + T
        yr, yi = ar(A_Y[c] + 4 * u), ar(A_Y[c] + 16 + 4 * u)
        C, S, N = ar(A_C64 + 4 * k), ar(A_S64 + 4 * k), ar(A_N64 + 4 * k)
        o += [mfx(re, yr, C, u == 0), mfx(im, yi, C, u == 0), mfx(re, yi, S, False), mfx(im, yr, N, False)]
    return o
def m_f2(n):
    re, im = u_acc(n); pr, pi = u_pk(n); o = []
    for u in range(2):
        C, S, N = ar(A_K32 + 12 * u), ar(A_K32 + 12 * u + 4), ar(A_K32 + 12 * u + 8)
        o += [mfx(re, C, vr4(pr + 4 * u), u == 0), mfx(im, C, vr4(pi + 4 * u), u == 0),
              mfx(re, S, vr4(pi + 4 * u), False), mfx(im, N, vr4(pr + 4 * u), False)]
    return o
def m_i1(n):
    re, im = u_acc(n); pr, pi = u_pk(n); o = []
    for u in range(2):
        C, S, N = ar(A_K32 + 12 * u), ar(A_K32 + 12 * u + 4), ar(A_K32 + 12 * u + 8)
        o += [mfx(re, vr4(pr + 4 * u), C, u == 0), mfx(im, vr4(pi + 4 * u), C, u == 0),
              mfx(re, vr4(pi + 4 * u), N, False), mfx(im, vr4(pr + 4 * u), S, False)]
    return o
def m_i2(c, T2, us):
    re, im = u_acc(UNITS.index((c, T2))); o = []
    for u in us:
        src = UNITS.index((c, u >> 1)); pr, pi = u_pk(src)
        rr, ri = vr4(pr + 4 * (u & 1)), vr4(pi + 4 * (u & 1))
        k = 2 * u + T2
        C, S, N = ar(A_C64 + 4 * k), ar(A_S64 + 4 * k), ar(A_N64 + 4 * k)
        o += [mfx(re, rr, C, u == 0), mfx(im, ri, C, u == 0), mfx(re, ri, N, False), mfx(im, rr, S, False)]
    return o

def v_tw(T, table, conj):
    o = []
    rd = lambda e: f"ds_read_b128 v[{F_TW+4*(e&3)}:{F_TW+4*(e&3)+3}], v2 offset:{table + (T*8+e)*1024}"
    o += [rd(0), rd(1), rd(2)]
    for e in range(8):
        if e + 3 < 8: o.append(rd(e + 3))
        c0 = F_TW + 4 * (e & 3)
        for c in range(2):
            n = UNITS.index((c, T)); re, im = u_acc(n); pr, pi = u_pk(n)
            t = F_TMP + 4 * c
            o += K2.zip2(K2.cmul(re + 2 * e, im + 2 * e, c0, c0 + 2, t, conj), K2.cmul(re + 2 * e + 1, im + 2 * e + 1, c0 + 1, c0 + 3, t + 2, conj))
            o += [f"v_cvt_pk_bf16_f32 v{pr+e}, v{t}, v{t+2}", f"v_cvt_pk_bf16_f32 v{pi+e}, v{t+1}, v{t+3}"]
    return o

def v_wm(n):
    re, im = u_acc(n); pr, pi = u_pk(n); wb = F_WB + 16 * (n & 1); o = []
    for e in range(8):
        w0, w1 = wb + 2 * e, wb + 2 * e + 1
        t = F_TMP + 4 * (e & 1); u_ = F_TW + 4 * (e & 1)
        if n >= 2:
            w0, w1 = F_TW + 8 + 2 * (e & 1), F_TW + 9 + 2 * (e & 1)
            o += [f"v_accvgpr_read_b32 v{w0}, a{A_W+16*(n-2)+2*e}", f"v_accvgpr_read_b32 v{w1}, a{A_W+16*(n-2)+2*e+1}"]
        o += [f"v_lshlrev_b32 v{u_}, 16, v{w0}", f"v_and_b32 v{u_+1}, 0xffff0000, v{w0}",
              f"v_lshlrev_b32 v{u_+2}, 16, v{w1}", f"v_and_b32 v{u_+3}, 0xffff0000, v{w1}"]
        o += K2.zip2(K2.cmul(re + 2 * e, im + 2 * e, u_, u_ + 1, t, True), K2.cmul(re + 2 * e + 1, im + 2 * e + 1, u_ + 2, u_ + 3, t + 2, True))
        o += [f"v_cvt_pk_bf16_f32 v{pr+e}, v{t}, v{t+2}", f"v_cvt_pk_bf16_f32 v{pi+e}, v{t+1}, v{t+3}"]
    return o

ZP = 80
ZTILE = 32 * ZP
def v_out_w(c, T2, buf):
    n = UNITS.index((c, T2)); o = []
    for part in range(2):
        src = F_ACC + 32 * n + 16 * part
        t = F_TW + 8 * part
        slot = ZTILE * (2 * buf + part)
        o += [f"v_cvt_pk_bf16_f32 v{t+k}, v{src+2*k}, v{src+2*k+1}" for k in range(8)]
        o += [f"ds_write_b128 v5, v[{t}:{t+3}] offset:{slot} ; @def=zo{n}{part}", f"ds_write_b128 v5, v[{t+4}:{t+7}] offset:{slot+16} ; @def=zo{n}{part}"]
    return o
def v_out_r(c, T2, buf):
    n = UNITS.index((c, T2)); o = []
    for part in range(2):
        src = F_ACC + 32 * n + 16 * part
        slot = ZTILE * (2 * buf + part)
        o += [f"ds_read_b128 v[{src}:{src+3}], v6 offset:{slot} ; @use=zo{n}{part}", f"ds_read_b128 v[{src+4}:{src+7}], v6 offset:{slot+16*ZP} ; @use=zo{n}{part}"]
    st = []
    for part in range(2):
        src = F_ACC + 32 * n + 16 * part
        so = 48 + 2 * c + part
        st += [f"buffer_store_dwordx4 v[{src}:{src+3}], v2, s[28:31], s{so} offen offset:{2048*T2} sc1",
               f"buffer_store_dwordx4 v[{src+4}:{src+7}], v2, s[28:31], s{so} offen offset:{2048*T2+1024} sc1"]
    return o, st

def fft_columns(a, P, stf):
    a(";;AUTO_BEGIN")
    a(f"""
s_lshl_b32 s43, s64, 2
s_add_u32 s43, s43, s65
s_lshl_b32 s44, s43, 3
s_add_u32 s44, s44, s3
v_lshlrev_b32 v2, 4, v1
s_lshl_b32 s45, s44, 13
s_add_u32 s47, s45, {WS_WT}
s_add_u32 s48, s45, {WS_ZT}
s_add_u32 s49, s48, 4096
s_add_u32 s50, s48, {4*8192}
s_add_u32 s51, s50, 4096
s_lshl_b32 s46, s43, 8
s_lshl_b32 s52, s3, 19
s_add_u32 s46, s46, s52
s_add_u32 s46, s46, {WS_YT}
s_lshl_b32 s52, s3, 14
s_add_u32 s53, s52, {COLBASE}
v_lshrrev_b32 v8, 4, v1
v_and_b32 v9, 15, v1
v_lshlrev_b32 v10, 13, v8
""")
    for m in range(4):
        a(f"v_add_u32 v11, {4*m}, v8")
        a(f"v_xor_b32 v11, v11, v9")
        a(f"v_lshlrev_b32 v11, 4, v11")
        a(f"v_add_u32 v{20+m}, v10, v11")
    for k in range(16):
        a(f"s_add_u32 m0, s53, {1024*k}")
        a(f"s_nop 0")
        a(f"buffer_load_dwordx4 v{20+(k&3)}, s[28:31], s46 offen {OPT['ld']} lds ; @def=col")
        a(f"s_add_u32 s46, s46, {4*8192}")
    def wload(n):
        c, T = UNITS[n]; wb = F_WB + 16 * (n & 1)
        o = [f"s_add_u32 s54, s47, {c*4*8192 + T*4096}"]
        if n < 2: o += [f"buffer_load_dwordx4 v[{wb+4*k}:{wb+4*k+3}], v2, s[28:31], s54 offen offset:{1024*k} {OPT['ld']}" for k in range(4)]
        else: o += [f"buffer_load_dwordx4 a[{A_W+16*(n-2)+4*k}:{A_W+16*(n-2)+4*k+3}], v2, s[28:31], s54 offen offset:{1024*k} {OPT['ld']}" for k in range(4)]
        return o
    a(f"""
v_lshrrev_b32 v8, 5, v1
v_lshlrev_b32 v8, 2, v8
v_bfe_u32 v9, v1, 2, 2
v_add_u32 v8, v8, v9
v_lshlrev_b32 v8, 2, v8
v_and_b32 v10, 1, v1
v_lshlrev_b32 v10, 1, v10
v_bfe_u32 v11, v1, 4, 1
v_add_u32 v10, v10, v11
v_add_u32 v8, v8, v10
v_lshlrev_b32 v8, 8, v8
v_lshlrev_b32 v9, 2, v9
v_add_u32 v9, v9, v10
s_lshl_b32 s52, s3, 1
v_xor_b32 v9, s52, v9
v_lshlrev_b32 v9, 4, v9
v_add_u32 v8, v8, v9
v_bfe_u32 v9, v1, 1, 1
v_lshlrev_b32 v9, 3, v9
v_add_u32 v8, v8, v9
v_add_u32 v3, {COLBASE}, v8
v_xor_b32 v5, 16, v3
v_xor_b32 v6, 128, v3
v_xor_b32 v7, 144, v3
v_and_b32 v8, 31, v1
v_lshlrev_b32 v8, 6, v8
v_lshrrev_b32 v9, 5, v1
v_lshlrev_b32 v9, 5, v9
v_add_u32 v4, v8, v9
""")
    a("waitdef col")
    a("s_barrier")
    stamp(a, 6)
    def yreads(c):
        o = []
        for u in range(4):
            for part in range(2):
                v = (3, 5, 6, 7)[2 * c + part]
                for rd in range(2):
                    d = A_Y[c] + 16 * part + 4 * u + 2 * rd
                    o.append(f"ds_read_b64_tr_b16 a[{d}:{d+1}], v{v} offset:{16384*u+8192*rd}")
        return o
    a.ext(yreads(0))
    a.ext(interleave(m_f1(0), yreads(1) + wload(0)))
    a.ext(interleave(m_f1(1), wload(1) + wload(2) + wload(3)))
    a("s_waitcnt lgkmcnt(0)")
    a("s_barrier")
    a(f"""
s_mul_i32 s52, s3, {4*ZTILE}
v_and_b32 v8, 31, v1
v_mul_u32_u24 v8, {ZP}, v8
v_lshrrev_b32 v9, 5, v1
v_lshlrev_b32 v9, 5, v9
v_add_u32 v8, v8, v9
v_add_u32 v5, s52, v8
v_lshrrev_b32 v8, 2, v1
v_mul_u32_u24 v8, {ZP}, v8
v_and_b32 v9, 3, v1
v_lshlrev_b32 v9, 4, v9
v_add_u32 v8, v8, v9
v_add_u32 v6, s52, v8
""")
    if OPT["fst"]: stamp(a, 8)
    a.ext(interleave(m_f1(2) + m_f1(3), v_tw(0, F_TW1, False), start=1))
    a.ext(interleave(m_f2(0) + m_f2(1), v_tw(1, F_TW1, False)))
    a.ext(interleave(m_f2(2) + m_f2(3), v_wm(0) + v_wm(1)))
    if OPT["fst"]: stamp(a, 9)
    a.ext(interleave(m_i1(0) + m_i1(1), v_wm(2) + v_wm(3)))
    a.ext(interleave(m_i1(2) + m_i1(3), v_tw(0, F_TW2, True)))
    a.ext(interleave(m_i2(0, 0, (0, 1)) + m_i2(1, 0, (0, 1)), v_tw(1, F_TW2, True)))
    if OPT["fst"]: stamp(a, 10)
    a("s_waitcnt lgkmcnt(0)")
    a("s_barrier")
    phase3_ring_setup(a)
    fill = []
    for _ in range(OPT["fdma"]): fill += stf.issue_lines()
    rA0, sA0 = v_out_r(0, 0, 0); rB0, sB0 = v_out_r(1, 0, 1); rA1, sA1 = v_out_r(0, 1, 0); rB1, sB1 = v_out_r(1, 1, 1)
    seq = []
    seq += m_i2(0, 0, (2, 3)) + m_i2(1, 0, (2, 3))
    seq += interleave(m_i2(0, 1, range(4)), v_out_w(0, 0, 0) + v_out_w(1, 0, 1), start=2)
    seq += interleave(m_i2(1, 1, range(4)), rA0 + rB0 + sA0 + sB0 + v_out_w(0, 1, 0), start=1)
    a.ext(interleave(seq, fill) if fill else seq)
    if OPT["fst"]: stamp(a, 11)
    a.ext(rA1 + v_out_w(1, 1, 1) + sA1 + rB1 + sB1)
    if OPT["ffilt"]:
        k0 = max(k for k, l in enumerate(a.lines) if "s_barrier" in l)
        keep = []
        for l in a.lines[k0:]:
            t = l.strip()
            if "v" in OPT["ffilt"] and t.startswith("v_") and not t.startswith("v_mfma"): continue
            if "m" in OPT["ffilt"] and t.startswith("v_mfma"): continue
            if "d" in OPT["ffilt"] and t.startswith("ds_read"): continue
            if "s" in OPT["ffilt"] and t.startswith("buffer_store"): continue
            keep.append(l)
        a.lines[k0:] = keep
    a(f"""
s_lshl_b32 s72, s64, 7
s_add_u32 s72, s72, {CNT_Z}
""")
    a(";;AUTO_END")

MREG = 192
XREG = 50
def gring(k): return 128 + 8 * k

def phase3_ring_setup(a):
    a(f"""
s_and_b32 s68, s65, 7
s_lshl_b32 s69, s64, 2
s_lshr_b32 s44, s65, 3
s_add_u32 s69, s69, s44
v_lshrrev_b32 v24, 3, v1
v_and_b32 v25, 7, v1
v_bfe_u32 v26, v1, 4, 1
v_lshlrev_b32 v26, 2, v26
v_xor_b32 v25, v25, v26
v_lshlrev_b32 v25, 4, v25
v_lshlrev_b32 v24, 12, v24
v_add_u32 v28, v24, v25
v_add_u32 v29, {8*4096-1024}, v28
v_lshrrev_b32 v24, 5, v1
v_lshlrev_b32 v24, 9, v24
v_bfe_u32 v25, v1, 2, 2
v_lshlrev_b32 v25, 7, v25
v_add_u32 v24, v24, v25
v_bfe_u32 v25, v1, 4, 1
v_lshlrev_b32 v25, 5, v25
v_add_u32 v24, v24, v25
v_and_b32 v25, 3, v1
v_lshlrev_b32 v25, 3, v25
v_add_u32 v24, v24, v25
v_bfe_u32 v25, v1, 3, 1
v_lshlrev_b32 v25, 6, v25
v_xor_b32 v30, v24, v25
s_and_b32 s45, s3, 1
s_lshl_b32 s44, s45, 6
v_xor_b32 v30, s44, v30
s_mul_i32 s98, s3, {RING2_SLOTS*2048}
s_add_u32 s98, s98, {RING2_BASE}
v_add_u32 v30, s98, v30
v_xor_b32 v31, 64, v30
s_mul_i32 s99, s3, {28*16*4096}
s_lshl_b32 s44, s69, 7
s_add_u32 s99, s99, s44
""")
    srd(a, 24, 16, 1792 * 4096)

def phase3_setup(a):
    a(f"""
s_and_b32 s45, s3, 1
s_lshr_b32 s46, s3, 1
s_lshl_b32 s44, s69, 7
s_lshl_b32 s51, s3, 19
s_add_u32 s51, s51, s44
s_add_u32 s51, s51, {WS_ZT}
v_lshlrev_b32 v8, 4, v1
s_lshl_b32 s44, s46, 10
v_add_u32 v48, s44, v8
s_xor_b32 s44, s44, 1024
v_add_u32 v49, s44, v8
s_mul_i32 s44, s68, 144
s_lshl_b32 s97, s3, 3
s_add_u32 s97, s97, s44
s_add_u32 s97, s97, 112
s_lshl_b32 s97, s97, 11
s_add_u32 s97, s97, {WS_G}
s_mul_i32 s55, s3, 28
s_add_u32 s55, s55, s44
s_lshl_b32 s55, s55, 11
s_add_u32 s55, s55, {WS_G}
v_and_b32 v61, 31, v1
v_lshlrev_b32 v9, 10, v61
v_lshrrev_b32 v10, 5, v1
v_lshlrev_b32 v10, 5, v10
v_add_u32 v60, v9, v10
s_lshl_b32 s58, s69, 1
s_add_u32 s58, s58, s45
s_lshl_b32 s59, s58, 15
s_lshl_b32 s44, s68, 1
s_add_u32 s44, s44, s46
s_lshl_b32 s44, s44, 6
s_add_u32 s59, s59, s44
s_lshl_b32 s58, s58, 6
v_lshlrev_b32 v61, 1, v61
""")
    srd(a, 40, 4, 2048 * 1024)

def p3_operand_loads():
    o = []
    o += [f"buffer_load_dwordx4 v[{XREG}:{XREG+3}], v60, s[40:43], s59 offen",
          f"buffer_load_dwordx4 v[{XREG+4}:{XREG+7}], v60, s[40:43], s59 offen offset:16",
          "s_mov_b32 s32, s18", "s_and_b32 s33, s19, 0xffff", "s_mov_b32 s34, 4096", "s_mov_b32 s35, 0x20000",
          f"buffer_load_ushort v{XREG+8}, v61, s[32:35], s58 offen"]
    return o

MST = 0
def m_gen():
    S, R, T = 8, 24, 36
    o = []
    o += ["v_and_b32 v36, 31, v1", "v_bfe_u32 v37, v36, 2, 1", "v_lshlrev_b32 v37, 4, v37", "v_lshrrev_b32 v38, 3, v36",
          "v_lshlrev_b32 v38, 2, v38", "v_add_u32 v37, v37, v38", "v_and_b32 v38, 3, v36", "v_add_u32 v37, v37, v38",
          "s_lshl_b32 s44, s68, 6", "v_add_u32 v37, s44, v37",
          "s_lshr_b32 s45, s3, 1", "s_lshl_b32 s46, s45, 5", "v_add_u32 v38, s46, v37",
          "s_xor_b32 s46, s46, 32", "v_add_u32 v39, s46, v37",
          "v_lshrrev_b32 v40, 5, v1", "v_lshlrev_b32 v40, 1, v40", "s_lshl_b32 s46, s3, 6", "v_add_u32 v40, s46, v40"]
    for bd in range(2):
        d = 38 + bd
        o += [f"v_and_b32 v41, 63, v{d}", "v_cvt_f32_u32 v41, v41", f"v_mul_f32 v41, {f32(1/64)}, v41",
              f"v_cos_f32 v{R+2*bd}, v41", f"v_sin_f32 v{R+2*bd+1}, v41"]
        for jj, dc in enumerate((0, 1, 4, 5)):
            c, sn = S + 8 * bd + 2 * jj, S + 8 * bd + 2 * jj + 1
            o += [f"v_add_u32 v41, {dc}, v40", f"v_mul_u32_u24 v41, v41, v{d}", "v_and_b32 v41, 0x1ff, v41", "v_cvt_f32_u32 v41, v41",
                  f"v_mul_f32 v41, {f32(1/512)}, v41", f"v_cos_f32 v{c}, v41", f"v_sin_f32 v{sn}, v41",
                  f"v_add_f32 v{c}, v{c}, v{c}", f"v_add_f32 v{sn}, v{sn}, v{sn}"]
    o += ["s_cmp_eq_u32 s3, 0\ns_cselect_b32 s46, -1, 0", "s_mov_b32 s47, 0"]
    for bd in range(2):
        o += [f"v_and_b32 v41, 1, v{38+bd}", f"v_lshlrev_b32 v41, 15, v41", f"v_or_b32 v{42+bd}, 0x3f80, v41"]
    for j in range(8):
        for bd in range(2):
            for jj in range(4):
                c, sn = S + 8 * bd + 2 * jj, S + 8 * bd + 2 * jj + 1
                dst = MREG + 8 * j + 4 * bd + jj
                o.append(f"v_cvt_pk_bf16_f32 v{dst}, v{c}, -v{sn}")
                if j == 0 and jj == 0: o.append(f"v_cndmask_b32 v{dst}, v{dst}, v{42+bd}, s[46:47]")
                if j < 7:
                    t = T + 2 * (jj & 1)
                    rc, rs = R + 2 * bd, R + 2 * bd + 1
                    o += [f"v_mul_f32 v{t}, v{sn}, v{rs}", f"v_mul_f32 v{t+1}, v{c}, v{rs}",
                          f"v_fma_f32 v{c}, v{c}, v{rc}, -v{t}", f"v_fma_f32 v{sn}, v{sn}, v{rc}, v{t+1}"]
    return o

def phase3(a, P, st, role):
    GD = OPT["gd"]
    P = P + role
    assert GD <= 8
    a(";;AUTO_BEGIN")
    a(f"""
s_lshl_b32 s74, s68, 9
s_add_u32 s74, s74, {CNT_G}
v_lshlrev_b32 v32, 7, v1
v_mov_b32 v33, 7
s_mov_b32 exec_lo, 0xf
s_mov_b32 exec_hi, 0
buffer_load_dword v34, v32, s[28:31], s74 offen sc1
s_mov_b64 exec, -1
""")
    n1 = RING2_SLOTS
    def gload(t):
        r = gring(t % GD)
        for k in range(2):
            a(f"buffer_load_dwordx4 v[{r+4*k}:{r+4*k+3}], v{48+k}, s[28:31], s55 offen {OPT['ld']}")
        a("s_add_u32 s55, s55, 2048")
    if role == "g":
        for t in range(n1):
            st.read(t)
            if t >= 1:
                a(f"waitdef {st.tag}r{t-1}"); st.issue()
        a(f"waitdef {st.tag}r{n1-1}"); st.issue()
        assert st.issued == 28
    else:
        while st.issued < n1: st.issue()
    def check(name, nl, vaddr, vtgt, vval, soff):
        a("s_mov_b32 s73, 0")
        a(f"v_mov_b32 v35, v{vval}")
        a(";;AUTO_END")
        a(f"""
s_mov_b32 exec_lo, {hex((1 << nl) - 1)}
s_mov_b32 exec_hi, 0
{name}_l:
v_cmp_ge_u32 vcc, v35, v{vtgt}
s_cmp_eq_u64 vcc, exec
s_cbranch_scc1 {name}_d
buffer_load_dword v35, v{vaddr}, s[28:31], {soff} offen sc1
s_add_u32 s73, s73, 1
s_waitcnt vmcnt(0)
s_cmp_lt_u32 s73, {SPIN_LIMIT}
s_cbranch_scc1 {name}_l
{name}_d:
s_mov_b64 exec, -1
""")
        a(";;AUTO_RESUME")
    mg_all = m_gen()
    if role == "g":
        a.ext(mg_all); mg_all = []
    stamp(a, 8)
    check(f"{P}_gc", 4, 32, 33, 34, "s74")
    stamp(a, 9)
    for t in range(GD): gload(t)
    if role == "f":
        for t in range(n1): st.read(t)
    def zdma(j):
        a(f"s_add_u32 m0, s98, {j*2048}")
        a("s_nop 0")
        a(f"buffer_load_dwordx4 v28, s[28:31], s51 offen {OPT['ld']} lds ; @def=z{j}")
        a(f"buffer_load_dwordx4 v29, s[28:31], s51 offen offset:1024 {OPT['ld']} lds ; @def=z{j}")
        a(f"s_add_u32 s51, s51, {16*4096}")
    def zread(j):
        for b in range(2):
            for rd in range(2):
                d = 224 + 8 * (j & 3) + 4 * b + 2 * rd
                a(f"ds_read_b64_tr_b16 a[{d}:{d+1}], v{30+b} offset:{j*2048+rd*1024}")
    order = [(0, 0), (0, 1), (1, 0), (1, 1)]
    ml = p3_operand_loads() if role == "f" else []
    mg = mg_all
    per_m = 3
    LEAD = 3
    nz = 0
    for t in range(28):
        if n1 <= t + LEAD < 28: st.read(t + LEAD)
        r = gring(t % GD)
        nl = t + GD < 28
        for n, (bd, bs) in enumerate(order):
            acc = ACC + 16 * (2 * bd + bs)
            a(f"v_mfma_f32_32x32x16_bf16 v[{acc}:{acc+15}], v[{r+4*bd}:{r+4*bd+3}], a[{8*t+4*bs}:{8*t+4*bs+3}], " + ("0" if t == 0 else f"v[{acc}:{acc+15}]"))
            if nl and n in (1, 3):
                k = n >> 1
                a(f"buffer_load_dwordx4 v[{r+4*k}:{r+4*k+3}], v{48+k}, s[28:31], s55 offen {OPT['ld']}")
            a.ext(mg[:per_m]); del mg[:per_m]
        if nl: a("s_add_u32 s55, s55, 2048")
        if role == "f" and st.issued < 28:
            a(f"waitdef {st.tag}r{st.issued - n1}"); st.issue()
        if t == OPT["zat"] - 7:
            a(f"""
v_mov_b32 v33, 4
s_mov_b32 s72, {CNT_Z}
s_mov_b32 exec_lo, 0xff
s_mov_b32 exec_hi, 0
buffer_load_dword v34, v32, s[28:31], s72 offen sc1
s_mov_b64 exec, -1
""")
        if t == OPT["zat"] - 1: check(f"{P}_zc", 8, 32, 33, 34, "s72")
        if t >= OPT["zat"] and nz < 8 and n1 + nz <= t + LEAD - 1:
            a(f"waitdef {st.tag}r{n1+nz}")
            zdma(nz); nz += 1
        if ml and t >= 20:
            k = (len(ml) + (27 - t)) // (28 - t)
            a.ext(ml[:k]); ml = ml[k:]
        if t >= 24 and t - 24 < nz: zread(t - 24)
    while nz < 8:
        zdma(nz); nz += 1
    a.ext(ml)
    def needs(j):
        last = -1
        for k, l in enumerate(mg):
            for m in re.finditer(r"v_(?:cvt_pk_bf16_f32|cndmask_b32) v(\d+),", l):
                r = int(m.group(1))
                if MREG <= r < MREG + 8 * (j + 1): last = k
        return last + 1
    for j in range(8):
        k = needs(j); a.ext(mg[:k]); del mg[:k]
        for (bd, bs) in order:
            acc = ACC + 16 * (2 * bd + bs)
            B = 224 + 8 * (j & 3) + 4 * bs
            a(f"v_mfma_f32_32x32x16_bf16 v[{acc}:{acc+15}], v[{MREG+8*j+4*bd}:{MREG+8*j+4*bd+3}], a[{B}:{B+3}], v[{acc}:{acc+15}]")
            a.ext(mg[:per_m]); del mg[:per_m]
        if j + 4 < 8: zread(j + 4)
    a.ext(mg)
    stamp(a, 10)
    reduce_addrs(a)
    pre = []
    for k in range(8):
        pre += [f"v_lshlrev_b32 v{32+2*k}, 16, v{XREG+k}", f"v_and_b32 v{33+2*k}, 0xffff0000, v{XREG+k}"]
    pre += [f"v_lshlrev_b32 v{XREG+9}, 16, v{XREG+8}", f"v_lshlrev_b32 v{XREG+8}, 16, v{XREG+8}"]
    pre += [f"v_pk_add_f32 v[{ACC+2*k}:{ACC+2*k+1}], v[{ACC+2*k}:{ACC+2*k+1}], v[{32+2*k}:{33+2*k}]" for k in range(8)]
    pre += [f"v_pk_add_f32 v[{ACC+2*k}:{ACC+2*k+1}], v[{ACC+2*k}:{ACC+2*k+1}], v[{XREG+8}:{XREG+9}]" for k in range(8)]
    srd(a, 40, 22, 2048 * 1024)
    reduce_exchange(a, pre)
    for k in range(8): a(f"v_cvt_pk_bf16_f32 v{16+k}, v{ACC+2*k}, v{ACC+2*k+1}")
    a("buffer_store_dwordx4 v[16:19], v60, s[40:43], s59 offen")
    a("buffer_store_dwordx4 v[20:23], v60, s[40:43], s59 offen offset:16")
    a(";;AUTO_END")

def gen_fused(name="parallel_sum__spectral_gfnet__mixer_token_mlp__prompt_kernel"):
    a = Asm(); P = "fz"
    a(f"{P}_start:")
    stamp(a, 0)
    a(f"""
s_load_dwordx16 s[4:19], s[0:1], 0
s_load_dwordx2 s[20:21], s[0:1], 80
s_load_dwordx2 s[22:23], s[0:1], 64
s_load_dwordx2 s[62:63], s[0:1], 72
s_cmp_ge_u32 s2, 256
s_cbranch_scc1 {P}_done
v_lshrrev_b32 v2, 6, v0
v_and_b32 v1, 63, v0
v_readfirstlane_b32 s3, v2
s_and_b32 s64, s2, 7
s_lshr_b32 s65, s2, 3
""")
    phase1(a, P)
    ready_load(a)
    srd(a, 32, 12, 2048 * 3584)
    npf2 = phase1_tail(a)
    a(f"s_cmp_lt_u32 s65, 4")
    a(f"s_cbranch_scc1 {P}_fft")
    gemm1_setup(a)
    a(";;AUTO_BEGIN")
    st1 = Stager(a, 32, RING1_SLOTS, 224, 226, 50, 51, 3584, 512, 24, "", "w")
    NPRE = OPT['npre']
    for _ in range(NPRE): st1.issue()
    a(f"s_waitcnt vmcnt({2*NPRE + npf2})")
    a(";;AUTO_END")
    signal_a(a, P + "g")
    stamp(a, 4)
    a(";;AUTO_BEGIN")
    for t in range(NPRE):
        a(f";;AUTO_INJECT w{t}"); a(f";;AUTO_INJECT w{t}")
    while st1.issued < RING1_SLOTS: st1.issue()
    stamp(a, 12)
    st1.drain()
    if OPT["w2pf"] == "stage":
        w2_prefetch_setup(a)
        for _ in range(8): a.ext(w2_prefetch_one())
    a("s_waitcnt lgkmcnt(0)")
    a(";;AUTO_END")
    stamp(a, 13)
    poll(a, f"{P}_pa", 32, CNT_A, 8)
    stamp(a, 5)
    if OPT["stop"] == "p1": a(f"s_branch {P}_end")
    st2 = Stager(a, 28, RING2_SLOTS, 28, 30, 98, 99, 4096, 1024, 24, "", "u")
    late = gemm1(a, P, st2)
    a("s_barrier")
    signal(a, f"{P}_sg", "s100", vt=44)
    stamp(a, 7)
    if late:
        a.ext(late)
        a("s_waitcnt vmcnt(0)")
    if OPT["stop"] != "p2": phase3(a, P, st2, "g")
    a(f"s_branch {P}_end")
    a(f"{P}_fft:")
    a(f"s_waitcnt vmcnt({npf2})")
    signal_a(a, P + "f")
    stamp(a, 4)
    fft_tables(a, P)
    a("s_barrier")
    fft_load_constants(a)
    poll(a, f"{P}_pf", 32, CNT_A, 8)
    stamp(a, 5)
    if OPT["stop"] == "p1": a(f"s_branch {P}_end")
    stf = Stager(a, 28, RING2_SLOTS, 28, 30, 98, 99, 4096, 1024, 24, "", "f")
    fft_columns(a, P, stf)
    stamp(a, 12)
    stamp(a, 13)
    a("s_mov_b32 s100, s72")
    a("s_waitcnt vmcnt(0)")
    a("s_barrier")
    signal(a, f"{P}_sz", "s100", vt=44)
    stamp(a, 7)
    phase3_setup(a)
    if OPT["stop"] != "p2": phase3(a, P, stf, "f")
    a(f"{P}_end:")
    if not OPT["fst"]: stamp(a, 11)
    stamp_flush_n(a, 14)
    a(f"{P}_done:")
    a("s_endpgm")
    a(f"{P}_codeend:")
    text = a.finalize()
    errs = []
    for tk in ([], [f"{P}_fft"]):
        errs += check_waits(a.ins, take=tk + [f"{P}_noinit"], trips={f"{P}_t64": 1, f"{P}_tw": 3}, verbose=not OPT["ffilt"])
    assert not errs or OPT["ffilt"]
    return header(name) + text, descriptor(name, 512, 102, 256)

def stamp_flush_n(a, n):
    import common
    if not common.STAMP: return
    a("s_waitcnt vmcnt(0) lgkmcnt(0)")
    a("s_memrealtime s[76:77]")
    a("s_waitcnt lgkmcnt(0)")
    a("s_mov_b32 s74, s76")
    a("s_lshl_b32 s75, s2, 2")
    a("s_add_u32 s75, s75, s3")
    a("s_lshl_b32 s75, s75, 6")
    a(f"s_add_u32 s75, s75, {STAMP_BASE}")
    a("v_mov_b32 v0, 0")
    for k in range(n):
        a(f"v_mov_b32 v1, s{80+k}")
        a(f"buffer_store_dword v1, v0, s[28:31], s75 offen offset:{4*k}")
    a("v_mov_b32 v1, s74")
    a(f"buffer_store_dword v1, v0, s[28:31], s75 offen offset:{4*n}")

if __name__ == "__main__":
    t, d = gen_fused(); print(len(t.splitlines()))
```

```python
from common import *
from gemm import lane_dma_offsets, tr_addr
from asmlib import interleave
import re
import k2 as K2

LDS_BYTES = 163840
RING1_SLOTS = 15
RING1 = RING1_SLOTS * 2048
P1 = 4 * RING1
XN_OFF, HS_OFF, HS_PITCH = P1, P1 + 8192, 1088
WP_OFF, WP_PITCH = HS_OFF + 8 * HS_PITCH, 144
YS_OFF = WP_OFF + 64 * WP_PITCH
assert YS_OFF + 8192 <= LDS_BYTES
RED = 0
RING2_SLOTS = 14
RING2_BASE = 49152
WS_CNT = 0xC00000
CNT_A, CNT_G, CNT_Z = WS_CNT, WS_CNT + 32 * 128, WS_CNT + 64 * 128
ACC = 64
SPIN_LIMIT = 1 << 17
OPT = dict(stop="", pfflag="", xflag="", wflag="", pf1a=8, w2flag="", stvar="", rot1=False, rot3=False, early2=True, ld="sc1", inv=False, hd=8, gd=8, zat=20, zlate=True, ffilt="", sprinkle=0.0, nef=4, w2pf="tail", mlat=24, pfat=24, fst=False, spr0=0.0, cpf=1, fdma=14, pf2at="end", npre=2, p1order=2, mgpre=0.0, fd7=0.5, fd8=0.5, mgoff=False, ld3=None, perm=3, zatf=13)

def stamp(a, k):
    import common
    if common.STAMP:
        a("s_memrealtime s[76:77]")
        a("s_waitcnt lgkmcnt(0)")
        a(f"s_mov_b32 s{80+k}, s76")

def poll(a, name, nlanes, soff, target, vt=250):
    a(f"""
s_cmp_lg_u32 s3, 0
s_cbranch_scc1 {name}_skip
v_lshlrev_b32 v{vt}, 7, v1
v_mov_b32 v{vt+1}, {target}
s_mov_b32 s72, {soff}
s_mov_b32 s73, 0
s_mov_b32 exec_lo, {hex((1 << nlanes) - 1)}
s_mov_b32 exec_hi, 0
{name}_loop:
buffer_load_dword v{vt+2}, v{vt}, s[28:31], s72 offen sc1
s_add_u32 s73, s73, 1
s_waitcnt vmcnt(0)
v_cmp_ge_u32 vcc, v{vt+2}, v{vt+1}
s_cmp_eq_u64 vcc, exec
s_cbranch_scc1 {name}_done
s_cmp_lt_u32 s73, {SPIN_LIMIT}
s_cbranch_scc1 {name}_loop
{name}_done:
s_mov_b64 exec, -1
{name}_skip:
s_barrier
""")
    if OPT["inv"]: a("buffer_inv sc1")

def signal(a, name, soff_sreg, vt=250):
    a(f"""
s_cmp_lg_u32 s3, 0
s_cbranch_scc1 {name}_skip
v_mov_b32 v{vt}, 0
v_mov_b32 v{vt+1}, 1
s_mov_b64 exec, 1
buffer_atomic_add v{vt+1}, v{vt}, s[28:31], {soff_sreg} offen sc1
s_mov_b64 exec, -1
{name}_skip:
""")

def phase1(a, P):
    C, NS, A2, TC, TS, VO, MK = 16, 20, 24, 28, 32, 36, 38
    WL = 172
    MC = 216
    a(";;AUTO_BEGIN")
    a(f"""
s_lshl_b32 s44, s64, 5
s_add_u32 s44, s44, s65
s_lshl_b32 s45, s44, 3
s_lshl_b32 s46, s3, 1
s_add_u32 s46, s46, s45
s_lshl_b32 s46, s46, 10
v_lshlrev_b32 v3, 4, v1
s_and_b32 s47, s65, 3
s_lshr_b32 s48, s65, 2
s_lshl_b32 s48, s48, 3
s_add_u32 s48, s48, s64
s_and_b32 s49, s48, 1
s_bfe_u32 s50, s48, 0x10001
s_bfe_u32 s51, s48, 0x20002
s_lshr_b32 s52, s48, 4
s_lshl_b32 s52, s52, 3
s_lshl_b32 s53, s49, 5
s_add_u32 s53, s53, s52
s_lshl_b32 s54, s3, 1
s_add_u32 s53, s53, s54
s_lshl_b32 s54, s50, 10
s_add_u32 s53, s53, s54
s_lshl_b32 s54, s51, 8
s_add_u32 s53, s53, s54
s_mul_i32 s53, s53, 514
s_lshl_b32 s54, s47, 6
v_add_u32 v4, s54, v1
v_mov_b32 v5, 0x100
v_cmp_eq_u32 vcc, 0, v4
v_cndmask_b32 v188, v4, v5, vcc
v_lshlrev_b32 v188, 1, v188
s_waitcnt lgkmcnt(0)
""")
    srd(a, 24, 4, 2048 * 1024)
    a(f"buffer_load_dwordx4 v[8:11], v3, s[24:27], s46 offen {OPT['xflag']}")
    a(f"buffer_load_dwordx4 v[12:15], v3, s[24:27], s46 offen offset:1024 {OPT['xflag']}")
    srd(a, 32, 6, 2048 * 514)
    srd(a, 36, 8, 2048 * 514)
    for ii in range(4):
        if ii: a(f"s_add_u32 s53, s53, {64*514}")
        for nn in range(2):
            a(f"buffer_load_ushort v{WL+8*nn+2*ii}, v188, s[32:35], s53 offen offset:{514*nn} {OPT['wflag']}")
            a(f"buffer_load_ushort v{WL+1+8*nn+2*ii}, v188, s[36:39], s53 offen offset:{514*nn} {OPT['wflag']}")
    srd(a, 28, 20, WS_BYTES)
    if OPT["cpf"]:
        a(f"""
s_getpc_b64 s[40:41]
""")
        a(";;AUTO_END")
        a(f"{P}_pc:")
        a(";;AUTO_RESUME")
        a(f"""
s_sub_u32 s40, s40, {P}_pc-{P}_start
s_subb_u32 s41, s41, 0
s_lshl_b32 s72, s65, 11
s_lshl_b32 s73, s3, 9
s_add_u32 s72, s72, s73
v_and_b32 v190, 7, v1
v_lshlrev_b32 v190, 6, v190
v_add_u32 v190, s72, v190
v_min_u32 v190, {P}_codeend-{P}_start-4, v190
s_mov_b64 exec, 0xff
global_load_dword v191, v190, s[40:41]
s_mov_b64 exec, -1
""")
    a(";;AUTO_END")
    a(f"""
s_cmp_lg_u32 s2, 0
s_cbranch_scc1 {P}_noinit
s_cmp_lg_u32 s3, 3
s_cbranch_scc1 {P}_noinit
v_lshlrev_b32 v190, 7, v1
v_mov_b32 v191, 0
s_mov_b32 s72, {WS_CNT}
buffer_store_dword v191, v190, s[28:31], s72 offen sc1
s_add_u32 s72, s72, 8192
buffer_store_dword v191, v190, s[28:31], s72 offen sc1
s_waitcnt vmcnt(0)
s_mov_b32 s40, s62
s_and_b32 s41, s63, 0xffff
s_mov_b32 s42, 256
s_mov_b32 s43, 0x20000
v_mov_b32 v190, 0
v_mov_b32 v191, 1
s_mov_b64 exec, 1
buffer_store_dword v191, v190, s[40:43], 0 offen sc1
s_mov_b64 exec, -1
{P}_noinit:
""")
    a(";;AUTO_RESUME")
    srd(a, 40, 12, 2048 * 3584)
    a(f"""
s_lshr_b32 s58, s64, 1
s_mul_i32 s58, s58, 896
s_lshl_b32 s59, s65, 2
s_add_u32 s59, s59, s3
s_lshl_b32 s59, s59, 4
s_and_b32 s57, s64, 1
s_lshl_b32 s57, s57, 3
s_add_u32 s101, s59, 8
s_sub_u32 s101, s101, s57
s_add_u32 s59, s59, s57
s_mul_i32 s59, s59, 3584
s_mul_i32 s101, s101, 3584
s_add_u32 s101, s101, s58
s_add_u32 s58, s58, s59
v_cmp_gt_u32 vcc, 56, v1
v_mov_b32 v190, 0x7fffff00
v_cndmask_b32 v189, v190, v3, vcc
""")
    def pf1(n, sreg=58):
        for k in range(n):
            a(f"buffer_load_dwordx4 v[192:195], v189, s[40:43], s{sreg} offen {OPT['pfflag']}")
            a(f"s_add_u32 s{sreg}, s{sreg}, 3584")
    pf1(8)
    def constA():
        a(f"""
s_and_b32 s55, s3, 1
s_lshr_b32 s56, s3, 1
v_and_b32 v4, 15, v1
v_lshrrev_b32 v5, 4, v1
s_lshl_b32 s57, s55, 4
v_add_u32 v6, s57, v4
v_cvt_f32_u32 v40, v6
v_mul_f32 v40, {f32(1/32)}, v40
v_lshlrev_b32 v41, 2, v5
v_cvt_f32_u32 v41, v41
v_mul_f32 v42, v41, v40
v_mul_f32 v43, {f32(16.0)}, v40
v_add_f32 v43, v43, v42
""")
        for j in range(8):
            src = 42 if j < 4 else 43
            if j % 4 == 0: a(f"v_mov_b32 v{44+j}, v{src}")
            else: a(f"v_add_f32 v{44+j}, v{44+j-1}, v40")
        for j in range(8): a(f"v_cos_f32 v{52+j}, v{44+j}")
        for j in range(8): a(f"v_sin_f32 v{44+j}, v{44+j}")
        for j in range(4): a(f"v_cvt_pk_bf16_f32 v{C+j}, v{52+2*j}, v{53+2*j}")
        for j in range(4): a(f"v_cvt_pk_bf16_f32 v{NS+j}, -v{44+2*j}, -v{45+2*j}")
    def constB():
        a(f"""
v_lshrrev_b32 v44, 1, v4
v_cvt_f32_u32 v44, v44
v_mul_f32 v44, {f32(1/16)}, v44
v_mul_f32 v45, v41, v44
v_add_f32 v46, v45, v44
v_add_f32 v47, v46, v44
v_add_f32 v48, v47, v44
v_and_b32 v49, 1, v4
v_cmp_eq_u32 vcc, 1, v49
""")
        for j in range(4): a(f"v_cos_f32 v{52+j}, v{45+j}")
        for j in range(4): a(f"v_sin_f32 v{56+j}, v{45+j}")
        for j in range(4):
            a(f"v_sub_f32 v{60}, 0, v{56+j}")
            a(f"v_cndmask_b32 v{44+j}, v{52+j}, v60, vcc")
            a(f"v_cndmask_b32 v{48+j}, v{56+j}, v{52+j}, vcc")
        for j in range(4): a(f"v_cvt_pk_bf16_f32 v{A2+j}, v{44+2*j}, v{45+2*j}")
        a(f"""
v_cmp_eq_u32 vcc, 0, v6
v_mov_b32 v44, 0x100
v_cndmask_b32 v44, v6, v44, vcc
v_cvt_f32_u32 v44, v44
v_mul_f32 v44, {f32(1/512)}, v44
v_mul_f32 v45, v41, v44
v_add_f32 v46, v45, v44
v_add_f32 v47, v46, v44
v_add_f32 v48, v47, v44
""")
        for i in range(4): a(f"v_cos_f32 v{TC+i}, v{45+i}")
        for i in range(4): a(f"v_sin_f32 v{TS+i}, v{45+i}")
        a("s_mov_b64 s[60:61], vcc")
        for ip in range(2):
            a(f"""
v_lshlrev_b32 v44, 1, v5
v_add_u32 v44, {ip}, v44
v_lshlrev_b32 v45, 5, v44
v_add_u32 v46, v6, v45
v_sub_u32 v47, 0x100, v45
v_cmp_lt_u32 vcc, 0, v44
s_and_b64 vcc, vcc, s[60:61]
v_cndmask_b32 v46, v46, v47, vcc
v_lshlrev_b32 v{VO+ip}, 5, v46
v_mov_b32 v47, 0x80008000
v_cndmask_b32 v{MK+ip}, 0, v47, vcc
""")
    def addrs():
        a(f"""
s_lshl_b32 s57, s56, 3
s_add_u32 s57, s57, {YS_OFF}
v_add_u32 v{VO}, s57, v{VO}
v_add_u32 v{VO+1}, s57, v{VO+1}
s_lshr_b32 s60, s44, 1
s_lshl_b32 s60, s60, 11
s_and_b32 s61, s44, 1
s_lshl_b32 s61, s61, 9
s_add_u32 s60, s60, s61
s_lshl_b32 s61, s3, 19
s_add_u32 s60, s60, s61
s_add_u32 s60, s60, {WS_H}
s_add_u32 s61, s60, 262144
v_bfe_u32 v44, v1, 2, 2
v_mul_u32_u24 v40, {HS_PITCH}, v44
v_lshrrev_b32 v44, 5, v1
v_lshlrev_b32 v44, 6, v44
v_add_u32 v40, v40, v44
v_and_b32 v44, 1, v1
v_lshlrev_b32 v44, 5, v44
v_add_u32 v40, v40, v44
v_bfe_u32 v44, v1, 4, 1
v_lshlrev_b32 v44, 4, v44
v_add_u32 v40, v40, v44
v_bfe_u32 v44, v1, 1, 1
v_lshlrev_b32 v44, 3, v44
v_add_u32 v40, v40, v44
s_lshl_b32 s57, s3, 8
s_add_u32 s57, s57, {HS_OFF}
v_add_u32 v40, s57, v40
v_lshrrev_b32 v44, 5, v1
v_lshlrev_b32 v44, 10, v44
v_and_b32 v45, 31, v1
v_lshlrev_b32 v45, 4, v45
v_add_u32 v41, v44, v45
s_lshl_b32 s57, s56, 12
s_add_u32 s57, s57, {XN_OFF}
v_lshlrev_b32 v42, 3, v1
v_add_u32 v42, s57, v42
""")
        a(f"""
v_lshrrev_b32 v223, 3, v1
s_lshl_b32 s57, s3, 4
v_add_u32 v223, s57, v223
v_and_b32 v224, 7, v1
v_lshlrev_b32 v224, 4, v224
v_mul_u32_u24 v221, {WP_PITCH}, v223
v_add_u32 v221, v221, v224
v_add_u32 v221, {WP_OFF}, v221
v_lshlrev_b32 v222, 13, v223
v_add_u32 v222, v222, v224
s_lshl_b32 s54, s49, 12
s_lshl_b32 s57, s51, 10
s_add_u32 s54, s54, s57
s_lshl_b32 s57, s50, 5
s_add_u32 s57, s57, s52
s_lshl_b32 s57, s57, 4
s_add_u32 s54, s54, s57
s_add_u32 s54, s54, {WS_WT}
s_lshl_b32 s57, s47, 19
s_add_u32 s54, s54, s57
""")
    a(f"""
s_lshl_b32 s57, s3, 11
s_add_u32 s57, s57, {XN_OFF}
v_add_u32 v2, s57, v3
s_mul_i32 s57, s3, {2*HS_PITCH}
s_add_u32 s57, s57, {HS_OFF}
v_add_u32 v7, s57, v3
v_mov_b32 v63, {f32(1/512)}
v_mul_u32_u24 v220, {WP_PITCH}, v1
s_lshl_b32 s57, s3, 5
s_add_u32 s57, s57, {WP_OFF}
v_add_u32 v220, s57, v220
""")
    if OPT["p1order"] == 0:
        constA(); constB(); addrs()
    elif OPT["p1order"] == 1:
        constA()
    X = [64, 72]
    stamp(a, 1)
    for r in range(2):
        for k in range(4):
            a(f"v_lshlrev_b32 v{X[r]+2*k}, 16, v{8+4*r+k}")
            a(f"v_and_b32 v{X[r]+2*k+1}, 0xffff0000, v{8+4*r+k}")
    SUM = [80, 84]; SQ = [82, 86]
    for r in range(2):
        a(f"v_pk_add_f32 v[{SUM[r]}:{SUM[r]+1}], v[{X[r]}:{X[r]+1}], v[{X[r]+2}:{X[r]+3}]")
        a(f"v_pk_mul_f32 v[{SQ[r]}:{SQ[r]+1}], v[{X[r]}:{X[r]+1}], v[{X[r]}:{X[r]+1}]")
    for k in (1, 2, 3):
        for r in range(2):
            if k > 1: a(f"v_pk_add_f32 v[{SUM[r]}:{SUM[r]+1}], v[{SUM[r]}:{SUM[r]+1}], v[{X[r]+2*k}:{X[r]+2*k+1}]")
            a(f"v_pk_fma_f32 v[{SQ[r]}:{SQ[r]+1}], v[{X[r]+2*k}:{X[r]+2*k+1}], v[{X[r]+2*k}:{X[r]+2*k+1}], v[{SQ[r]}:{SQ[r]+1}]")
    red = []
    for r in range(2):
        a(f"v_add_f32 v{SUM[r]}, v{SUM[r]}, v{SUM[r]+1}")
        a(f"v_add_f32 v{SQ[r]}, v{SQ[r]}, v{SQ[r]+1}")
        red += [SUM[r], SQ[r]]
    for step in ("row_shr:1", "row_shr:2", "row_shr:4", "row_shr:8"):
        for v in red: a(f"v_add_f32_dpp v{v}, v{v}, v{v} {step} row_mask:0xf bank_mask:0xf")
    for v in red: a(f"v_add_f32_dpp v{v}, v{v}, v{v} row_bcast:15 row_mask:0xa bank_mask:0xf")
    for v in red: a(f"v_add_f32_dpp v{v}, v{v}, v{v} row_bcast:31 row_mask:0xc bank_mask:0xf")
    for k, v in enumerate(red): a(f"v_readlane_b32 s{71+k}, v{v}, 63")
    B = lambda r: 88 + 8 * r
    for r in range(2):
        a(f"v_mul_f32 v{B(r)}, s{71+2*r}, v63")
        a(f"v_mul_f32 v{B(r)+1}, s{72+2*r}, v63")
    for r in range(2): a(f"v_fma_f32 v{B(r)+1}, -v{B(r)}, v{B(r)}, v{B(r)+1}")
    for r in range(2): a(f"v_max_f32 v{B(r)+1}, 0, v{B(r)+1}")
    for r in range(2): a(f"v_add_f32 v{B(r)+2}, {f32(1e-5)}, v{B(r)+1}")
    for r in range(2): a(f"v_rsq_f32 v{B(r)+4}, v{B(r)+2}")
    for r in range(2): a(f"v_mul_f32 v{B(r)+2}, v{B(r)+4}, v{B(r)+4}")
    for r in range(2):
        a(f"v_mul_f32 v{B(r)+6}, -v{B(r)}, v{B(r)+4}")
        a(f"v_mul_f32 v{B(r)+2}, v{B(r)+2}, v{B(r)+1}")
    for r in range(2): a(f"v_add_f32 v{B(r)+2}, {f32(1e-5)}, v{B(r)+2}")
    for r in range(2): a(f"v_rsq_f32 v{B(r)+3}, v{B(r)+2}")
    for r in range(2):
        a(f"v_mov_b32 v{B(r)+5}, v{B(r)+4}")
        a(f"v_mov_b32 v{B(r)+7}, v{B(r)+6}")
    for r in range(2):
        b = B(r); XN = 104 + 16 * r
        for k in range(4):
            a(f"v_pk_fma_f32 v[{XN+2*k}:{XN+2*k+1}], v[{X[r]+2*k}:{X[r]+2*k+1}], v[{b+4}:{b+5}], v[{b+6}:{b+7}]")
        for k in range(4): a(f"v_cvt_pk_bf16_f32 v{8+4*r+k}, v{XN+2*k}, v{XN+2*k+1}")
        a(f"ds_write_b128 v2, v[{8+4*r}:{11+4*r}] offset:{1024*r}")
    for r in range(2):
        b = B(r)
        a(f"v_mul_f32 v{152+4*r}, v{b+4}, v{b+3}")
        a(f"v_mul_f32 v{153+4*r}, v{b+4}, v{b+3}")
        a(f"v_mul_f32 v{154+4*r}, v{b+6}, v{b+3}")
        a(f"v_mul_f32 v{155+4*r}, v{b+6}, v{b+3}")
    for r in range(2):
        HH = 112 + 16 * r
        for k in range(4):
            a(f"v_pk_fma_f32 v[{HH+2*k}:{HH+2*k+1}], v[{X[r]+2*k}:{X[r]+2*k+1}], v[{152+4*r}:{153+4*r}], v[{154+4*r}:{155+4*r}]")
        for k in range(4): a(f"v_cvt_pk_bf16_f32 v{136+4*r+k}, v{HH+2*k}, v{HH+2*k+1}")
        a(f"ds_write_b128 v7, v[{136+4*r}:{139+4*r}] offset:{HS_PITCH*r}")
    for nn in range(2):
        for ii in range(4):
            a(f"v_lshl_or_b32 v{196+4*nn+ii}, v{WL+1+8*nn+2*ii}, 16, v{WL+8*nn+2*ii}")
        a(f"ds_write_b128 v220, v[{196+4*nn}:{199+4*nn}] offset:{16*nn}")
    if OPT["p1order"] == 1:
        constB(); addrs()
    elif OPT["p1order"] == 2:
        constA(); constB(); addrs()
    a("s_waitcnt lgkmcnt(0)")
    a("s_barrier")
    stamp(a, 2)
    if OPT["pf2at"] == "bar1": pf1(8, 101)
    for rho in range(4):
        for rd in range(2):
            a(f"ds_read_b64_tr_b16 v[{64+4*rho+2*rd}:{65+4*rho+2*rd}], v42 offset:{1024*rho+512*rd}")
    for ii in range(2):
        for rd in range(2):
            a(f"ds_read_b64_tr_b16 v[{144+4*ii+2*rd}:{145+4*ii+2*rd}], v40 offset:{128*ii+4*HS_PITCH*rd}")
    a(f"ds_read_b128 v[196:199], v221")
    a(f"ds_read_b128 v[200:203], v221 offset:{8*WP_PITCH}")
    TR, TI = 80, 96
    for rho in range(4):
        a(f"v_mfma_f32_16x16x32_bf16 v[{TR+4*rho}:{TR+4*rho+3}], v[{64+4*rho}:{67+4*rho}], v[{C}:{C+3}], 0")
        a(f"v_mfma_f32_16x16x32_bf16 v[{TI+4*rho}:{TI+4*rho+3}], v[{64+4*rho}:{67+4*rho}], v[{NS}:{NS+3}], 0")
    a(f"buffer_store_dwordx4 v[144:147], v41, s[28:31], s60 offen sc1")
    a(f"buffer_store_dwordx4 v[148:151], v41, s[28:31], s61 offen sc1")
    a("s_add_u32 s57, s54, 65536")
    a(f"buffer_store_dwordx4 v[196:199], v222, s[28:31], s54 offen sc1")
    a(f"buffer_store_dwordx4 v[200:203], v222, s[28:31], s57 offen {OPT['ld']}")
    BB = 64; XO = 124
    for rho in range(4):
        tr, ti = TR + 4 * rho, TI + 4 * rho
        PR, PI, TT = (112, 116, 120) if not rho & 1 else (152, 156, 160)
        for p in range(2):
            o = 2 * p
            a(f"v_pk_mul_f32 v[{TT}:{TT+1}], v[{ti+o}:{ti+o+1}], v[{TS+o}:{TS+o+1}]")
            a(f"v_pk_mul_f32 v[{TT+2}:{TT+3}], v[{tr+o}:{tr+o+1}], v[{TS+o}:{TS+o+1}]")
            a(f"v_pk_fma_f32 v[{PR+o}:{PR+o+1}], v[{tr+o}:{tr+o+1}], v[{TC+o}:{TC+o+1}], v[{TT}:{TT+1}]")
            a(f"v_pk_fma_f32 v[{PI+o}:{PI+o+1}], v[{ti+o}:{ti+o+1}], v[{TC+o}:{TC+o+1}], v[{TT+2}:{TT+3}] neg_lo:[0,0,1] neg_hi:[0,0,1]")
        b = BB + 4 * rho
        a(f"v_cvt_pk_bf16_f32 v{b}, v{PR}, v{PR+1}")
        a(f"v_cvt_pk_bf16_f32 v{b+1}, v{PR+2}, v{PR+3}")
        a(f"v_cvt_pk_bf16_f32 v{b+2}, v{PI}, v{PI+1}")
        a(f"v_cvt_pk_bf16_f32 v{b+3}, v{PI+2}, v{PI+3}")
        a(f"v_mfma_f32_16x16x32_bf16 v[{XO+4*rho}:{XO+4*rho+3}], v[{A2}:{A2+3}], v[{b}:{b+3}], 0")
    for i in range(4):
        o = 144 + 2 * i
        a(f"v_cvt_pk_bf16_f32 v{o}, v{XO+i}, v{XO+4+i}")
        a(f"v_cvt_pk_bf16_f32 v{o+1}, v{XO+8+i}, v{XO+12+i}")
        if i & 1:
            a(f"v_xor_b32 v{o}, v{MK+(i>>1)}, v{o}")
            a(f"v_xor_b32 v{o+1}, v{MK+(i>>1)}, v{o+1}")
        a(f"ds_write_b64 v{VO+(i>>1)}, v[{o}:{o+1}] offset:{16*(i&1)}")
    a(f"""
s_lshl_b32 s57, s3, 11
s_add_u32 s57, s57, {YS_OFF}
v_add_u32 v2, s57, v3
s_lshl_b32 s57, s44, 13
s_lshl_b32 s96, s3, 11
s_add_u32 s57, s57, s96
s_add_u32 s57, s57, {WS_YT}
s_waitcnt lgkmcnt(0)
s_barrier
ds_read_b128 v[64:67], v2
ds_read_b128 v[68:71], v2 offset:1024
buffer_store_dwordx4 v[64:67], v3, s[28:31], s57 offen sc1
buffer_store_dwordx4 v[68:71], v3, s[28:31], s57 offen offset:1024 sc1
""")
    a(";;AUTO_END")
    stamp(a, 3)

def phase1_tail(a):
    if OPT["pf2at"] != "end": return 0
    for k in range(8):
        a(f"buffer_load_dwordx4 v[192:195], v189, s[32:35], s101 offen {OPT['pfflag']}")
        a(f"s_add_u32 s101, s101, 3584")
    return 8

def ready_load(a):
    a("""
s_mov_b32 s40, s62
s_and_b32 s41, s63, 0xffff
s_mov_b32 s42, 256
s_mov_b32 s43, 0x20000
v_mov_b32 v250, 0
buffer_load_dword v251, v250, s[40:43], 0 offen sc1
""")

def signal_a(a, P):
    a("s_barrier")
    a(f"""
s_cmp_lg_u32 s3, 0
s_cbranch_scc1 {P}_siga_skip
s_mov_b32 s73, 0
s_mov_b64 exec, 1
{P}_rdy:
v_cmp_ne_u32 vcc, 0, v251
s_cmp_eq_u64 vcc, exec
s_cbranch_scc1 {P}_rdy_done
buffer_load_dword v251, v250, s[40:43], 0 offen sc1
s_add_u32 s73, s73, 1
s_waitcnt vmcnt(0)
s_cmp_lt_u32 s73, {SPIN_LIMIT}
s_cbranch_scc1 {P}_rdy
{P}_rdy_done:
s_and_b32 s72, s2, 31
s_lshl_b32 s72, s72, 7
s_add_u32 s72, s72, {CNT_A}
v_mov_b32 v251, 1
buffer_atomic_add v251, v250, s[28:31], s72 offen sc1
s_mov_b64 exec, -1
{P}_siga_skip:
""")

def advance(a, soff, step, send, n):
    a(f"s_add_u32 s{soff}, s{soff}, {step}")
    if send is not None:
        a(f"s_cmp_eq_u32 s{soff}, s{send}")
        a(f"s_cselect_b32 s101, {n*step}, 0")
        a(f"s_sub_u32 s{soff}, s{soff}, s101")

class Stager:
    def __init__(self, a, nsteps, slots, vsrc, vtr, sbase, soff, pitch, rd_stride, srdn, flags, tag, send=None):
        self.a, self.n, self.slots = a, nsteps, slots
        self.send = send
        self.vsrc, self.vtr, self.sbase, self.soff, self.pitch = vsrc, vtr, sbase, soff, pitch
        self.rd_stride, self.srdn, self.flags, self.tag = rd_stride, srdn, flags, tag
        self.issued = 0
    def issue_lines(self):
        t = self.issued
        sl = t % self.slots
        self.issued += 1
        return [f"s_add_u32 m0, s{self.sbase}, {sl*2048}", "s_nop 0",
                f"buffer_load_dwordx4 v{self.vsrc}, s[{self.srdn}:{self.srdn+3}], s{self.soff} offen {self.flags} lds ; @def={self.tag}{t}",
                f"buffer_load_dwordx4 v{self.vsrc+1}, s[{self.srdn}:{self.srdn+3}], s{self.soff} offen offset:1024 {self.flags} lds ; @def={self.tag}{t}",
                f"s_add_u32 s{self.soff}, s{self.soff}, {16*self.pitch}"]
    def issue(self):
        self.a.ext(self.issue_lines())
    def read(self, t, dst=None):
        a = self.a; sl = t % self.slots
        for b in range(2):
            for rd in range(2):
                d = (8 * t if dst is None else dst) + 4 * b + 2 * rd
                if OPT["stvar"] == "vgpr":
                    a(f"ds_read_b64_tr_b16 v[{128+(d&63)}:{128+(d&63)+1}], v{self.vtr+b} offset:{sl*2048+rd*self.rd_stride}")
                elif OPT["stvar"] == "noread":
                    if b == 0 and rd == 0: a(f"ds_read_b64_tr_b16 a[{d}:{d+1}], v{self.vtr+b} offset:{sl*2048+rd*self.rd_stride}")
                else:
                    a(f"ds_read_b64_tr_b16 a[{d}:{d+1}], v{self.vtr+b} offset:{sl*2048+rd*self.rd_stride}")
    def drain(self, known=0):
        a = self.a
        for t in range(self.n):
            self.read(t)
            nxt = t - 1 + self.slots
            if t >= 1 and self.issued == nxt and nxt < self.n:
                a(f"waitdef {self.tag}r{t-1}")
                self.issue()
        while self.issued < self.n:
            raise AssertionError("ring too small")

def gemm1_setup(a):
    a(f"""
s_sub_u32 s44, s65, 4
s_and_b32 s66, s64, 1
s_lshl_b32 s66, s66, 2
s_and_b32 s45, s44, 3
s_add_u32 s66, s66, s45
s_lshr_b32 s67, s64, 1
s_mul_i32 s67, s67, 7
s_lshr_b32 s45, s44, 2
s_add_u32 s67, s67, s45
""")
    lane_dma_offsets(a, 224, 225, 3584)
    tr_addr(a, 226, 8)
    a(f"""
s_lshr_b32 s45, s3, 1
s_lshl_b32 s45, s45, 6
v_xor_b32 v226, s45, v226
s_mul_i32 s50, s3, {RING1}
v_add_u32 v226, s50, v226
v_xor_b32 v227, 64, v226
s_mul_i32 s51, s3, {512*3584}
s_lshl_b32 s52, s67, 7
s_add_u32 s51, s51, s52
""")
    srd(a, 24, 12, 2048 * 3584)

def reduce_addrs(a):
    a(f"""
v_lshlrev_b32 v8, 4, v1
s_xor_b32 s53, s3, 1
s_mul_i32 s53, s53, 12288
v_add_u32 v9, s53, v8
s_xor_b32 s53, s3, 2
s_mul_i32 s53, s53, 12288
s_add_u32 s53, s53, 4096
v_add_u32 v10, s53, v8
s_xor_b32 s53, s3, 3
s_mul_i32 s53, s53, 12288
s_add_u32 s53, s53, 8192
v_add_u32 v11, s53, v8
s_mul_i32 s53, s3, 12288
v_add_u32 v12, s53, v8
""")

def reduce_exchange(a, between):
    a("s_barrier")
    for b in (1, 2, 3):
        for g in range(4):
            r = ACC + 16 * b + 4 * g
            a(f"ds_write_b128 v{8+b}, v[{r}:{r+3}] offset:{1024*g}")
    a.ext(between)
    a("s_waitcnt lgkmcnt(0)")
    a("s_barrier")
    for b in range(3):
        for g in range(4):
            r = 128 + 16 * b + 4 * g
            a(f"ds_read_b128 v[{r}:{r+3}], v12 offset:{4096*b+1024*g}")
    for b in range(3):
        a(f"s_waitcnt lgkmcnt({8-4*b})")
        for k in range(8):
            r = 128 + 16 * b + 2 * k
            a(f"v_pk_add_f32 v[{ACC+2*k}:{ACC+2*k+1}], v[{ACC+2*k}:{ACC+2*k+1}], v[{r}:{r+1}]")

def w2_prefetch_setup(a):
    srd(a, 36, 16, 1792 * 4096)
    a(f"""
s_sub_u32 s57, s65, 4
s_lshl_b32 s57, s57, 2
s_add_u32 s57, s57, s3
s_lshl_b32 s57, s57, 16
s_lshl_b32 s53, s64, 9
s_add_u32 s57, s57, s53
v_lshrrev_b32 v2, 5, v1
v_lshlrev_b32 v2, 12, v2
v_and_b32 v3, 31, v1
v_lshlrev_b32 v3, 4, v3
v_add_u32 v2, v2, v3
""")
def w2_prefetch_one():
    return [f"buffer_load_dwordx4 v[24:27], v2, s[36:39], s57 offen {OPT['w2flag']}", "s_add_u32 s57, s57, 8192"]

def gemm1(a, P, st2):
    C1, C2 = K2.C1, K2.C2
    HD = OPT["hd"]
    assert HD <= 8
    a(";;AUTO_BEGIN")
    a(f"""
v_lshlrev_b32 v8, 4, v1
s_and_b32 s48, s3, 1
s_lshr_b32 s47, s3, 1
s_lshl_b32 s49, s48, 10
v_add_u32 v4, s49, v8
s_xor_b32 s49, s49, 1024
v_add_u32 v7, s49, v8
s_lshl_b32 s52, s66, 18
s_lshl_b32 s53, s3, 16
s_add_u32 s52, s52, s53
s_add_u32 s52, s52, {WS_H}
""")
    def hload(t):
        sl = t % HD
        for k in range(2):
            a(f"buffer_load_dwordx4 v[{128+8*sl+4*k}:{128+8*sl+4*k+3}], v{4 if k == 0 else 7}, s[28:31], s52 offen {OPT['ld']}")
        a("s_add_u32 s52, s52, 2048")
    for t in range(HD): hload(t)
    a(f"""
v_lshrrev_b32 v13, 5, v1
v_lshlrev_b32 v13, 3, v13
s_lshl_b32 s56, s67, 7
s_lshl_b32 s54, s47, 6
s_add_u32 s56, s56, s54
""")
    srd(a, 32, 14, 1792 * 2)
    for g in range(4):
        a(f"buffer_load_dwordx2 v[{16+2*g}:{17+2*g}], v13, s[32:35], s56 offen offset:{16*g}")
    phase3_ring_setup(a)
    phase3_setup(a)
    reduce_addrs(a)
    tail = []
    if OPT["w2pf"] == "tail":
        w2_prefetch_setup(a)
        tail = [w2_prefetch_one() for _ in range(8)]
    ml = p3_operand_loads()
    per = (len(ml) + 3) // 4
    for t in range(32):
        sl = t % HD
        nl = t + HD < 32
        for n, (bf, bd) in enumerate([(0, 0), (1, 0), (0, 1), (1, 1)]):
            acc = ACC + 16 * (2 * bf + bd)
            A = 8 * t + 4 * bf; B = 128 + 8 * sl + 4 * bd
            a(f"v_mfma_f32_32x32x16_bf16 v[{acc}:{acc+15}], a[{A}:{A+3}], v[{B}:{B+3}], " + ("0" if t == 0 else f"v[{acc}:{acc+15}]"))
            if nl and n in (1, 3):
                k = n >> 1
                a(f"buffer_load_dwordx4 v[{128+8*sl+4*k}:{128+8*sl+4*k+3}], v{4 if k == 0 else 7}, s[28:31], s52 offen {OPT['ld']}")
        if nl: a("s_add_u32 s52, s52, 2048")
        else:
            if t >= OPT["mlat"] and ml:
                a.ext(ml[:per]); ml = ml[per:]
            if t >= OPT["pfat"]:
                for _ in range(2):
                    if tail: a.ext(tail.pop(0))
    a.ext(ml)
    for x in tail: a.ext(x)
    stamp(a, 6)
    e = Asm()
    pre = []
    for g in range(4):
        for k in range(2):
            pre += [f"v_lshlrev_b32 v{32+4*g+2*k}, 16, v{16+2*g+k}", f"v_and_b32 v{33+4*g+2*k}, 0xffff0000, v{16+2*g+k}"]
    pre += [f"v_pk_add_f32 v[{ACC+2*k}:{ACC+2*k+1}], v[{ACC+2*k}:{ACC+2*k+1}], v[{32+2*k}:{33+2*k}]" for k in range(8)]
    pre += [f"v_mov_b32 v14, {f32(C1)}", f"v_mov_b32 v15, {f32(C1)}", f"v_mov_b32 v16, {f32(C2)}", f"v_mov_b32 v17, {f32(C2)}",
            "v_mov_b32 v18, 1.0", "v_mov_b32 v19, 1.0"]
    reduce_exchange(e, pre)
    pr = lambda b, k: f"v[{b+2*k}:{b+2*k+1}]"
    for k in range(8): e(f"v_pk_mul_f32 {pr(128,k)}, {pr(ACC,k)}, {pr(ACC,k)}")
    for k in range(8): e(f"v_pk_fma_f32 {pr(128,k)}, {pr(128,k)}, v[16:17], v[14:15]")
    for k in range(8): e(f"v_pk_mul_f32 {pr(128,k)}, {pr(128,k)}, {pr(ACC,k)}")
    for i in range(16): e(f"v_exp_f32 v{128+i}, v{128+i}")
    for k in range(8): e(f"v_pk_add_f32 {pr(128,k)}, {pr(128,k)}, v[18:19]")
    for i in range(16): e(f"v_rcp_f32 v{128+i}, v{128+i}")
    for k in range(8): e(f"v_pk_mul_f32 {pr(128,k)}, {pr(128,k)}, {pr(ACC,k)}")
    for k in range(8): e(f"v_cvt_pk_bf16_f32 v{144+k}, v{128+2*k}, v{129+2*k}")
    fill = []
    for _ in range(RING2_SLOTS): fill += st2.issue_lines()
    cut = int(len(e.lines) * OPT["sprinkle"]); c0 = int(len(e.lines) * OPT["spr0"])
    late = []
    if OPT["sprinkle"] <= OPT["spr0"]: late, fill = fill, []
    a.ext(e.lines[:c0] + (interleave(e.lines[c0:cut], fill) if fill else e.lines[c0:cut]) + e.lines[max(cut, c0):])
    a(f"""
s_mul_i32 s53, s66, 144
s_lshl_b32 s54, s67, 2
s_add_u32 s53, s53, s54
s_lshl_b32 s54, s47, 1
s_add_u32 s53, s53, s54
s_lshl_b32 s53, s53, 1
s_add_u32 s53, s53, s48
s_lshl_b32 s53, s53, 10
s_add_u32 s53, s53, {WS_G}
v_lshlrev_b32 v8, 4, v1
buffer_store_dwordx4 v[144:147], v8, s[28:31], s53 offen sc1
buffer_store_dwordx4 v[148:151], v8, s[28:31], s53 offen offset:2048 sc1
s_lshl_b32 s100, s66, 2
s_lshr_b32 s53, s64, 1
s_add_u32 s100, s100, s53
s_lshl_b32 s100, s100, 7
s_add_u32 s100, s100, {CNT_G}
s_waitcnt vmcnt(0)
""")
    a(";;AUTO_END")
    return late

def fft_tables(a, P):
    a(f"""
v_and_b32 v24, 31, v1
v_lshrrev_b32 v25, 5, v1
v_bfe_u32 v26, v24, 2, 1
v_lshlrev_b32 v26, 4, v26
v_lshrrev_b32 v27, 3, v24
v_lshlrev_b32 v27, 2, v27
v_add_u32 v26, v26, v27
v_and_b32 v27, 3, v24
v_add_u32 v26, v26, v27
v_lshlrev_b32 v33, 4, v1
""")
    def trio(idx_lane, slot0, step_hi, scale, off, stride):
        a(f"v_cvt_f32_u32 v35, {idx_lane}")
        a(f"v_mul_f32 v35, {f32(scale)}, v35")
        for j in range(8):
            a(f"v_add_u32 v30, {(j&3) + step_hi*(j>>2)}, {slot0}")
            a("v_cvt_f32_u32 v30, v30")
            a("v_mul_f32 v30, v30, v35")
            a("v_fract_f32 v30, v30")
            a(f"v_cos_f32 v{40+j}, v30")
            a(f"v_sin_f32 v{48+j}, v30")
        for j in range(4): a(f"v_cvt_pk_bf16_f32 v{36+j}, v{40+2*j}, v{41+2*j}")
        for j in range(4): a(f"v_cvt_pk_bf16_f32 v{56+j}, v{48+2*j}, v{49+2*j}")
        for j in range(4): a(f"v_cvt_pk_bf16_f32 v{60+j}, -v{48+2*j}, -v{49+2*j}")
        a(f"v_add_u32 v34, {off}, v33")
        a(f"ds_write_b128 v34, v[36:39]")
        a(f"ds_write_b128 v34, v[56:59] offset:{stride}")
        a(f"ds_write_b128 v34, v[60:63] offset:{2*stride}")
    a("s_mov_b32 s44, s3")
    a(f"{P}_t64:")
    a(f"""
s_lshr_b32 s45, s44, 1
s_and_b32 s46, s44, 1
s_lshl_b32 s46, s46, 5
v_add_u32 v28, s46, v24
s_lshl_b32 s46, s45, 4
v_lshlrev_b32 v29, 2, v25
v_add_u32 v29, s46, v29
s_lshl_b32 s47, s44, 10
s_add_u32 s47, s47, {F_TAB+TB_C64}
""")
    trio("v28", "v29", 8, 1 / 64, "s47", 8192)
    a("s_add_u32 s44, s44, 4")
    a("s_cmp_lt_u32 s44, 8")
    a(f"s_cbranch_scc1 {P}_t64")
    a(f"""
s_and_b32 s44, s3, 1
s_lshl_b32 s46, s44, 3
v_lshlrev_b32 v29, 4, v25
v_add_u32 v29, s46, v29
s_lshl_b32 s47, s44, 10
s_add_u32 s47, s47, {F_TAB+TB_C32}
""")
    trio("v26", "v29", 4, 1 / 32, "s47", 2048)
    a("s_mov_b32 s44, s3")
    a(f"{P}_tw:")
    a(f"""
s_lshr_b32 s45, s44, 3
s_and_b32 s46, s44, 7
s_lshl_b32 s47, s45, 5
v_add_u32 v28, s47, v24
v_lshlrev_b32 v29, 4, v25
s_lshl_b32 s48, s46, 1
v_add_u32 v29, s48, v29
v_add_u32 v30, 1, v29
v_mul_u32_u24 v29, v29, v28
v_mul_u32_u24 v30, v30, v28
s_lshr_b32 s48, s46, 1
s_lshl_b32 s48, s48, 3
s_add_u32 s47, s47, s48
s_and_b32 s48, s46, 1
s_lshl_b32 s48, s48, 1
s_add_u32 s47, s47, s48
v_lshlrev_b32 v31, 2, v25
v_add_u32 v31, s47, v31
v_add_u32 v32, 1, v31
v_mul_u32_u24 v31, v31, v26
v_mul_u32_u24 v32, v32, v26
v_cvt_f32_u32 v29, v29
v_cvt_f32_u32 v30, v30
v_cvt_f32_u32 v31, v31
v_cvt_f32_u32 v32, v32
v_mul_f32 v29, {f32(1/2048)}, v29
v_mul_f32 v30, {f32(1/2048)}, v30
v_mul_f32 v31, {f32(1/2048)}, v31
v_mul_f32 v32, {f32(1/2048)}, v32
v_cos_f32 v36, v29
v_cos_f32 v37, v30
v_sin_f32 v38, v29
v_sin_f32 v39, v30
v_cos_f32 v40, v31
v_cos_f32 v41, v32
v_sin_f32 v42, v31
v_sin_f32 v43, v32
v_mul_f32 v40, {f32(2.0**-20)}, v40
v_mul_f32 v41, {f32(2.0**-20)}, v41
v_mul_f32 v42, {f32(2.0**-20)}, v42
v_mul_f32 v43, {f32(2.0**-20)}, v43
s_lshl_b32 s47, s44, 10
v_add_u32 v34, s47, v33
ds_write_b128 v34, v[36:39] offset:{F_TW1}
ds_write_b128 v34, v[40:43] offset:{F_TW2}
s_add_u32 s44, s44, 4
s_cmp_lt_u32 s44, 16
s_cbranch_scc1 {P}_tw
s_waitcnt lgkmcnt(0)
""")

F_TW1, F_TW2, F_ZST = 0, 16384, 32768
F_TAB = 49152
F_COL = 98304
A_C64, A_S64, A_N64 = 0, 32, 64
A_K32 = 96
A_Y = (120, 152)
A_W = 184
F_ACC = 64
F_PK = 192
F_TW = 8
F_WB = 24
F_TMP = 56
COLBASE = F_COL
UNITS = [(0, 0), (1, 0), (0, 1), (1, 1)]

def fft_load_constants(a):
    a("v_lshlrev_b32 v2, 4, v1")
    a(f"v_add_u32 v3, {F_TAB}, v2")
    for u in range(4):
        for T in range(2):
            k = 2 * u + T
            for base, off in ((A_C64, TB_C64), (A_S64, TB_S64), (A_N64, TB_N64)):
                a(f"ds_read_b128 a[{base+4*k}:{base+4*k+3}], v3 offset:{off+1024*k}")
            a("s_waitcnt lgkmcnt(6)")
    for u in range(2):
        for n, off in enumerate((TB_C32, TB_S32, TB_N32)):
            a(f"ds_read_b128 a[{A_K32+12*u+4*n}:{A_K32+12*u+4*n+3}], v3 offset:{off+1024*u}")
    a("s_waitcnt lgkmcnt(0)")

def mfx(d, x, y, first):
    return f"v_mfma_f32_32x32x16_bf16 v[{d}:{d+15}], {x}, {y}, " + ("0" if first else f"v[{d}:{d+15}]")
def ar(b): return f"a[{b}:{b+3}]"
def vr4(b): return f"v[{b}:{b+3}]"

def u_acc(n): return F_ACC + 32 * n, F_ACC + 32 * n + 16
def u_pk(n): return F_PK + 16 * n, F_PK + 16 * n + 8

def m_f1(n):
    c, T = UNITS[n]; re, im = u_acc(n); o = []
    for u in range(4):
        k = 2 * u + T
        yr, yi = ar(A_Y[c] + 4 * u), ar(A_Y[c] + 16 + 4 * u)
        C, S, N = ar(A_C64 + 4 * k), ar(A_S64 + 4 * k), ar(A_N64 + 4 * k)
        o += [mfx(re, yr, C, u == 0), mfx(im, yi, C, u == 0), mfx(re, yi, S, False), mfx(im, yr, N, False)]
    return o
def m_f2(n):
    re, im = u_acc(n); pr, pi = u_pk(n); o = []
    for u in range(2):
        C, S, N = ar(A_K32 + 12 * u), ar(A_K32 + 12 * u + 4), ar(A_K32 + 12 * u + 8)
        o += [mfx(re, C, vr4(pr + 4 * u), u == 0), mfx(im, C, vr4(pi + 4 * u), u == 0),
              mfx(re, S, vr4(pi + 4 * u), False), mfx(im, N, vr4(pr + 4 * u), False)]
    return o
def m_i1(n):
    re, im = u_acc(n); pr, pi = u_pk(n); o = []
    for u in range(2):
        C, S, N = ar(A_K32 + 12 * u), ar(A_K32 + 12 * u + 4), ar(A_K32 + 12 * u + 8)
        o += [mfx(re, vr4(pr + 4 * u), C, u == 0), mfx(im, vr4(pi + 4 * u), C, u == 0),
              mfx(re, vr4(pi + 4 * u), N, False), mfx(im, vr4(pr + 4 * u), S, False)]
    return o
def m_i2(c, T2, us):
    re, im = u_acc(UNITS.index((c, T2))); o = []
    for u in us:
        src = UNITS.index((c, u >> 1)); pr, pi = u_pk(src)
        rr, ri = vr4(pr + 4 * (u & 1)), vr4(pi + 4 * (u & 1))
        k = 2 * u + T2
        C, S, N = ar(A_C64 + 4 * k), ar(A_S64 + 4 * k), ar(A_N64 + 4 * k)
        o += [mfx(re, rr, C, u == 0), mfx(im, ri, C, u == 0), mfx(re, ri, N, False), mfx(im, rr, S, False)]
    return o

def v_tw(T, table, conj):
    o = []
    rd = lambda e: f"ds_read_b128 v[{F_TW+4*(e&3)}:{F_TW+4*(e&3)+3}], v2 offset:{table + (T*8+e)*1024}"
    o += [rd(0), rd(1), rd(2)]
    for e in range(8):
        if e + 3 < 8: o.append(rd(e + 3))
        c0 = F_TW + 4 * (e & 3)
        for c in range(2):
            n = UNITS.index((c, T)); re, im = u_acc(n); pr, pi = u_pk(n)
            t = F_TMP + 4 * c
            o += K2.zip2(K2.cmul(re + 2 * e, im + 2 * e, c0, c0 + 2, t, conj), K2.cmul(re + 2 * e + 1, im + 2 * e + 1, c0 + 1, c0 + 3, t + 2, conj))
            o += [f"v_cvt_pk_bf16_f32 v{pr+e}, v{t}, v{t+2}", f"v_cvt_pk_bf16_f32 v{pi+e}, v{t+1}, v{t+3}"]
    return o

def v_wm(n):
    re, im = u_acc(n); pr, pi = u_pk(n); wb = F_WB + 16 * (n & 1); o = []
    for e in range(8):
        w0, w1 = wb + 2 * e, wb + 2 * e + 1
        t = F_TMP + 4 * (e & 1); u_ = F_TW + 4 * (e & 1)
        if n >= 2:
            w0, w1 = F_TW + 8 + 2 * (e & 1), F_TW + 9 + 2 * (e & 1)
            o += [f"v_accvgpr_read_b32 v{w0}, a{A_W+16*(n-2)+2*e}", f"v_accvgpr_read_b32 v{w1}, a{A_W+16*(n-2)+2*e+1}"]
        o += [f"v_lshlrev_b32 v{u_}, 16, v{w0}", f"v_and_b32 v{u_+1}, 0xffff0000, v{w0}",
              f"v_lshlrev_b32 v{u_+2}, 16, v{w1}", f"v_and_b32 v{u_+3}, 0xffff0000, v{w1}"]
        o += K2.zip2(K2.cmul(re + 2 * e, im + 2 * e, u_, u_ + 1, t, True), K2.cmul(re + 2 * e + 1, im + 2 * e + 1, u_ + 2, u_ + 3, t + 2, True))
        o += [f"v_cvt_pk_bf16_f32 v{pr+e}, v{t}, v{t+2}", f"v_cvt_pk_bf16_f32 v{pi+e}, v{t+1}, v{t+3}"]
    return o

ZP = 80
ZTILE = 32 * ZP
def v_out_w(c, T2, buf):
    n = UNITS.index((c, T2)); o = []
    for part in range(2):
        src = F_ACC + 32 * n + 16 * part
        t = F_TW + 8 * part
        slot = ZTILE * (2 * buf + part)
        o += [f"v_cvt_pk_bf16_f32 v{t+k}, v{src+2*k}, v{src+2*k+1}" for k in range(8)]
        o += [f"ds_write_b128 v5, v[{t}:{t+3}] offset:{slot} ; @def=zo{n}{part}", f"ds_write_b128 v5, v[{t+4}:{t+7}] offset:{slot+16} ; @def=zo{n}{part}"]
    return o
def v_out_r(c, T2, buf):
    n = UNITS.index((c, T2)); o = []
    for part in range(2):
        src = F_ACC + 32 * n + 16 * part
        slot = ZTILE * (2 * buf + part)
        o += [f"ds_read_b128 v[{src}:{src+3}], v6 offset:{slot} ; @use=zo{n}{part}", f"ds_read_b128 v[{src+4}:{src+7}], v6 offset:{slot+16*ZP} ; @use=zo{n}{part}"]
    st = []
    for part in range(2):
        src = F_ACC + 32 * n + 16 * part
        so = 48 + 2 * c + part
        st += [f"buffer_store_dwordx4 v[{src}:{src+3}], v2, s[28:31], s{so} offen offset:{2048*T2} sc1",
               f"buffer_store_dwordx4 v[{src+4}:{src+7}], v2, s[28:31], s{so} offen offset:{2048*T2+1024} sc1"]
    return o, st

def fft_columns(a, P, stf):
    a(";;AUTO_BEGIN")
    a(f"""
s_lshl_b32 s43, s64, 2
s_add_u32 s43, s43, s65
s_lshl_b32 s44, s43, 3
s_add_u32 s44, s44, s3
v_lshlrev_b32 v2, 4, v1
s_lshl_b32 s45, s44, 13
s_add_u32 s47, s45, {WS_WT}
s_add_u32 s48, s45, {WS_ZT}
s_add_u32 s49, s48, 4096
s_add_u32 s50, s48, {4*8192}
s_add_u32 s51, s50, 4096
s_lshl_b32 s46, s43, 8
s_lshl_b32 s52, s3, 19
s_add_u32 s46, s46, s52
s_add_u32 s46, s46, {WS_YT}
s_lshl_b32 s52, s3, 14
s_add_u32 s53, s52, {COLBASE}
v_lshrrev_b32 v8, 4, v1
v_and_b32 v9, 15, v1
v_lshlrev_b32 v10, 13, v8
""")
    for m in range(4):
        a(f"v_add_u32 v11, {4*m}, v8")
        a(f"v_xor_b32 v11, v11, v9")
        a(f"v_lshlrev_b32 v11, 4, v11")
        a(f"v_add_u32 v{20+m}, v10, v11")
    for k in range(16):
        a(f"s_add_u32 m0, s53, {1024*k}")
        a(f"s_nop 0")
        a(f"buffer_load_dwordx4 v{20+(k&3)}, s[28:31], s46 offen {OPT['ld']} lds ; @def=col")
        a(f"s_add_u32 s46, s46, {4*8192}")
    def wload(n):
        c, T = UNITS[n]; wb = F_WB + 16 * (n & 1)
        o = [f"s_add_u32 s54, s47, {c*4*8192 + T*4096}"]
        if n < 2: o += [f"buffer_load_dwordx4 v[{wb+4*k}:{wb+4*k+3}], v2, s[28:31], s54 offen offset:{1024*k} {OPT['ld']}" for k in range(4)]
        else: o += [f"buffer_load_dwordx4 a[{A_W+16*(n-2)+4*k}:{A_W+16*(n-2)+4*k+3}], v2, s[28:31], s54 offen offset:{1024*k} {OPT['ld']}" for k in range(4)]
        return o
    a(f"""
v_lshrrev_b32 v8, 5, v1
v_lshlrev_b32 v8, 2, v8
v_bfe_u32 v9, v1, 2, 2
v_add_u32 v8, v8, v9
v_lshlrev_b32 v8, 2, v8
v_and_b32 v10, 1, v1
v_lshlrev_b32 v10, 1, v10
v_bfe_u32 v11, v1, 4, 1
v_add_u32 v10, v10, v11
v_add_u32 v8, v8, v10
v_lshlrev_b32 v8, 8, v8
v_lshlrev_b32 v9, 2, v9
v_add_u32 v9, v9, v10
s_lshl_b32 s52, s3, 1
v_xor_b32 v9, s52, v9
v_lshlrev_b32 v9, 4, v9
v_add_u32 v8, v8, v9
v_bfe_u32 v9, v1, 1, 1
v_lshlrev_b32 v9, 3, v9
v_add_u32 v8, v8, v9
v_add_u32 v3, {COLBASE}, v8
v_xor_b32 v5, 16, v3
v_xor_b32 v6, 128, v3
v_xor_b32 v7, 144, v3
v_and_b32 v8, 31, v1
v_lshlrev_b32 v8, 6, v8
v_lshrrev_b32 v9, 5, v1
v_lshlrev_b32 v9, 5, v9
v_add_u32 v4, v8, v9
""")
    a("waitdef col")
    a("s_barrier")
    stamp(a, 6)
    def yreads(c):
        o = []
        for u in range(4):
            for part in range(2):
                v = (3, 5, 6, 7)[2 * c + part]
                for rd in range(2):
                    d = A_Y[c] + 16 * part + 4 * u + 2 * rd
                    o.append(f"ds_read_b64_tr_b16 a[{d}:{d+1}], v{v} offset:{16384*u+8192*rd}")
        return o
    a.ext(yreads(0))
    a.ext(interleave(m_f1(0), yreads(1) + wload(0)))
    a.ext(interleave(m_f1(1), wload(1) + wload(2) + wload(3)))
    a("s_waitcnt lgkmcnt(0)")
    a("s_barrier")
    a(f"""
s_mul_i32 s52, s3, {4*ZTILE}
v_and_b32 v8, 31, v1
v_mul_u32_u24 v8, {ZP}, v8
v_lshrrev_b32 v9, 5, v1
v_lshlrev_b32 v9, 5, v9
v_add_u32 v8, v8, v9
v_add_u32 v5, s52, v8
v_lshrrev_b32 v8, 2, v1
v_mul_u32_u24 v8, {ZP}, v8
v_and_b32 v9, 3, v1
v_lshlrev_b32 v9, 4, v9
v_add_u32 v8, v8, v9
v_add_u32 v6, s52, v8
""")
    if OPT["fst"]: stamp(a, 8)
    a.ext(interleave(m_f1(2) + m_f1(3), v_tw(0, F_TW1, False), start=1))
    a.ext(interleave(m_f2(0) + m_f2(1), v_tw(1, F_TW1, False)))
    a.ext(interleave(m_f2(2) + m_f2(3), v_wm(0) + v_wm(1)))
    if OPT["fst"]: stamp(a, 9)
    a.ext(interleave(m_i1(0) + m_i1(1), v_wm(2) + v_wm(3)))
    phase3_ring_setup(a)
    fill = []
    for _ in range(OPT["fdma"]): fill += [stf.issue_lines()]
    n7 = int(len(fill) * OPT["fd7"]); n8 = int(len(fill) * OPT["fd8"])
    flat = lambda x: [l for y in x for l in y]
    def sprinkle(lst, groups):
        if not groups: return lst
        out = []; k = 0
        for j, l in enumerate(lst):
            out.append(l)
            while k < len(groups) and (k + 1) * len(lst) <= (j + 1) * (len(groups) + 1):
                out += groups[k]; k += 1
        return out + flat(groups[k:])
    a.ext(sprinkle(interleave(m_i1(2) + m_i1(3), v_tw(0, F_TW2, True)), fill[:n7]))
    a.ext(sprinkle(interleave(m_i2(0, 0, (0, 1)) + m_i2(1, 0, (0, 1)), v_tw(1, F_TW2, True)), fill[n7:n7 + n8]))
    fill = fill[n7 + n8:]
    if OPT["fst"]: stamp(a, 10)
    a("s_waitcnt lgkmcnt(0)")
    a("s_barrier")
    rA0, sA0 = v_out_r(0, 0, 0); rB0, sB0 = v_out_r(1, 0, 1); rA1, sA1 = v_out_r(0, 1, 0); rB1, sB1 = v_out_r(1, 1, 1)
    seq = []
    seq += m_i2(0, 0, (2, 3)) + m_i2(1, 0, (2, 3))
    seq += interleave(m_i2(0, 1, range(4)), v_out_w(0, 0, 0) + v_out_w(1, 0, 1), start=2)
    seq += interleave(m_i2(1, 1, range(4)), rA0 + rB0 + sA0 + sB0 + v_out_w(0, 1, 0), start=1)
    a.ext(sprinkle(seq, fill))
    if OPT["fst"]: stamp(a, 11)
    a.ext(rA1 + v_out_w(1, 1, 1) + sA1 + rB1 + sB1)
    if OPT["ffilt"]:
        k0 = max(k for k, l in enumerate(a.lines) if "s_barrier" in l)
        keep = []
        for l in a.lines[k0:]:
            t = l.strip()
            if "v" in OPT["ffilt"] and t.startswith("v_") and not t.startswith("v_mfma"): continue
            if "m" in OPT["ffilt"] and t.startswith("v_mfma"): continue
            if "d" in OPT["ffilt"] and t.startswith("ds_read"): continue
            if "s" in OPT["ffilt"] and t.startswith("buffer_store"): continue
            keep.append(l)
        a.lines[k0:] = keep
    a(f"""
s_lshl_b32 s72, s64, 7
s_add_u32 s72, s72, {CNT_Z}
""")
    a(";;AUTO_END")

MREG = 192
XREG = 50
def gring(k): return 128 + 8 * k

def phase3_ring_setup(a):
    a(f"""
s_and_b32 s68, s65, 7
s_lshl_b32 s69, s64, 2
s_lshr_b32 s44, s65, 3
s_add_u32 s69, s69, s44
v_lshrrev_b32 v24, 3, v1
v_and_b32 v25, 7, v1
v_bfe_u32 v26, v1, 4, 1
v_lshlrev_b32 v26, 2, v26
v_xor_b32 v25, v25, v26
v_lshlrev_b32 v25, 4, v25
v_lshlrev_b32 v24, 12, v24
v_add_u32 v28, v24, v25
v_add_u32 v29, {8*4096-1024}, v28
v_lshrrev_b32 v24, 5, v1
v_lshlrev_b32 v24, 9, v24
v_bfe_u32 v25, v1, 2, 2
v_lshlrev_b32 v25, 7, v25
v_add_u32 v24, v24, v25
v_bfe_u32 v25, v1, 4, 1
v_lshlrev_b32 v25, 5, v25
v_add_u32 v24, v24, v25
v_and_b32 v25, 3, v1
v_lshlrev_b32 v25, 3, v25
v_add_u32 v24, v24, v25
v_bfe_u32 v25, v1, 3, 1
v_lshlrev_b32 v25, 6, v25
v_xor_b32 v30, v24, v25
s_and_b32 s45, s3, 1
s_lshl_b32 s44, s45, 6
v_xor_b32 v30, s44, v30
s_mul_i32 s98, s3, {RING2_SLOTS*2048}
s_add_u32 s98, s98, {RING2_BASE}
v_add_u32 v30, s98, v30
v_xor_b32 v31, 64, v30
s_mul_i32 s99, s3, {28*16*4096}
s_lshl_b32 s44, s69, 7
s_add_u32 s99, s99, s44
""")
    srd(a, 24, 16, 1792 * 4096)

def phase3_setup(a):
    a(f"""
s_and_b32 s45, s3, 1
s_lshr_b32 s46, s3, 1
s_lshl_b32 s44, s69, 7
s_lshl_b32 s51, s3, 19
s_add_u32 s51, s51, s44
s_add_u32 s51, s51, {WS_ZT}
v_lshlrev_b32 v8, 4, v1
s_lshl_b32 s44, s46, 10
v_add_u32 v48, s44, v8
s_xor_b32 s44, s44, 1024
v_add_u32 v49, s44, v8
s_mul_i32 s44, s68, 144
s_lshl_b32 s97, s3, 3
s_add_u32 s97, s97, s44
s_add_u32 s97, s97, 112
s_lshl_b32 s97, s97, 11
s_add_u32 s97, s97, {WS_G}
s_mul_i32 s55, s3, 28
s_add_u32 s55, s55, s44
s_lshl_b32 s55, s55, 11
s_add_u32 s55, s55, {WS_G}
v_and_b32 v61, 31, v1
v_lshlrev_b32 v9, 10, v61
v_lshrrev_b32 v10, 5, v1
v_lshlrev_b32 v10, 5, v10
v_add_u32 v60, v9, v10
s_lshl_b32 s58, s69, 1
s_add_u32 s58, s58, s45
s_lshl_b32 s59, s58, 15
s_lshl_b32 s44, s68, 1
s_add_u32 s44, s44, s46
s_lshl_b32 s44, s44, 6
s_add_u32 s59, s59, s44
s_lshl_b32 s58, s58, 6
v_lshlrev_b32 v61, 1, v61
""")
    srd(a, 40, 4, 2048 * 1024)

def p3_operand_loads():
    o = []
    o += [f"buffer_load_dwordx4 v[{XREG}:{XREG+3}], v60, s[40:43], s59 offen",
          f"buffer_load_dwordx4 v[{XREG+4}:{XREG+7}], v60, s[40:43], s59 offen offset:16",
          "s_mov_b32 s32, s18", "s_and_b32 s33, s19, 0xffff", "s_mov_b32 s34, 4096", "s_mov_b32 s35, 0x20000",
          f"buffer_load_ushort v{XREG+8}, v61, s[32:35], s58 offen"]
    return o

MST = 0
def m_gen():
    S, R, T = 8, 24, 36
    o = []
    o += ["v_and_b32 v36, 31, v1", "v_bfe_u32 v37, v36, 2, 1", "v_lshlrev_b32 v37, 4, v37", "v_lshrrev_b32 v38, 3, v36",
          "v_lshlrev_b32 v38, 2, v38", "v_add_u32 v37, v37, v38", "v_and_b32 v38, 3, v36", "v_add_u32 v37, v37, v38",
          "s_lshl_b32 s44, s68, 6", "v_add_u32 v37, s44, v37",
          "s_lshr_b32 s45, s3, 1", "s_lshl_b32 s46, s45, 5", "v_add_u32 v38, s46, v37",
          "s_xor_b32 s46, s46, 32", "v_add_u32 v39, s46, v37",
          "v_lshrrev_b32 v40, 5, v1", "v_lshlrev_b32 v40, 1, v40", "s_lshl_b32 s46, s3, 6", "v_add_u32 v40, s46, v40"]
    for bd in range(2):
        d = 38 + bd
        o += [f"v_and_b32 v41, 63, v{d}", "v_cvt_f32_u32 v41, v41", f"v_mul_f32 v41, {f32(1/64)}, v41",
              f"v_cos_f32 v{R+2*bd}, v41", f"v_sin_f32 v{R+2*bd+1}, v41"]
        for jj, dc in enumerate((0, 1, 4, 5)):
            c, sn = S + 8 * bd + 2 * jj, S + 8 * bd + 2 * jj + 1
            o += [f"v_add_u32 v41, {dc}, v40", f"v_mul_u32_u24 v41, v41, v{d}", "v_and_b32 v41, 0x1ff, v41", "v_cvt_f32_u32 v41, v41",
                  f"v_mul_f32 v41, {f32(1/512)}, v41", f"v_cos_f32 v{c}, v41", f"v_sin_f32 v{sn}, v41",
                  f"v_add_f32 v{c}, v{c}, v{c}", f"v_add_f32 v{sn}, v{sn}, v{sn}"]
    o += ["s_cmp_eq_u32 s3, 0\ns_cselect_b32 s46, -1, 0", "s_mov_b32 s47, 0"]
    for bd in range(2):
        o += [f"v_and_b32 v41, 1, v{38+bd}", f"v_lshlrev_b32 v41, 15, v41", f"v_or_b32 v{42+bd}, 0x3f80, v41"]
    for j in range(8):
        for bd in range(2):
            for jj in range(4):
                c, sn = S + 8 * bd + 2 * jj, S + 8 * bd + 2 * jj + 1
                dst = MREG + 8 * j + 4 * bd + jj
                o.append(f"v_cvt_pk_bf16_f32 v{dst}, v{c}, -v{sn}")
                if j == 0 and jj == 0: o.append(f"v_cndmask_b32 v{dst}, v{dst}, v{42+bd}, s[46:47]")
                if j < 7:
                    t = T + 2 * (jj & 1)
                    rc, rs = R + 2 * bd, R + 2 * bd + 1
                    o += [f"v_mul_f32 v{t}, v{sn}, v{rs}", f"v_mul_f32 v{t+1}, v{c}, v{rs}",
                          f"v_fma_f32 v{c}, v{c}, v{rc}, -v{t}", f"v_fma_f32 v{sn}, v{sn}, v{rc}, v{t+1}"]
    return o

def phase3(a, P, st, role):
    GD = OPT["gd"]
    ZAT = OPT['zat'] if role == 'g' else OPT['zatf']
    LD3 = OPT['ld'] if OPT['ld3'] is None else OPT['ld3']
    P = P + role
    assert GD <= 8
    a(";;AUTO_BEGIN")
    a(f"""
s_lshl_b32 s74, s68, 9
s_add_u32 s74, s74, {CNT_G}
v_lshlrev_b32 v32, 7, v1
v_mov_b32 v33, 7
s_mov_b32 exec_lo, 0xf
s_mov_b32 exec_hi, 0
buffer_load_dword v34, v32, s[28:31], s74 offen sc1
s_mov_b64 exec, -1
""")
    n1 = RING2_SLOTS
    def gload(t):
        r = gring(t % GD)
        for k in range(2):
            a(f"buffer_load_dwordx4 v[{r+4*k}:{r+4*k+3}], v{48+k}, s[28:31], s55 offen {LD3}")
        a("s_add_u32 s55, s55, 2048")
    if role == "g":
        for t in range(n1):
            st.read(t)
            if t >= 1:
                a(f"waitdef {st.tag}r{t-1}"); st.issue()
        a(f"waitdef {st.tag}r{n1-1}"); st.issue()
        assert st.issued == 28
    else:
        while st.issued < n1: st.issue()
    def check(name, nl, vaddr, vtgt, vval, soff):
        a("s_mov_b32 s73, 0")
        a(f"v_mov_b32 v35, v{vval}")
        a(";;AUTO_END")
        a(f"""
s_mov_b32 exec_lo, {hex((1 << nl) - 1)}
s_mov_b32 exec_hi, 0
{name}_l:
v_cmp_ge_u32 vcc, v35, v{vtgt}
s_cmp_eq_u64 vcc, exec
s_cbranch_scc1 {name}_d
buffer_load_dword v35, v{vaddr}, s[28:31], {soff} offen sc1
s_add_u32 s73, s73, 1
s_waitcnt vmcnt(0)
s_cmp_lt_u32 s73, {SPIN_LIMIT}
s_cbranch_scc1 {name}_l
{name}_d:
s_mov_b64 exec, -1
""")
        a(";;AUTO_RESUME")
    mg_all = m_gen() if not OPT['mgoff'] else []
    LD3 = OPT['ld'] if OPT['ld3'] is None else OPT['ld3']
    if role == "g" and OPT["mgpre"]:
        k = int(len(mg_all) * OPT["mgpre"]); a.ext(mg_all[:k]); mg_all = mg_all[k:]
    stamp(a, 8)
    check(f"{P}_gc", 4, 32, 33, 34, "s74")
    stamp(a, 9)
    for t in range(GD): gload(t)
    if role == "f":
        for t in range(n1): st.read(t)
    def zdma(j):
        a(f"s_add_u32 m0, s98, {j*2048}")
        a("s_nop 0")
        a(f"buffer_load_dwordx4 v28, s[28:31], s51 offen {OPT['ld']} lds ; @def=z{j}")
        a(f"buffer_load_dwordx4 v29, s[28:31], s51 offen offset:1024 {OPT['ld']} lds ; @def=z{j}")
        a(f"s_add_u32 s51, s51, {16*4096}")
    def zread(j):
        for b in range(2):
            for rd in range(2):
                d = 224 + 8 * (j & 3) + 4 * b + 2 * rd
                a(f"ds_read_b64_tr_b16 a[{d}:{d+1}], v{30+b} offset:{j*2048+rd*1024}")
    order = [(0, 0), (0, 1), (1, 0), (1, 1)]
    ml = p3_operand_loads() if role == "f" else []
    mg = mg_all
    per_m = OPT['perm']
    LEAD = 3
    nz = 0
    for t in range(28):
        if n1 <= t + LEAD < 28: st.read(t + LEAD)
        r = gring(t % GD)
        nl = t + GD < 28
        for n, (bd, bs) in enumerate(order):
            acc = ACC + 16 * (2 * bd + bs)
            a(f"v_mfma_f32_32x32x16_bf16 v[{acc}:{acc+15}], v[{r+4*bd}:{r+4*bd+3}], a[{8*t+4*bs}:{8*t+4*bs+3}], " + ("0" if t == 0 else f"v[{acc}:{acc+15}]"))
            if nl and n in (1, 3):
                k = n >> 1
                a(f"buffer_load_dwordx4 v[{r+4*k}:{r+4*k+3}], v{48+k}, s[28:31], s55 offen {LD3}")
            a.ext(mg[:per_m]); del mg[:per_m]
        if nl: a("s_add_u32 s55, s55, 2048")
        if role == "f" and st.issued < 28:
            a(f"waitdef {st.tag}r{st.issued - n1}"); st.issue()
        if t == ZAT - 7:
            a(f"""
v_mov_b32 v33, 4
s_mov_b32 s72, {CNT_Z}
s_mov_b32 exec_lo, 0xff
s_mov_b32 exec_hi, 0
buffer_load_dword v34, v32, s[28:31], s72 offen sc1
s_mov_b64 exec, -1
""")
        if t == ZAT - 1: check(f"{P}_zc", 8, 32, 33, 34, "s72")
        if t >= ZAT and nz < 8 and n1 + nz <= t + LEAD - 1:
            a(f"waitdef {st.tag}r{n1+nz}")
            zdma(nz); nz += 1
        if ml and t >= 20:
            k = (len(ml) + (27 - t)) // (28 - t)
            a.ext(ml[:k]); ml = ml[k:]
        if t >= 24 and t - 24 < nz: zread(t - 24)
    while nz < 8:
        zdma(nz); nz += 1
    a.ext(ml)
    def needs(j):
        last = -1
        for k, l in enumerate(mg):
            for m in re.finditer(r"v_(?:cvt_pk_bf16_f32|cndmask_b32) v(\d+),", l):
                r = int(m.group(1))
                if MREG <= r < MREG + 8 * (j + 1): last = k
        return last + 1
    for j in range(8):
        k = needs(j); a.ext(mg[:k]); del mg[:k]
        for (bd, bs) in order:
            acc = ACC + 16 * (2 * bd + bs)
            B = 224 + 8 * (j & 3) + 4 * bs
            a(f"v_mfma_f32_32x32x16_bf16 v[{acc}:{acc+15}], v[{MREG+8*j+4*bd}:{MREG+8*j+4*bd+3}], a[{B}:{B+3}], v[{acc}:{acc+15}]")
            a.ext(mg[:per_m]); del mg[:per_m]
        if j + 4 < 8: zread(j + 4)
    a.ext(mg)
    stamp(a, 10)
    reduce_addrs(a)
    pre = []
    for k in range(8):
        pre += [f"v_lshlrev_b32 v{32+2*k}, 16, v{XREG+k}", f"v_and_b32 v{33+2*k}, 0xffff0000, v{XREG+k}"]
    pre += [f"v_lshlrev_b32 v{XREG+9}, 16, v{XREG+8}", f"v_lshlrev_b32 v{XREG+8}, 16, v{XREG+8}"]
    pre += [f"v_pk_add_f32 v[{ACC+2*k}:{ACC+2*k+1}], v[{ACC+2*k}:{ACC+2*k+1}], v[{32+2*k}:{33+2*k}]" for k in range(8)]
    pre += [f"v_pk_add_f32 v[{ACC+2*k}:{ACC+2*k+1}], v[{ACC+2*k}:{ACC+2*k+1}], v[{XREG+8}:{XREG+9}]" for k in range(8)]
    srd(a, 40, 22, 2048 * 1024)
    reduce_exchange(a, pre)
    for k in range(8): a(f"v_cvt_pk_bf16_f32 v{16+k}, v{ACC+2*k}, v{ACC+2*k+1}")
    a("buffer_store_dwordx4 v[16:19], v60, s[40:43], s59 offen")
    a("buffer_store_dwordx4 v[20:23], v60, s[40:43], s59 offen offset:16")
    a(";;AUTO_END")

def gen_fused(name="parallel_sum__spectral_gfnet__mixer_token_mlp__prompt_kernel"):
    a = Asm(); P = "fz"
    a(f"{P}_start:")
    stamp(a, 0)
    a(f"""
s_load_dwordx16 s[4:19], s[0:1], 0
s_load_dwordx2 s[20:21], s[0:1], 80
s_load_dwordx2 s[22:23], s[0:1], 64
s_load_dwordx2 s[62:63], s[0:1], 72
s_cmp_ge_u32 s2, 256
s_cbranch_scc1 {P}_done
v_lshrrev_b32 v2, 6, v0
v_and_b32 v1, 63, v0
v_readfirstlane_b32 s3, v2
s_and_b32 s64, s2, 7
s_lshr_b32 s65, s2, 3
""")
    phase1(a, P)
    ready_load(a)
    srd(a, 32, 12, 2048 * 3584)
    npf2 = phase1_tail(a)
    a(f"s_cmp_lt_u32 s65, 4")
    a(f"s_cbranch_scc1 {P}_fft")
    gemm1_setup(a)
    a(";;AUTO_BEGIN")
    st1 = Stager(a, 32, RING1_SLOTS, 224, 226, 50, 51, 3584, 512, 24, "", "w")
    NPRE = OPT['npre']
    for _ in range(NPRE): st1.issue()
    a(f"s_waitcnt vmcnt({2*NPRE + npf2})")
    a(";;AUTO_END")
    signal_a(a, P + "g")
    stamp(a, 4)
    a(";;AUTO_BEGIN")
    for t in range(NPRE):
        a(f";;AUTO_INJECT w{t}"); a(f";;AUTO_INJECT w{t}")
    while st1.issued < RING1_SLOTS: st1.issue()
    stamp(a, 12)
    st1.drain()
    if OPT["w2pf"] == "stage":
        w2_prefetch_setup(a)
        for _ in range(8): a.ext(w2_prefetch_one())
    a("s_waitcnt lgkmcnt(0)")
    a(";;AUTO_END")
    stamp(a, 13)
    poll(a, f"{P}_pa", 32, CNT_A, 8)
    stamp(a, 5)
    if OPT["stop"] == "p1": a(f"s_branch {P}_end")
    st2 = Stager(a, 28, RING2_SLOTS, 28, 30, 98, 99, 4096, 1024, 24, "", "u")
    late = gemm1(a, P, st2)
    a("s_barrier")
    signal(a, f"{P}_sg", "s100", vt=44)
    stamp(a, 7)
    if late:
        a.ext(late)
        a("s_waitcnt vmcnt(0)")
    if OPT["stop"] != "p2": phase3(a, P, st2, "g")
    a(f"s_branch {P}_end")
    a(f"{P}_fft:")
    a(f"s_waitcnt vmcnt({npf2})")
    signal_a(a, P + "f")
    stamp(a, 4)
    fft_tables(a, P)
    a("s_barrier")
    fft_load_constants(a)
    poll(a, f"{P}_pf", 32, CNT_A, 8)
    stamp(a, 5)
    if OPT["stop"] == "p1": a(f"s_branch {P}_end")
    stf = Stager(a, 28, RING2_SLOTS, 28, 30, 98, 99, 4096, 1024, 24, "", "f")
    fft_columns(a, P, stf)
    stamp(a, 12)
    stamp(a, 13)
    a("s_mov_b32 s100, s72")
    a("s_waitcnt vmcnt(0)")
    a("s_barrier")
    signal(a, f"{P}_sz", "s100", vt=44)
    stamp(a, 7)
    phase3_setup(a)
    if OPT["stop"] != "p2": phase3(a, P, stf, "f")
    a(f"{P}_end:")
    if not OPT["fst"]: stamp(a, 11)
    stamp_flush_n(a, 14)
    a(f"{P}_done:")
    a("s_endpgm")
    a(f"{P}_codeend:")
    text = a.finalize()
    errs = []
    for tk in ([], [f"{P}_fft"]):
        errs += check_waits(a.ins, take=tk + [f"{P}_noinit"], trips={f"{P}_t64": 1, f"{P}_tw": 3}, verbose=not OPT["ffilt"])
    assert not errs or OPT["ffilt"]
    return header(name) + text, descriptor(name, 512, 102, 256)

def stamp_flush_n(a, n):
    import common
    if not common.STAMP: return
    a("s_waitcnt vmcnt(0) lgkmcnt(0)")
    a("s_memrealtime s[76:77]")
    a("s_waitcnt lgkmcnt(0)")
    a("s_mov_b32 s74, s76")
    a("s_lshl_b32 s75, s2, 2")
    a("s_add_u32 s75, s75, s3")
    a("s_lshl_b32 s75, s75, 6")
    a(f"s_add_u32 s75, s75, {STAMP_BASE}")
    a("v_mov_b32 v0, 0")
    for k in range(n):
        a(f"v_mov_b32 v1, s{80+k}")
        a(f"buffer_store_dword v1, v0, s[28:31], s75 offen offset:{4*k}")
    a("v_mov_b32 v1, s74")
    a(f"buffer_store_dword v1, v0, s[28:31], s75 offen offset:{4*n}")

if __name__ == "__main__":
    t, d = gen_fused(); print(len(t.splitlines()))
```
